```python
import torch

def _softmax(x, axis=-1):
    return torch.softmax(x, dim=axis)
def _gelu(x):
    return torch.nn.functional.gelu(x, approximate="tanh")
def _silu(x):
    return torch.nn.functional.silu(x)
def _sigmoid(x):
    return torch.sigmoid(x)
def _layernorm(x, axis=-1, eps=1e-5):
    m = x.mean(dim=axis, keepdim=True)
    v = x.var(dim=axis, keepdim=True, unbiased=False)
    return (x - m) / torch.sqrt(v + eps)
def _scatter_add(tgt, idx, src, axis=0):
    return tgt.clone().index_add_(axis, idx, src)
def _segment_sum(src, seg, n):
    out = torch.zeros((n,) + src.shape[1:], dtype=src.dtype)
    return out.index_add_(0, seg, src)
def _pad(x, pw):
    flat = tuple(v for pair in reversed(pw) for v in pair)
    return torch.nn.functional.pad(x, flat)

kernel_name = 'recurrent_scan__ssm_conv_s4d__dense_activation_silu__prompt'

def setup_inputs():

    _w = (lambda a: (lambda t: t.to(torch.bfloat16) if t.is_floating_point() else t)(torch.as_tensor(a)))
    def _A_setup():
        Bsz, L, D, N = 1, 2048, 512, 128
        return {
            "u": _w((lambda *s: torch.randn(*s, dtype=torch.bfloat16) * 0.05)(Bsz, L, D)),
            "log_A_real": _w((lambda *s: torch.randn(*s, dtype=torch.bfloat16) * 6.4)(D, N) * 0.5),
            "A_imag": _w((lambda *s: torch.randn(*s, dtype=torch.bfloat16) * 0.2)(D, N) * 3.14),
            "C_real": _w((lambda *s: torch.randn(*s, dtype=torch.bfloat16) * 0.4)(D, N) / N ** 0.5),
            "C_imag": _w((lambda *s: torch.randn(*s, dtype=torch.bfloat16) * 0.4)(D, N) / N ** 0.5),
            "log_dt": _w((lambda *s: torch.randn(*s, dtype=torch.bfloat16) * 0.2)(D) * 0.5 - 4.0),
            "D_skip": _w((lambda *s: torch.randn(*s, dtype=torch.bfloat16) * 0.2)(D)),
        }
    _A_in = _A_setup()

    def _B_setup():
        B, S, D, F = 1, 2048, 512, 1792
        return {
            "x": _w((lambda *s: torch.randn(*s, dtype=torch.bfloat16) * 0.05)(B, S, D)),
            "w1": _w((lambda *s: torch.randn(*s, dtype=torch.bfloat16) * 0.8)(D, F) * (D ** -0.5)),
            "w2": _w((lambda *s: torch.randn(*s, dtype=torch.bfloat16) * 0.1)(F, D) * (F ** -0.5)),
        }
    _B_in = _B_setup()

    return {
        "A_u": _A_in["u"],
        "A_log_A_real": _A_in["log_A_real"],
        "A_A_imag": _A_in["A_imag"],
        "A_C_real": _A_in["C_real"],
        "A_C_imag": _A_in["C_imag"],
        "A_log_dt": _A_in["log_dt"],
        "A_D_skip": _A_in["D_skip"],
        "B_x": _B_in["x"],
        "B_w1": _B_in["w1"],
        "B_w2": _B_in["w2"],
    }

def reference(A_u, A_log_A_real, A_A_imag, A_C_real, A_C_imag, A_log_dt, A_D_skip, B_x, B_w1, B_w2):
    def _A_ref(u, log_A_real, A_imag, C_real, C_imag, log_dt, D_skip):
        L = u.shape[1]
        dt = torch.exp(log_dt)
        A = -torch.exp(log_A_real) + 1j * A_imag
        C = (C_real + 1j * C_imag) * dt[:, None]
        pos = (lambda x, dt: x.to(dt))(torch.arange(L), log_dt.dtype)
        P = torch.exp((A * dt[:, None])[:, :, None] * pos[None, None, :])
        K = 2.0 * torch.einsum("dn,dnl->dl", C, P).real
        L2 = 2 * L
        u_t = (lambda x, *d: x.permute(*d))(u, 0, 2, 1)
        Kf = (lambda x, *a, **k: torch.fft.rfft(x.float(), *a, **k))(K, L2)
        Uf = (lambda x, *a, **k: torch.fft.rfft(x.float(), *a, **k))(u_t, L2)
        y = (lambda x, *a, **k: torch.fft.irfft(x, *a, **k).to(torch.bfloat16))(Uf * Kf[None, :, :], L2)[:, :, :L]
        y = (lambda x, *d: x.permute(*d))(y, 0, 2, 1)
        return y + u * D_skip[None, None, :]

    def _B_ref(x, w1, w2):
        h = torch.einsum("bsd,df->bsf", x, w1)
        h = _silu(h)
        out = torch.einsum("bsf,fd->bsd", h, w2)
        return out

    x = A_u
    xn = _layernorm(x, axis=-1)
    s = _A_ref(xn, A_log_A_real, A_A_imag, A_C_real, A_C_imag, A_log_dt, A_D_skip)
    g = _silu(_B_ref(xn, B_w1, B_w2))
    return x + s * g
```

```python
import re

REG = re.compile(r'^(-|abs\()?\|?([sva])(\d+|\[(\d+):(\d+)\])')
TRANS = ('v_exp_', 'v_log_', 'v_rcp_', 'v_rsq_', 'v_sqrt_', 'v_sin_', 'v_cos_')

def regs_of(tok):
    tok = tok.strip()
    if tok in ('vcc',): return {('s', 106), ('s', 107)}
    if tok == 'vcc_lo': return {('s', 106)}
    if tok == 'vcc_hi': return {('s', 107)}
    if tok == 'exec': return {('s', 126), ('s', 127)}
    if tok == 'm0': return {('s', 124)}
    m = REG.match(tok)
    if not m: return set()
    f = m.group(2)
    if m.group(4) is not None:
        return {(f, i) for i in range(int(m.group(4)), int(m.group(5)) + 1)}
    return {(f, int(m.group(3)))}

def split_ops(s):
    out, depth, cur = [], 0, ''
    for ch in s:
        if ch in '[(': depth += 1
        if ch in '])': depth -= 1
        if ch == ',' and depth == 0:
            out.append(cur.strip()); cur = ''
        else: cur += ch
    if cur.strip(): out.append(cur.strip())
    return out

class Ins:
    __slots__ = ('text', 'mn', 'kind', 'defs', 'uses', 'ws', 'passes', 'srcc', 'srcab', 'dpp', 'trans', 'wide', 'opsel', 'lds', 'data')
    def __init__(s, text):
        s.text = text
        body = text.split(';')[0].strip()
        parts = body.split(None, 1)
        mn = parts[0]; rest = parts[1] if len(parts) > 1 else ''
        s.mn = mn; s.ws = 1; s.passes = 0; s.srcc = set(); s.srcab = set(); s.data = set()
        s.dpp = ('quad_perm' in rest or 'row_' in rest or 'wave_' in rest or mn.endswith('_dpp'))
        s.trans = mn.startswith(TRANS)
        s.wide = False; s.lds = False
        s.opsel = ('dst_sel' in rest) or (mn.startswith('v_') and not mn.startswith('v_pk_') and 'op_sel' in rest and not mn.startswith('v_mfma') and not mn.startswith('v_dot'))
        ops = split_ops(rest)
        ops = [o.split()[0] if o.split() else o for o in ops]
        R = [regs_of(o) for o in ops]
        allr = set().union(*R) if R else set()
        s.defs = set(); s.uses = set()
        if mn == 's_nop':
            s.kind = 'nop'; s.ws = int(rest.split()[0], 0) + 1
        elif mn.startswith('v_mfma'):
            s.kind = 'mfma'; s.defs = R[0]; s.srcab = R[1] | R[2]; s.srcc = R[3] if len(R) > 3 else set()
            s.uses = s.srcab | s.srcc
            if '32x32x16' in mn or '32x32x8' in mn: s.passes = 8
            elif '16x16x32' in mn or '16x16x16' in mn: s.passes = 4
            elif '32x32x2_f32' in mn: s.passes = 16
            elif '16x16x4_f32' in mn: s.passes = 8
            else: raise ValueError('passes? ' + mn)
        elif mn.startswith('v_'):
            s.kind = 'valu'
            if mn.startswith('v_cmp'):
                s.defs = R[0]; s.uses = set().union(*R[1:])
            elif 'permlane' in mn and 'swap' in mn or mn.startswith('v_swap'):
                s.defs = R[0] | R[1]; s.uses = R[0] | R[1]
            elif mn.startswith(('v_add_co', 'v_sub_co', 'v_addc_co', 'v_subb_co', 'v_subrev_co', 'v_div_scale', 'v_mad_u64')):
                s.defs = R[0] | R[1]; s.uses = set().union(*R[2:])
            else:
                s.defs = R[0]; s.uses = set().union(*R[1:]) if len(R) > 1 else set()
                if mn.startswith(('v_fmac', 'v_dot2c', 'v_pk_fmac', 'v_writelane', 'v_mac')) or s.dpp or s.opsel: s.uses |= R[0]
                if mn.startswith('v_cndmask') and len(R) == 3: s.uses |= regs_of('vcc')
        elif mn.startswith('ds_'):
            s.kind = 'ds'
            if mn.startswith(('ds_read', 'ds_bpermute', 'ds_permute', 'ds_swizzle')) or '_rtn' in mn:
                s.defs = R[0]; s.uses = set().union(*R[1:])
            else:
                s.uses = allr
        elif mn.startswith(('buffer_', 'global_', 'flat_')):
            s.kind = 'vmem'
            if not R: R = [set()]
            islds = (' lds' in (' ' + rest)) or ('_lds_' in mn)
            s.lds = islds
            if islds:
                s.uses = allr | regs_of('m0')
            elif '_load' in mn:
                s.defs = R[0]; s.uses = set().union(*R[1:])
            elif 'atomic' in mn and 'sc0' in rest:
                s.defs = R[0]; s.uses = allr
            else:
                s.uses = allr
                if 'store' in mn and ('x4' in mn or 'x3' in mn):
                    s.wide = True
                    s.data = R[0] if mn.startswith('buffer_') else R[1]
        elif mn.startswith('s_'):
            s.kind = 'salu'
            if mn.startswith(('s_cmp', 's_waitcnt', 's_barrier', 's_branch', 's_cbranch', 's_endpgm', 's_setprio', 's_sleep', 's_bitcmp')):
                s.uses = allr
            else:
                s.defs = R[0] if R else set(); s.uses = set().union(*R[1:]) if len(R) > 1 else set()
                if 'saveexec' in mn: s.defs = s.defs | regs_of('exec')
        else:
            raise ValueError('unknown instr ' + text)

PIDX = {2: 0, 4: 1, 8: 2, 16: 3}
def need(p, c):
    n = 0
    pv = {r for r in p.defs if r[0] in 'va'}
    ps = {r for r in p.defs if r[0] == 's'}
    if p.kind == 'valu':
        if c.kind == 'mfma' and pv & c.uses: n = max(n, 2)
        if c.kind == 'valu':
            if p.trans and pv & c.uses: n = max(n, 1)
            if p.opsel and pv & (c.uses | c.defs): n = max(n, 1)
            if c.dpp and pv & c.uses: n = max(n, 2)
            if 'permlane' in c.mn and pv & c.uses: n = max(n, 2)
            if c.mn.startswith(('v_readlane', 'v_readfirstlane')) and pv & c.uses: n = max(n, 1)
            if ps & c.uses:
                n = max(n, 4 if c.mn.startswith(('v_readlane', 'v_writelane', 'v_div_fmas')) else 2)
            if p.mn.startswith('v_dot') and pv & (c.uses | c.defs):
                if not (c.mn == p.mn and pv == c.defs): n = max(n, 3)
        if p.mn.startswith('v_dot') and c.kind in ('mfma', 'ds', 'vmem') and pv & c.uses: n = max(n, 3)
        if p.trans and c.kind in ('ds', 'vmem') and pv & c.uses: n = max(n, 1)
        if c.kind == 'vmem' and ps & c.uses: n = max(n, 5)
        if c.kind == 'salu' and ps & c.uses: n = max(n, 1)
    if p.kind == 'mfma':
        i = PIDX[p.passes]
        if c.kind == 'mfma':
            if p.defs & c.srcab: n = max(n, (5, 8, 12, 20)[i])
            if p.defs & c.srcc:
                if p.defs == c.srcc and p.passes == c.passes: n = max(n, (2, 0, 0, 0)[i])
                else: n = max(n, (4, 6, 10, 18)[i])
            elif p.defs & c.defs: n = max(n, (5, 8, 12, 20)[i])
        elif c.kind in ('valu', 'ds', 'vmem'):
            if p.defs & (c.uses | c.defs): n = max(n, (5, 8, 12, 20)[i])
            if p.srcc & c.defs: n = max(n, (1, 3, 7, 15)[i])
    if p.kind == 'salu' and ('s', 124) in p.defs and c.lds: n = max(n, 1)
    if p.kind == 'vmem' and p.wide and p.data & c.defs: n = max(n, 2)
    return n

class Asm:
    def __init__(s):
        s.out = []
        s.hist = []
        s.marks = {}
        s.ins = []
        s.nops = 0
        s.mute = False
    def raw(s, t): s.out.append(t)
    def comment(s, t): s.out.append('    ; ' + t)
    def _deficit(s, hist, c):
        d = 0; dist = 0
        for p in reversed(hist):
            d = max(d, need(p, c) - dist)
            dist += p.ws
            if dist >= 20: break
        return d
    def __call__(s, text):
        for line in text.strip().split('\n'):
            line = line.strip()
            if not line or line.startswith(';'):
                if line: s.out.append('    ' + line)
                continue
            c = Ins(line)
            d = s._deficit(s.hist, c)
            if d > 0: s._nop(d)
            s.out.append('    ' + line); s.hist.append(c); s.ins.append(c)
            if len(s.hist) > 64: s.hist = s.hist[-32:]
    def _nop(s, d):
        while d > 0:
            k = min(d, 16)
            n = Ins('s_nop %d' % (k - 1)); s.out.append('    s_nop %d' % (k - 1)); s.hist.append(n); s.ins.append(n); s.nops += k
            d -= k
    def label(s, name, fence=True):
        if fence: s.fence()
        s.out.append(name + ':'); s.marks[name] = len(s.ins)
    def fence(s):
        d = 0; dist = 0
        for p in reversed(s.hist):
            worst = 0
            if p.kind == 'mfma': worst = (5, 8, 12, 20)[PIDX[p.passes]]
            elif p.kind == 'valu': worst = 5 if any(r[0] == 's' for r in p.defs) else 3
            elif p.kind == 'vmem' and p.wide: worst = 2
            elif p.kind == 'salu' and ('s', 124) in p.defs: worst = 1
            d = max(d, worst - dist); dist += p.ws
            if dist >= 20: break
        if d > 0: s._nop(d)
    def fwd_branch(s, text):
        s.fence(); s(text)
    def back_branch(s, text, label):
        br = Ins(text)
        while True:
            h = list(s.hist) + [br]; worst = 0; dist = 0
            for c in s.ins[s.marks[label]:s.marks[label] + 24]:
                worst = max(worst, s._deficit(h, c)); h.append(c); dist += c.ws
                if dist >= 20: break
            if worst <= 0: break
            s._nop(worst)
        s(text)
    def text(s): return '\n'.join(s.out) + '\n'
```

```python
from gen import *
DP = 5
RING = 0; RPW = DP * 4096
LU = 4 * RPW; UP = 4608
LKC = LU + 2 * UP; KCP = 4160
LEX = LKC + 8 * KCP
LSY = LEX + 32768
K2_LDS = LSY + 64
LS = LKC
PP = 272

def lds_wait(A, name, vaddr, off, val, vt, st, scap):
    A(f's_mov_b32 s{scap}, 0x40000')
    A.label(name)
    A(f'''ds_read_b32 v{vt}, v{vaddr} offset:{off}
    s_waitcnt lgkmcnt(0)
    v_readfirstlane_b32 s{st}, v{vt}
    s_sub_u32 s{scap}, s{scap}, 1
    s_cselect_b32 s{st}, {val}, s{st}
    s_cmp_lg_u32 s{st}, {val}''')
    A.back_branch(f's_cbranch_scc1 {name}', name)

def gen_k2(A, cfg):
    kernel_head(A, 'k2_kernel')
    sX, sW2, sWS, sOUT = 4, 8, 12, 16
    sWave, sRB, sCB, sT0, sT1, sT2, sCap = 40, 41, 42, 43, 44, 45, 46
    vX = 250
    vXo = 254
    A(f'''s_cmp_ge_u32 s2, 256
    s_cbranch_scc1 K2_END
    s_load_dwordx2 s[20:21], s[0:1], 0
    s_load_dwordx2 s[22:23], s[0:1], 48
    s_load_dwordx4 s[24:27], s[0:1], 72
    s_load_dwordx2 s[28:29], s[0:1], 96
    v_lshrrev_b32 v2, 6, v0
    v_and_b32 v1, 63, v0
    v_readfirstlane_b32 s{sWave}, v2
    s_and_b32 s{sT0}, s2, 7
    s_lshl_b32 s{sT0}, s{sT0}, 2
    s_bfe_u32 s{sT1}, s2, 0x20003
    s_add_u32 s{sRB}, s{sT0}, s{sT1}
    s_lshr_b32 s{sCB}, s2, 5
    v_lshrrev_b32 v2, 3, v0
    v_and_b32 v3, 7, v0
    v_lshlrev_b32 v3, 4, v3
    v_lshl_add_u32 v{vXo}, v2, 10, v3
    s_lshl_b32 s{sT0}, s{sRB}, 16
    s_lshl_b32 s{sT1}, s{sCB}, 7
    s_add_u32 s{sT0}, s{sT0}, s{sT1}
    v_add_u32 v{vXo}, s{sT0}, v{vXo}
    s_waitcnt lgkmcnt(0)''')
    srd(A, sX, 20, 2048 * 1024); srd(A, sW2, 24, 1792 * 1024); srd(A, sWS, 28, WS_SIZE); srd(A, sOUT, 26, 2048 * 1024)
    A(f's_cmp_ge_u32 s{sWave}, 4')
    A.fwd_branch('s_cbranch_scc1 K2_CONV')

    kw = sWave
    vH, vW, vR = 4, 8, 12
    t0, t1, t2, t3 = 16, 17, 18, 19
    WF = 20
    ACC = 36
    HB = 100
    sH, sWo, sRing = 48, 49, 50
    A(f'''v_lshlrev_b32 v{vH}, 4, v1
    v_add_u32 v{vH+1}, {57344}, v{vH}
    v_add_u32 v{vH+2}, {2*57344}, v{vH}
    v_add_u32 v{vH+3}, {3*57344}, v{vH}
    s_mul_i32 s{sH}, s{sRB}, {4*57344}
    s_mul_i32 s{sT0}, s{kw}, {14*1024}
    s_add_u32 s{sH}, s{sH}, s{sT0}
    v_lshrrev_b32 v{t0}, 3, v1
    v_lshrrev_b32 v{t1}, 4, v1
    v_lshlrev_b32 v{t1}, 1, v{t1}
    v_and_b32 v{t2}, 7, v1
    v_xor_b32 v{t2}, v{t2}, v{t1}
    v_lshlrev_b32 v{t2}, 4, v{t2}
    v_lshl_add_u32 v{vW}, v{t0}, 10, v{t2}
    v_add_u32 v{vW+1}, 7168, v{vW}
    v_add_u32 v{vW+2}, 14336, v{vW}
    v_add_u32 v{vW+3}, 21504, v{vW}
    s_mul_i32 s{sWo}, s{kw}, {14*32768}
    s_lshl_b32 s{sT0}, s{sCB}, 7
    s_add_u32 s{sWo}, s{sWo}, s{sT0}
    s_mul_i32 s{sRing}, s{kw}, {RPW}''')
    def ldW(i):
        L = [f's_add_u32 m0, s{sRing}, {RING + (i % DP)*4096}', f's_add_u32 s{sT0}, s{sWo}, {i*32768}']
        for e in range(4): L.append(f'buffer_load_dwordx4 v{vW+e}, s[{sW2}:{sW2+3}], s{sT0} offen offset:{1024*e} lds')
        A('\n'.join(L))
    def ldH(i):
        L = [f's_add_u32 s{sT1}, s{sH}, {WS_H + i*1024}']
        for q in range(4): L.append(f'buffer_load_dwordx4 {v(HB+16*(i%DP)+4*q,4)}, v{vH+q}, s[{sWS}:{sWS+3}], s{sT1} offen')
        A('\n'.join(L))
    A(f'buffer_load_dwordx4 {v(vX,4)}, v{vXo}, s[{sX}:{sX+3}], 0 offen')
    ldW(0); ldH(0)
    A('s_barrier')
    for i in range(1, DP): ldW(i); ldH(i)
    A(f'''v_lshrrev_b32 v{t0}, 2, v1
    v_bfe_u32 v{t1}, v1, 3, 2
    v_and_b32 v{t2}, 3, v1
    v_lshlrev_b32 v{t2}, 3, v{t2}
    v_lshl_add_u32 v{t2}, v{t0}, 7, v{t2}
    v_add_u32 v{t2}, s{sRing}, v{t2}''')
    for T in range(4): A(f'v_xor_b32 v{t3}, {T}, v{t1}\nv_lshl_add_u32 v{vR+T}, v{t3}, 5, v{t2}')
    for i in range(64): A(f'v_mov_b32 v{ACC+i}, 0')
    for i in range(14):
        younger = min(DP - 1, 13 - i)
        A(f's_waitcnt vmcnt({8*younger})')
        L = []
        for T in range(4):
            for hh in range(2):
                L.append(f'ds_read_b64_tr_b16 {v(WF+4*T+2*hh,2)}, v{vR+T} offset:{RING+(i%DP)*4096+hh*2048}')
        A('\n'.join(L))
        for T in range(4):
            A(f's_waitcnt lgkmcnt({6-2*T})')
            if T == 3 and i + DP < 14: ldW(i + DP)
            for q in range(4):
                a = ACC + 16 * T + 4 * q
                A(f'v_mfma_f32_16x16x32_bf16 {v(a,4)}, {v(WF+4*T,4)}, {v(HB+16*(i%DP)+4*q,4)}, {v(a,4)}')
        if i + DP < 14: ldH(i + DP)
    A(f'''v_and_b32 v{t0}, 15, v1
    v_lshrrev_b32 v{t1}, 4, v1
    v_mul_u32_u24 v{t0}, {PP}, v{t0}
    v_lshl_add_u32 v{t0}, v{t1}, 4, v{t0}
    v_add_u32 v{t0}, s{sRing}, v{t0}''')
    for T in range(4):
        for q in range(4):
            A(f'ds_write_b128 v{t0}, {v(ACC+16*T+4*q,4)} offset:{RING+q*16*PP+T*64}')
    A.fwd_branch('s_branch K2_FINAL')

    A.label('K2_CONV')
    cw = sWave
    sC, sHF, sYS, sDS = 48, 49, 50, 52
    sUb, sKb = 54, 55
    vK, vU, vSy = 4, 5, 6
    t0, t1, t2, t3 = 8, 9, 10, 11
    ACC = 12
    FK = [44, 108]; FU = [76, 140]
    A(f'''s_setprio 2
    s_sub_u32 s{cw}, s{cw}, 4
    s_lshr_b32 s{sC}, s{cw}, 1
    s_and_b32 s{sHF}, s{cw}, 1
    s_lshl_b32 s{sT2}, s2, 1
    s_add_u32 s{sT2}, s{sT2}, s{sC}
    s_mul_i32 s{sUb}, s{sC}, {UP}
    s_add_u32 s{sUb}, s{sUb}, {LU}
    s_mul_i32 s{sKb}, s{sC}, {4*KCP}
    s_add_u32 s{sKb}, s{sKb}, {LKC}
    v_lshlrev_b32 v{t0}, 4, v1
    s_lshl_b32 s{sT1}, s{sHF}, 11
    s_mul_i32 s{sT0}, s{sT2}, {KE_PITCH}
    s_add_u32 s{sT0}, s{sT0}, s{sT1}
    s_add_u32 s{sT0}, s{sT0}, {WS_KE}''')
    KA = 44
    for rd in range(2):
        for sh in range(3):
            A(f'buffer_load_dwordx4 {v(KA+12*rd+4*sh,4)}, v{t0}, s[{sWS}:{sWS+3}], s{sT0} offen offset:{1024*rd+4*sh}')
    A(f'''s_lshl_b32 s{sT0}, s{sT2}, 12
    s_add_u32 s{sT0}, s{sT0}, s{sT1}
    s_add_u32 s{sT0}, s{sT0}, {WS_XNT}
    s_add_u32 s{sT1}, s{sT1}, s{sUb}
    s_add_u32 m0, s{sT1}, 480
    s_mul_i32 s{sT2}, s2, {2*KE_PITCH}
    buffer_load_dwordx4 v{t0}, s[{sWS}:{sWS+3}], s{sT0} offen lds
    buffer_load_dwordx4 v{t0}, s[{sWS}:{sWS+3}], s{sT0} offen offset:1024 lds
    buffer_load_dwordx4 {v(vX,4)}, v{vXo}, s[{sX}:{sX+3}], 0 offen
    s_add_u32 s{sT2}, s{sT2}, {WS_KE+4160}
    s_load_dword s{sYS}, s[28:29], s{sT2}
    s_add_u32 s{sT2}, s{sT2}, {KE_PITCH}
    s_load_dword s{sYS+1}, s[28:29], s{sT2}
    s_lshl_b32 s{sT2}, s2, 2
    s_load_dword s{sDS}, s[22:23], s{sT2}
    v_mov_b32 v12, 0
    v_mov_b32 v13, 0
    v_mov_b32 v14, 0
    v_mov_b32 v15, 0
    v_mov_b32 v{vSy}, {LSY}
    ds_write_b128 v{vSy}, v[12:15]
    v_add_u32 v{t1}, s{sUb}, v{t0}
    v_lshrrev_b32 v{t2}, 2, v1
    v_mul_u32_u24 v{t2}, {KCP}, v{t2}
    v_and_b32 v{t3}, 3, v1
    v_lshl_add_u32 v{t2}, v{t3}, 4, v{t2}
    v_add_u32 v{t2}, s{sKb}, v{t2}
    s_mov_b64 exec, 0x3fffffff
    ds_write_b128 v{t1}, v[12:15]
    s_mov_b64 exec, 0xffff
    ds_write_b128 v{t2}, v[12:15] offset:4096
    s_mov_b64 exec, -1
    s_waitcnt lgkmcnt(0)
    s_barrier''')
    A(f'''v_and_b32 v{t1}, 3, v1
    v_sub_u32 v{t1}, 3, v{t1}
    v_mul_u32_u24 v{t1}, {KCP}, v{t1}
    v_bfe_u32 v{t2}, v1, 2, 2
    v_lshrrev_b32 v{t3}, 4, v1
    v_lshlrev_b32 v{vK}, 1, v{t3}
    v_sub_u32 v{vK}, v{vK}, v{t2}
    v_lshl_add_u32 v{vK}, v{vK}, 3, v{t1}
    s_lshl_b32 s{sT0}, s{sHF}, 8
    s_sub_u32 s{sT1}, s{sKb}, s{sT0}
    s_add_u32 s{sT1}, s{sT1}, {8*507-192-3584}
    v_add_u32 v{vK}, s{sT1}, v{vK}
    v_and_b32 v{t1}, 15, v1
    v_lshlrev_b32 v{t1}, 5, v{t1}
    v_lshl_add_u32 v{vU}, v{t3}, 4, v{t1}
    s_sub_u32 s{sT1}, s{sUb}, s{sT0}
    s_add_u32 s{sT1}, s{sT1}, {448-192}
    v_add_u32 v{vU}, s{sT1}, v{vU}
    s_lshl_b32 s{sT0}, s{sHF}, 11
    s_add_u32 s{sT0}, s{sT0}, s{sKb}
    v_add_u32 v{t1}, s{sT0}, v{t0}
    s_and_b32 s{sDS+1}, s{sDS}, 0xffff0000
    s_lshl_b32 s{sDS}, s{sDS}, 16''')
    for i in range(4, 32): A(f'v_mov_b32 v{ACC+i}, 0')
    for rd in range(2):
        a0, a2, a4 = KA + 12 * rd, KA + 12 * rd + 4, KA + 12 * rd + 8
        c1, c3 = 76 + 8 * rd, 80 + 8 * rd
        A(f's_waitcnt vmcnt({6-3*rd})')
        A(f'ds_write_b128 v{t1}, {v(a0,4)} offset:{1024*rd}\nds_write_b128 v{t1}, {v(a2,4)} offset:{1024*rd+2*KCP}')
        for i in range(4): A(f'v_alignbit_b32 v{c1+i}, v{a2+i}, v{a0+i}, 16\nv_alignbit_b32 v{c3+i}, v{a4+i}, v{a2+i}, 16')
        A(f'ds_write_b128 v{t1}, {v(c1,4)} offset:{1024*rd+KCP}\nds_write_b128 v{t1}, {v(c3,4)} offset:{1024*rd+3*KCP}')
    A(f'''v_mov_b32 v{t2}, 1
    s_waitcnt vmcnt(1) lgkmcnt(0)
    s_mov_b64 exec, 1
    ds_add_u32 v{vSy}, v{t2}
    s_mov_b64 exec, -1''')
    lds_wait(A, 'K2_W0', vSy, 0, 4, t3, sT0, sCap)
    def creads(rl):
        b = rl & 1; L = []
        for m in range(8):
            L.append(f'ds_read_b128 {v(FU[b]+4*m,4)}, v{vU} offset:{512*m+64*(3-rl)}')
            for hh in range(2):
                L.append(f'ds_read_b64 {v(FK[b]+4*m+2*hh,2)}, v{vK} offset:{512*(7-m)+64*(3-rl)+8*hh}')
        return L
    A('\n'.join(creads(0)))
    for rl in range(4):
        b = rl & 1
        nxt = creads(rl + 1) if rl < 3 else []
        A('s_waitcnt lgkmcnt(0)')
        k = 0
        for m in range(8):
            for jj in range(8 - m):
                a = ACC + 4 * (m + jj)
                A(f'v_mfma_f32_16x16x32_f16 {v(a,4)}, {v(FK[b]+4*m,4)}, {v(FU[b]+4*jj,4)}, {v(a,4)}')
                if k < len(nxt): A(nxt[k])
                k += 1
    A(f'''s_lshl_b32 s{sT0}, s{cw}, 13
    s_add_u32 s{sT0}, s{sT0}, {LEX}
    v_add_u32 v{t1}, s{sT0}, v{t0}''')
    for i in range(8): A(f'ds_write_b128 v{t1}, {v(ACC+4*i,4)} offset:{1024*i}')
    A(f'''s_lshl_b32 s{sT0}, s{cw}, 11
    s_add_u32 s{sT1}, s{sT0}, {LEX}
    v_add_u32 v{t1}, s{sT1}, v{t0}
    v_and_b32 v{vK}, 15, v1
    v_lshrrev_b32 v{vU}, 4, v1
    v_lshlrev_b32 v{vU}, 2, v{vU}
    v_lshl_add_u32 v{vK}, v{vK}, 4, v{vU}
    s_lshl_b32 s{sT1}, s{cw}, 10
    s_add_u32 s{sT1}, s{sT1}, {LU+480}
    v_lshl_add_u32 v{vU}, v{vK}, 1, s{sT1}
    v_lshlrev_b32 v{vK}, 2, v{vK}
    s_lshl_b32 s{sT1}, s2, 13
    s_add_u32 s{sT1}, s{sT1}, s{sT0}
    s_add_u32 s{sT1}, s{sT1}, {WS_SP}
    s_waitcnt lgkmcnt(0)
    s_mov_b64 exec, 1
    ds_add_u32 v{vSy}, v{t2} offset:4
    s_mov_b64 exec, -1''')
    UU = 108
    for ti in range(2):
        for c in range(2): A(f'ds_read_b64 {v(UU+4*ti+2*c,2)}, v{vU} offset:{512*ti+UP*c}')
    lds_wait(A, 'K2_W1', vSy, 4, 4, t3, sT0, sCap)
    PB = 44
    for ti in range(2):
        for w in range(4): A(f'ds_read_b128 {v(PB+16*ti+4*w,4)}, v{t1} offset:{8192*w+1024*ti}')
    for ti in range(2):
        A(f's_waitcnt lgkmcnt({4-4*ti})')
        for c in range(2):
            p0, p1 = PB + 16 * ti + 8 * c, PB + 16 * ti + 8 * c + 4
            for e in range(4):
                A(f'''v_add_f32 v{p0+e}, v{p0+e}, v{p1+e}
                v_mul_f32 v{p0+e}, s{sYS+c}, v{p0+e}
                v_fma_mix_f32 v{p0+e}, v{UU+4*ti+2*c+(e>>1)}, s{sDS+c}, v{p0+e} op_sel:[{e&1},0,0] op_sel_hi:[1,0,0]''')
        o = 120 + 4 * ti
        for e in range(4): A(f'v_cvt_pk_bf16_f32 v{o+e}, v{PB+16*ti+e}, v{PB+16*ti+8+e}')
        A(f'buffer_store_dwordx4 {v(o,4)}, v{vK}, s[{sWS}:{sWS+3}], s{sT1} offen offset:{1024*ti} sc1')
    A(f'''s_waitcnt vmcnt(0)
    s_mov_b64 exec, 1
    ds_add_rtn_u32 v{t3}, v{vSy}, v{t2} offset:8
    s_mov_b64 exec, -1
    s_lshl_b32 s{sT1}, s2, 2
    s_add_u32 s{sT1}, s{sT1}, {WS_FLAG}
    v_mov_b32 v{t1}, 0
    s_waitcnt lgkmcnt(0)
    v_readfirstlane_b32 s{sT0}, v{t3}
    s_cmp_lg_u32 s{sT0}, 3''')
    A.fwd_branch('s_cbranch_scc1 K2_NOFLAG')
    A(f'''s_mov_b64 exec, 1
    buffer_store_dword v{t2}, v{t1}, s[{sWS}:{sWS+3}], s{sT1} offen sc1
    s_mov_b64 exec, -1''')
    A.label('K2_NOFLAG')
    A(f'''s_setprio 0
    v_and_b32 v{t1}, 7, v1
    v_lshlrev_b32 v{t1}, 2, v{t1}
    s_lshl_b32 s{sT0}, s{sCB}, 7
    s_lshl_b32 s{sT1}, s{cw}, 5
    s_add_u32 s{sT0}, s{sT0}, s{sT1}
    s_add_u32 s{sT0}, s{sT0}, {WS_FLAG}
    v_lshrrev_b32 v{vK}, 4, v1
    v_and_b32 v{vU}, 15, v1
    v_lshlrev_b32 v{t2}, 4, v{vU}
    v_lshl_add_u32 v{t2}, v{vK}, 13, v{t2}
    s_lshl_b32 s{sT1}, s{sCB}, 18
    s_lshl_b32 s{sT2}, s{cw}, 16
    s_add_u32 s{sT1}, s{sT1}, s{sT2}
    s_lshl_b32 s{sT2}, s{sRB}, 8
    s_add_u32 s{sT1}, s{sT1}, s{sT2}
    s_add_u32 s{sT1}, s{sT1}, {WS_SP}
    s_add_u32 s{sT2}, s{sT1}, {4*8192}
    s_lshl_b32 s{sC}, s{cw}, 3
    v_add_u32 v{vK}, s{sC}, v{vK}
    v_and_b32 v{t3}, 7, v1
    v_lshlrev_b32 v{t3}, 2, v{t3}
    v_xor_b32 v{vK}, v{vK}, v{t3}
    v_lshlrev_b32 v{vK}, 2, v{vK}
    v_lshl_add_u32 v{vK}, v{vU}, 9, v{vK}
    v_add_u32 v{vK}, {LS}, v{vK}
    v_xor_b32 v{vU}, 16, v{vK}
    s_mov_b32 s{sCap}, 0x20000''')
    A.label('K2_POLL')
    A(f'''buffer_load_dword v{t3}, v{t1}, s[{sWS}:{sWS+3}], s{sT0} offen sc1
    s_sub_u32 s{sCap}, s{sCap}, 1
    s_cbranch_scc1 K2_POLLED
    s_waitcnt vmcnt(0)
    v_cmp_eq_u32 vcc, 0, v{t3}
    s_cbranch_vccz K2_POLLED
    s_sleep 2''')
    A.back_branch('s_branch K2_POLL', 'K2_POLL')
    A.label('K2_POLLED')
    A(f'''buffer_load_dwordx4 v[44:47], v{t2}, s[{sWS}:{sWS+3}], s{sT1} offen sc1
    buffer_load_dwordx4 v[48:51], v{t2}, s[{sWS}:{sWS+3}], s{sT2} offen sc1
    s_waitcnt vmcnt(1)''')
    for e in range(4): A(f'ds_write_b32 v{vK}, v{44+e} offset:{128*e}')
    A('s_waitcnt vmcnt(0)')
    for e in range(4): A(f'ds_write_b32 v{vU}, v{48+e} offset:{128*e}')

    A.label('K2_FINAL')
    t0, t1, t2 = 4, 5, 6
    PB = 8; SV = 40; E = 44; XU = 52; SU = 60
    A(f'''v_lshrrev_b32 v{t0}, 3, v0
    v_and_b32 v{t1}, 7, v0
    v_mul_u32_u24 v{t2}, {PP}, v{t0}
    v_lshl_add_u32 v{t2}, v{t1}, 5, v{t2}
    v_bfe_u32 v3, v0, 5, 3
    v_xor_b32 v{t1}, v{t1}, v3
    v_lshlrev_b32 v{t1}, 4, v{t1}
    v_lshl_add_u32 v{t1}, v{t0}, 7, v{t1}
    v_add_u32 v{t1}, {LS}, v{t1}
    s_mov_b32 s56, {NLOG2E}
    s_mov_b32 s57, {NLOG2E}
    s_waitcnt vmcnt(0) lgkmcnt(0)
    s_barrier''')
    for w in range(4):
        for hh in range(2): A(f'ds_read_b128 {v(PB+8*w+4*hh,4)}, v{t2} offset:{RING+w*RPW+16*hh}')
    A(f'ds_read_b128 {v(SV,4)}, v{t1}')
    for j in range(4): A(f'v_lshlrev_b32 v{XU+2*j}, 16, v{vX+j}\nv_and_b32 v{XU+2*j+1}, 0xffff0000, v{vX+j}')
    A('s_waitcnt lgkmcnt(5)')
    for j in range(4): A(f'v_pk_add_f32 {v(PB+2*j,2)}, {v(PB+2*j,2)}, {v(PB+8+2*j,2)}')
    A('s_waitcnt lgkmcnt(1)')
    for j in range(4): A(f'v_pk_add_f32 {v(PB+16+2*j,2)}, {v(PB+16+2*j,2)}, {v(PB+24+2*j,2)}')
    for j in range(4): A(f'v_pk_add_f32 {v(PB+2*j,2)}, {v(PB+2*j,2)}, {v(PB+16+2*j,2)}')
    for j in range(4): A(f'v_pk_mul_f32 {v(E+2*j,2)}, {v(PB+2*j,2)}, s[56:57]')
    for j in range(8): A(f'v_exp_f32 v{E+j}, v{E+j}')
    for j in range(4): A(f'v_pk_add_f32 {v(E+2*j,2)}, {v(E+2*j,2)}, 1.0 op_sel_hi:[1,0]')
    for j in range(8): A(f'v_rcp_f32 v{E+j}, v{E+j}')
    A('s_waitcnt lgkmcnt(0)')
    for j in range(4): A(f'v_lshlrev_b32 v{SU+2*j}, 16, v{SV+j}\nv_and_b32 v{SU+2*j+1}, 0xffff0000, v{SV+j}')
    for j in range(4): A(f'v_pk_mul_f32 {v(PB+2*j,2)}, {v(PB+2*j,2)}, {v(E+2*j,2)}')
    for j in range(4): A(f'v_pk_fma_f32 {v(PB+2*j,2)}, {v(PB+2*j,2)}, {v(SU+2*j,2)}, {v(XU+2*j,2)}')
    for j in range(4): A(f'v_cvt_pk_bf16_f32 v{SV+j}, v{PB+2*j}, v{PB+2*j+1}')
    A(f'buffer_store_dwordx4 {v(SV,4)}, v{vXo}, s[{sOUT}:{sOUT+3}], 0 offen')
    A.label('K2_END', fence=False)
    A('s_endpgm')
    return kd('k2_kernel', 256)
```

```python
import sys, math, struct
from asmlib import Asm
NAME = "recurrent_scan__ssm_conv_s4d__dense_activation_silu__prompt"

def f32(x): return '0x%08x' % struct.unpack('<I', struct.pack('<f', x))[0]
LOG2E = f32(math.log2(math.e)); NLOG2E = f32(-math.log2(math.e)); INV2PI = f32(1 / (2 * math.pi))

WS_H = 0
WS_XNT = 0x800000
WS_KE = 0xA00000; KE_PITCH = 4224
WS_SP = 0xD00000
WS_FLAG = 0xF00000
WS_SIZE = 0x1000000

def v(i, n=1): return 'v%d' % i if n == 1 else 'v[%d:%d]' % (i, i + n - 1)
def s(i, n=1): return 's%d' % i if n == 1 else 's[%d:%d]' % (i, i + n - 1)

def srd(A, d, base, nbytes):
    A(f's_mov_b32 s{d}, s{base}\ns_and_b32 s{d+1}, s{base+1}, 0xffff\ns_mov_b32 s{d+2}, {hex(nbytes)}\ns_mov_b32 s{d+3}, 0x00020000')

def kernel_head(A, name):
    A.raw(f'.p2align 8\n.globl {name}\n.type {name},@function\n{name}:')
    A.hist = []

def kd(name, vgpr, sgpr=96, accum=None):
    accum = accum or ((vgpr + 3) // 4 * 4)
    return f'''.amdhsa_kernel {name}
  .amdhsa_next_free_vgpr {vgpr}
  .amdhsa_next_free_sgpr {sgpr}
  .amdhsa_accum_offset {accum}
  .amdhsa_group_segment_fixed_size 0
  .amdhsa_kernarg_size 104
  .amdhsa_user_sgpr_count 2
  .amdhsa_user_sgpr_kernarg_segment_ptr 1
  .amdhsa_system_sgpr_workgroup_id_x 1
.end_amdhsa_kernel
'''

def cmul(d, a, b):
    return [f'v_pk_mul_f32 {v(d,2)}, {v(a,2)}, {v(b,2)} op_sel:[0,0] op_sel_hi:[0,1]',
            f'v_pk_fma_f32 {v(d,2)}, {v(a,2)}, {v(b,2)}, {v(d,2)} op_sel:[1,1,0] op_sel_hi:[1,0,1] neg_lo:[1,0,0]']

def bf16r(d, src):
    return [f'v_cvt_pk_bf16_f32 {v(d)}, {v(src)}, {v(src)}', f'v_lshlrev_b32 {v(d)}, 16, {v(d)}']

LX, LW, LKG = 0, 65536, 131072
LSTAT = 0
LCS = 1024

def gen_k1(A, cfg):
    kernel_head(A, 'k1_kernel')
    sX, sW1, sWS = 4, 8, 12
    sP = 16
    sW1p, sWSp = 32, 34
    sWave, sRB, sCB, sT0, sT1, sT2, sOdd, sCh0 = 40, 41, 42, 43, 44, 45, 46, 47
    sOnes = 48
    A(f'''s_cmp_ge_u32 s2, 256
    s_cbranch_scc1 K1_END
    s_load_dwordx8 s[16:23], s[0:1], 0
    s_load_dwordx4 s[24:27], s[0:1], 32
    s_load_dwordx2 s[{sW1p}:{sW1p+1}], s[0:1], 64
    s_load_dwordx2 s[{sWSp}:{sWSp+1}], s[0:1], 96
    v_lshrrev_b32 v2, 6, v0
    v_and_b32 v1, 63, v0
    v_readfirstlane_b32 s{sWave}, v2
    s_and_b32 s{sT0}, s2, 7
    s_lshl_b32 s{sT0}, s{sT0}, 1
    s_bfe_u32 s{sT1}, s2, 0x10003
    s_add_u32 s{sRB}, s{sT0}, s{sT1}
    s_lshr_b32 s{sCB}, s2, 4
    s_and_b32 s{sOdd}, s{sCB}, 1
    s_lshr_b32 s{sCh0}, s{sCB}, 1
    s_mov_b32 s{sOnes}, 0x3f803f80
    s_waitcnt lgkmcnt(0)''')
    srd(A, sX, 16, 2048 * 1024); srd(A, sW1, sW1p, 512 * 3584); srd(A, sWS, sWSp, WS_SIZE)
    A(f's_cmp_ge_u32 s{sWave}, 4')
    A.fwd_branch('s_cbranch_scc1 K1_MFMA')

    hw = sWave
    vXo, vWo = 4, 8
    vXr = 12
    vWr = 14
    vS1, vS2, vCS = 16, 20, 24
    vFx, vFw = 28, 44
    t0, t1, t2, t3 = 60, 61, 62, 63
    kP = 64
    sD = 50
    A(f'''s_lshr_b32 s{sT0}, s{hw}, 1
    s_lshl_b32 s{sD}, s2, 1
    s_add_u32 s{sD}, s{sD}, s{sT0}
    s_and_b32 s{sT1}, s{hw}, 1
    s_lshl_b32 s{sT1}, s{sT1}, 7
    s_lshl_b32 s{sT0}, s{sD}, 8
    s_add_u32 s{sT0}, s{sT0}, s{sT1}
    v_lshl_add_u32 v{t0}, v1, 1, s{sT0}
    v_xor_b32 v{t1}, 128, v{t0}
    s_lshl_b32 s{sT0}, s{sD}, 1
    v_mov_b32 v{t2}, s{sT0}
    global_load_ushort v{kP+6}, v{t2}, s[26:27]
    global_load_ushort v{kP+0}, v{t0}, s[18:19]
    global_load_ushort v{kP+1}, v{t0}, s[20:21]
    global_load_ushort v{kP+2}, v{t0}, s[22:23]
    global_load_ushort v{kP+3}, v{t0}, s[24:25]
    global_load_ushort v{kP+4}, v{t1}, s[22:23]
    global_load_ushort v{kP+5}, v{t1}, s[24:25]''')
    A(f'''v_lshrrev_b32 v{t0}, 3, v1
    v_lshrrev_b32 v{t1}, 4, v1
    v_and_b32 v{t2}, 7, v1
    v_xor_b32 v{t2}, v{t2}, v{t1}
    v_lshlrev_b32 v{t2}, 4, v{t2}
    v_lshl_add_u32 v{vXo}, v{t0}, 10, v{t2}
    v_xor_b32 v{t3}, 64, v{vXo}
    v_add_u32 v{vXo+1}, 7168, v{t3}
    v_add_u32 v{vXo+2}, 14336, v{vXo}
    v_add_u32 v{vXo+3}, 21504, v{t3}''')
    for half in range(2):
        A(f'''v_bfe_u32 v{t0}, v1, 1, 3
        v_xor_b32 v{t0}, v{t0}, v{t1}
        v_xor_b32 v{t0}, {4*half}, v{t0}
        v_and_b32 v{t2}, 1, v1
        v_lshl_add_u32 v{t2}, v{t0}, 1, v{t2}
        s_lshl_b32 s{sT0}, s{sOdd}, 1
        v_add_u32 v{t2}, s{sT0}, v{t2}
        v_subrev_u32 v{t3}, 14, v{t2}
        v_cmp_gt_u32 vcc, 14, v{t2}
        v_cndmask_b32 v{t2}, v{t3}, v{t2}, vcc
        v_lshlrev_b32 v{t2}, 4, v{t2}
        v_mul_u32_u24 v{t3}, 3584, v{t1}
        v_add_u32 v{t2}, v{t2}, v{t3}
        v_mov_b32 v{t3}, 0x7f000000
        v_cmp_eq_u32 vcc, 7, v{t0}
        v_cndmask_b32 v{t2}, v{t2}, v{t3}, vcc
        v_add_u32 v{vWo+2*half}, {(2*half)*13312}, v{t2}
        v_add_u32 v{vWo+2*half+1}, {(2*half+1)*13312}, v{t2}''')
    sXb, sWb, sLb, sC = 52, 53, 54, 55
    A(f'''s_lshl_b32 s{sXb}, s{sRB}, 17
    s_lshl_b32 s{sT0}, s{hw}, 15
    s_add_u32 s{sXb}, s{sXb}, s{sT0}
    s_mul_i32 s{sWb}, s{hw}, {16*3584}
    s_mul_i32 s{sT0}, s{sCB}, 224
    s_add_u32 s{sWb}, s{sWb}, s{sT0}
    s_lshl_b32 s{sLb}, s{hw}, 12''')
    def dma(st):
        slot = st & 3
        L = [f's_add_u32 s{sC}, s{sCh0}, {st+1}', f's_and_b32 s{sC}, s{sC}, 7',
             f's_lshl_b32 s{sT0}, s{sC}, 7', f's_add_u32 s{sT0}, s{sT0}, s{sXb}',
             f's_add_u32 m0, s{sLb}, {LX + slot*16384}',
             f's_mul_i32 s{sT1}, s{sC}, {64*3584}', f's_add_u32 s{sT1}, s{sT1}, s{sWb}']
        for i in range(4): L.append(f'buffer_load_dwordx4 v{vXo+i}, s[{sX}:{sX+3}], s{sT0} offen offset:{1024*i} lds')
        L.append(f's_add_u32 m0, s{sLb}, {LW + slot*16384}')
        for i in range(4): L.append(f'buffer_load_dwordx4 v{vWo+i}, s[{sW1}:{sW1+3}], s{sT1} offen offset:{1024*i} lds')
        A('\n'.join(L))
    for st in range(4): dma(st)
    def x_read_addr(A, vXr, sw, t0, t1, t2):
        A(f'''v_and_b32 v{t0}, 15, v1
        v_lshrrev_b32 v{t1}, 4, v1
        v_lshrrev_b32 v{t2}, 1, v{t0}
        v_xor_b32 v{t2}, v{t2}, v{t1}
        v_lshlrev_b32 v{t2}, 4, v{t2}
        v_lshl_add_u32 v{t2}, v{t0}, 7, v{t2}
        s_lshl_b32 s{sT0}, s{sw}, 12
        v_add_u32 v{vXr}, s{sT0}, v{t2}
        v_xor_b32 v{vXr+1}, 64, v{vXr}''')
    def w_read_base(A, dst, g, t0, t1):
        A(f'''v_lshrrev_b32 v{t0}, 4, v1
        v_bfe_u32 v{t1}, v1, 2, 2
        v_and_b32 v{g}, 1, v{t0}
        v_lshl_or_b32 v{g}, v{g}, 2, v{t1}
        v_lshl_add_u32 v{t0}, v{t0}, 3, v{t1}
        v_and_b32 v{t1}, 3, v1
        v_lshlrev_b32 v{t1}, 3, v{t1}
        v_lshl_add_u32 v{dst}, v{t0}, 8, v{t1}
        v_add_u32 v{dst}, {LW}, v{dst}''')
    x_read_addr(A, vXr, hw, t0, t1, t2)
    w_read_base(A, t3, t2, t0, t1)
    A(f'''s_lshl_b32 s{sT0}, s{hw}, 1
    v_xor_b32 v{t0}, s{sT0}, v{t2}
    v_lshl_add_u32 v{vWr}, v{t0}, 5, v{t3}
    v_xor_b32 v{vWr+1}, 32, v{vWr}''')
    for i in range(12): A(f'v_mov_b32 v{vS1+i}, 0')

    kg = kgen_pieces(sWave, sD, sWS, sT0, sT1, kP)
    sched = cfg.get('kg_sched', [len(kg['pre'])] + [0] * 8)
    pre = kg['pre']; pos = 0
    def kg_run(n):
        nonlocal pos
        A('\n'.join(pre[pos:pos + n])) if n else None
        pos += n
    A('s_waitcnt vmcnt(32)')
    kg_run(sched[0])
    waits = [24, 16, 16, 16, 16, 16, 8, 0]
    KG_POST_AT = cfg.get('kg_post_at', 6)
    for st in range(8):
        slot = st & 3
        A(f's_waitcnt vmcnt({waits[st]}) lgkmcnt(0)\ns_barrier')
        if 1 <= st <= 4: dma(st + 3)
        L = []
        for kap in range(2):
            for q in range(2):
                L.append(f'ds_read_b128 {v(vFx+8*kap+4*q,4)}, v{vXr+kap} offset:{LX+slot*16384+q*2048}')
        for e in range(2):
            for kap in range(2):
                for hh in range(2):
                    L.append(f'ds_read_b64_tr_b16 {v(vFw+8*e+4*kap+2*hh,2)}, v{vWr+e} offset:{slot*16384+kap*8192+hh*1024}')
        A('\n'.join(L))
        A('s_waitcnt lgkmcnt(8)')
        L = []
        for kap in range(2):
            for j in range(4):
                for q in range(2):
                    r = vFx + 8 * kap + 4 * q + j
                    L.append(f'v_dot2c_f32_bf16 v{vS1+2*q+(j&1)}, s{sOnes}, v{r}')
                    L.append(f'v_dot2c_f32_bf16 v{vS2+2*q+(j&1)}, v{r}, v{r}')
        A('\n'.join(L))
        A('s_waitcnt lgkmcnt(0)')
        L = []
        for j in range(8):
            for e in range(2):
                L.append(f'v_dot2c_f32_bf16 v{vCS+2*e+(j&1)}, s{sOnes}, v{vFw+8*e+j}')
        A('\n'.join(L))
        if st < 7: kg_run(sched[st + 1])
        if st == KG_POST_AT:
            assert pos == len(pre)
            A(f's_bitcmp1_b32 s{hw}, 0')
            A.fwd_branch('s_cbranch_scc1 K1_KG_SKIP')
            A('\n'.join(kg['post']))
            A.label('K1_KG_SKIP')
    R = [28 + i for i in range(6)]; T = [36 + i for i in range(6)]
    for i in range(6): A(f'v_add_f32 v{R[i]}, v{vS1+2*i}, v{vS1+2*i+1}')
    for op in ('v_permlane32_swap_b32', 'v_permlane16_swap_b32'):
        for i in range(6): A(f'v_mov_b32 v{T[i]}, v{R[i]}')
        for i in range(6): A(f'{op} v{R[i]}, v{T[i]}')
        for i in range(6): A(f'v_add_f32 v{R[i]}, v{R[i]}, v{T[i]}')
    A(f'''v_and_b32 v{t0}, 15, v1
    s_lshl_b32 s{sT0}, s{hw}, 7
    v_lshl_add_u32 v{t1}, v{t0}, 2, s{sT0}
    ds_write_b32 v{t1}, v{R[4]} offset:{LCS}
    ds_write_b32 v{t1}, v{R[5]} offset:{LCS+64}''')
    for q in range(2):
        m, e2, a, b = 44 + 8 * q, 45 + 8 * q, 46 + 8 * q, 47 + 8 * q
        A(f'''v_mul_f32 v{m}, {f32(1/512)}, v{R[q]}
        v_mul_f32 v{e2}, {f32(1/512)}, v{R[2+q]}
        v_fma_f32 v{e2}, -v{m}, v{m}, v{e2}
        v_max_f32 v{e2}, 0, v{e2}''')
        A('\n'.join(bf16r(e2, e2) + bf16r(m, m)))
        A(f'v_add_f32 v{e2}, {f32(1e-5)}, v{e2}')
        A('\n'.join(bf16r(e2, e2)))
        A(f'v_sqrt_f32 v{e2}, v{e2}')
        A('\n'.join(bf16r(e2, e2)))
        A(f'''v_rcp_f32 v{a}, v{e2}
        v_mul_f32 v{b}, -v{m}, v{a}''' .replace('v_mul_f32', 'v_mul_f32_e64'))
    A(f'''s_lshl_b32 s{sT0}, s{hw}, 8
    v_lshl_add_u32 v{t1}, v{t0}, 3, s{sT0}
    ds_write_b64 v{t1}, v[46:47] offset:{LSTAT}
    ds_write_b64 v{t1}, v[54:55] offset:{LSTAT+128}
    s_waitcnt lgkmcnt(0)
    s_barrier''')
    xs = 64; ab = 80
    A(f'''v_lshrrev_b32 v{t0}, 4, v1
    v_bfe_u32 v{t1}, v1, 2, 2
    v_lshl_add_u32 v{t1}, v{t0}, 3, v{t1}
    v_bfe_u32 v{t2}, v1, 1, 1
    s_lshl_b32 s{sT0}, s{sOdd}, 2
    v_or_b32 v{t2}, s{sT0}, v{t2}
    v_bfe_u32 v{t3}, v{t1}, 1, 3
    v_xor_b32 v{t2}, v{t2}, v{t3}
    v_lshlrev_b32 v{t2}, 4, v{t2}
    v_lshl_add_u32 v{t2}, v{t1}, 7, v{t2}
    v_and_b32 v{t3}, 1, v1
    v_lshl_add_u32 v{t2}, v{t3}, 3, v{t2}
    v_add_u32 v{t2}, s{sLb}, v{t2}
    v_xor_b32 v{t3}, 32, v{t2}
    ds_read_b64_tr_b16 {v(xs,2)}, v{t2} offset:{LX+3*16384}
    ds_read_b64_tr_b16 {v(xs+2,2)}, v{t3} offset:{LX+3*16384+512}
    ds_read_b64_tr_b16 {v(xs+4,2)}, v{t3} offset:{LX+3*16384}
    ds_read_b64_tr_b16 {v(xs+6,2)}, v{t2} offset:{LX+3*16384+512}
    s_lshl_b32 s{sT0}, s{hw}, 8
    v_lshl_add_u32 v{t1}, v{t0}, 6, s{sT0}''')
    for i in range(4): A(f'ds_read_b128 {v(ab+4*i,4)}, v{t1} offset:{LSTAT+16*i}')
    A(f'''v_and_b32 v{t1}, 15, v1
    v_lshlrev_b32 v{t1}, 12, v{t1}
    v_lshl_add_u32 v{t1}, v{t0}, 4, v{t1}
    s_lshl_b32 s{sT0}, s{sCB}, 17
    s_lshl_b32 s{sT1}, s{sRB}, 8
    s_add_u32 s{sT0}, s{sT0}, s{sT1}
    s_lshl_b32 s{sT1}, s{hw}, 6
    s_add_u32 s{sT0}, s{sT0}, s{sT1}
    s_add_u32 s{sT0}, s{sT0}, {WS_XNT}
    s_add_u32 s{sT1}, s{sT0}, {16*4096}
    s_waitcnt lgkmcnt(0)''')
    for dt in range(2):
        o = 100 + 4 * dt
        for j in range(4):
            r = xs + 4 * dt + j
            A(f'''v_lshlrev_b32 v{t2}, 16, v{r}
            v_and_b32 v{t3}, 0xffff0000, v{r}
            v_fma_f32 v{t2}, v{t2}, v{ab+4*j}, v{ab+4*j+1}
            v_fma_f32 v{t3}, v{t3}, v{ab+4*j+2}, v{ab+4*j+3}
            v_cvt_pk_f16_f32 v{o+j}, v{t2}, v{t3}''')
        A(f'buffer_store_dwordx4 {v(o,4)}, v{t1}, s[{sWS}:{sWS+3}], s{sT0+dt} offen')
    A(f'''s_or_b32 s{sT0}, s2, s{hw}
    s_cmp_lg_u32 s{sT0}, 0''')
    A.fwd_branch('s_cbranch_scc1 K1_END')
    A(f'''v_mov_b32 v108, 0
    v_mov_b32 v109, 0
    v_mov_b32 v110, 0
    v_mov_b32 v111, 0
    v_lshlrev_b32 v{t0}, 4, v1
    s_mov_b32 s{sT0}, {WS_FLAG}
    buffer_store_dwordx4 v[108:111], v{t0}, s[{sWS}:{sWS+3}], s{sT0} offen
    s_endpgm''')

    A.label('K1_MFMA')
    mw = sWave
    A(f's_sub_u32 s{mw}, s{mw}, 4')
    vXr, vWr = 4, 6
    t0, t1, t2, t3 = 16, 17, 18, 19
    F = [20, 56]
    ACC = 92
    x_read_addr(A, vXr, mw, t0, t1, t2)
    w_read_base(A, t3, t2, t0, t1)
    for tau in range(7):
        A(f'v_xor_b32 v{t0}, {tau}, v{t2}\nv_lshl_add_u32 v{vWr+tau}, v{t0}, 5, v{t3}')
    for i in range(56): A(f'v_mov_b32 v{ACC+i}, 0')
    def reads(st, kap):
        slot = st & 3; f = F[kap]; L = []
        for q in range(2): L.append(f'ds_read_b128 {v(f+28+4*q,4)}, v{vXr+kap} offset:{LX+slot*16384+q*2048}')
        for tau in range(7):
            for hh in range(2):
                L.append(f'ds_read_b64_tr_b16 {v(f+4*tau+2*hh,2)}, v{vWr+tau} offset:{slot*16384+kap*8192+hh*1024}')
        A('\n'.join(L))
    def mfmas(kap):
        f = F[kap]; L = []
        for tau in range(7):
            for q in range(2):
                a = ACC + 8 * tau + 4 * q
                L.append(f'v_mfma_f32_16x16x32_bf16 {v(a,4)}, {v(f+4*tau,4)}, {v(f+28+4*q,4)}, {v(a,4)}')
        A('\n'.join(L))
    A('s_barrier')
    reads(0, 0)
    for st in range(8):
        reads(st, 1)
        A('s_waitcnt lgkmcnt(15)' if False else 's_waitcnt lgkmcnt(15)')
        mfmas(0)
        A('s_waitcnt lgkmcnt(0)')
        if st < 7:
            A('s_barrier'); reads(st + 1, 0)
        mfmas(1)
    A('s_barrier')
    ab = 20; cs = 24
    A(f'''v_and_b32 v{t0}, 15, v1
    s_lshl_b32 s{sT0}, s{mw}, 8
    v_lshl_add_u32 v{t1}, v{t0}, 3, s{sT0}
    ds_read_b64 {v(ab,2)}, v{t1} offset:{LSTAT}
    ds_read_b64 {v(ab+2,2)}, v{t1} offset:{LSTAT+128}
    v_lshrrev_b32 v{t0}, 4, v1
    v_lshlrev_b32 v{t0}, 4, v{t0}''')
    for tau in range(7): A(f'ds_read_b128 {v(cs+4*tau,4)}, v{t0} offset:{LCS+64*tau}')
    sHb, sHs = 52, 54
    A(f'''s_lshl_b32 s{sT0}, s{sRB}, 3
    s_lshl_b32 s{sT1}, s{mw}, 1
    s_add_u32 s{sT0}, s{sT0}, s{sT1}
    s_mul_i32 s{sT0}, s{sT0}, 56
    s_mul_i32 s{sT1}, s{sCh0}, 7
    s_add_u32 s{sT0}, s{sT0}, s{sT1}
    s_lshl_b32 s{sT0}, s{sT0}, 10
    s_lshl_b32 s{sT1}, s{sOdd}, 12
    s_add_u32 s{sHb}, s{sT0}, s{sT1}
    s_add_u32 s{sHb+1}, s{sHb}, {56*1024}
    s_lshl_b32 s{sT1}, s{sOdd}, 3
    s_add_u32 s{sHs}, s{sT0}, s{sT1}
    s_add_u32 s{sHs}, s{sHs}, 3072
    s_add_u32 s{sHs+1}, s{sHs}, {56*1024}
    v_lshlrev_b32 v{t1}, 4, v1
    s_mov_b32 s56, {NLOG2E}
    s_mov_b32 s57, {NLOG2E}
    s_waitcnt lgkmcnt(0)''')
    Z = 56; E = 64; O = [72, 76, 80, 84]
    oi = 0
    for q in range(2):
        for grp in range(4):
            taus = [2 * grp, 2 * grp + 1] if grp < 3 else [6]
            o = O[oi & 3]; oi += 1
            prs = [(tau, p) for tau in taus for p in range(2)]
            for n, (tau, p) in enumerate(prs):
                a = ACC + 8 * tau + 4 * q + 2 * p; c = cs + 4 * tau + 2 * p
                A(f'''v_pk_mul_f32 {v(Z+2*n,2)}, {v(c,2)}, {v(ab+2*q,2)} op_sel:[0,1] op_sel_hi:[1,1]
                v_pk_fma_f32 {v(Z+2*n,2)}, {v(a,2)}, {v(ab+2*q,2)}, {v(Z+2*n,2)} op_sel:[0,0,0] op_sel_hi:[1,0,1]
                v_pk_mul_f32 {v(E+2*n,2)}, {v(Z+2*n,2)}, s[56:57]''')
            for n in range(2 * len(prs)): A(f'v_exp_f32 v{E+n}, v{E+n}')
            for n in range(len(prs)): A(f'v_pk_add_f32 {v(E+2*n,2)}, {v(E+2*n,2)}, 1.0 op_sel_hi:[1,0]')
            for n in range(2 * len(prs)): A(f'v_rcp_f32 v{E+n}, v{E+n}')
            for n in range(len(prs)): A(f'v_pk_mul_f32 {v(Z+2*n,2)}, {v(Z+2*n,2)}, {v(E+2*n,2)}')
            for n in range(len(prs)): A(f'v_cvt_pk_bf16_f32 v{o+n}, v{Z+2*n}, v{Z+2*n+1}')
            if grp < 3: A(f'buffer_store_dwordx4 {v(o,4)}, v{t1}, s[{sWS}:{sWS+3}], s{sHb+q} offen offset:{1024*grp}')
            else: A(f'buffer_store_dwordx2 {v(o,2)}, v{t1}, s[{sWS}:{sWS+3}], s{sHs+q} offen')
    A.label('K1_END', fence=False)
    A('s_endpgm')
    return kd('k1_kernel', 160)

def kgen_pieces(hw, sD, sWS, sT0, sT1, kP):
    L = []
    lar, aim, cre, cim, cre2, cim2, ldt = [kP + i for i in range(7)]
    dt, a1, w1, ys, t0, t1, t2 = 72, 73, 74, 75, 76, 77, 78
    C = 80; F1, F2, F4, F8, F256, G8, G16 = 82, 84, 86, 88, 90, 92, 94
    X = [96, 98, 100, 102]
    P = [104, 105, 106, 107]
    WA = 108
    FB = 124
    RA = 64
    for r in range(7): L.append(f'v_lshlrev_b32 v{kP+r}, 16, v{kP+r}')
    L += [f'v_mul_f32 v{dt}, {LOG2E}, v{ldt}', f'v_mul_f32 v{a1}, {LOG2E}, v{lar}', f'v_exp_f32 v{dt}, v{dt}', f'v_exp_f32 v{a1}, v{a1}']
    L += bf16r(dt, dt) + bf16r(a1, a1)
    L += [f'v_mul_f32 v{a1}, v{a1}, v{dt}', f'v_mul_f32 v{a1}, {NLOG2E}, v{a1}',
          f'v_mul_f32 v{w1}, v{aim}, v{dt}', f'v_mul_f32 v{w1}, {INV2PI}, v{w1}']
    L += [f'v_max3_f32 v{t0}, |v{cre}|, |v{cim}|, |v{cre2}|', f'v_max_f32_e64 v{t0}, v{t0}, |v{cim2}|']
    for r in (1, 2, 4, 8): L.append(f'v_max_f32_dpp v{t0}, v{t0}, v{t0} row_ror:{r} row_mask:0xf bank_mask:0xf')
    for op in ('v_permlane16_swap_b32', 'v_permlane32_swap_b32'):
        L += [f'v_mov_b32 v{t1}, v{t0}', f'{op} v{t0}, v{t1}', f'v_max_f32 v{t0}, v{t0}, v{t1}']
    L += [f'v_lshrrev_b32 v{t0}, 23, v{t0}', f'v_min_u32 v{t0}, 253, v{t0}', f'v_sub_u32 v{t1}, 254, v{t0}',
          f'v_lshlrev_b32 v{t1}, 23, v{t1}', f'v_lshlrev_b32 v{t0}, 23, v{t0}',
          f'v_mul_f32 v{C}, v{cre}, v{t1}', f'v_mul_f32 v{C+1}, v{cim}, v{t1}',
          f'v_mul_f32 v{ys}, v{t0}, v{dt}', f'v_add_f32 v{ys}, v{ys}, v{ys}']
    def direct(d, pos):
        return [f'v_mul_f32 v{t0}, {f32(pos)}, v{a1}', f'v_mul_f32 v{t1}, {f32(pos)}, v{w1}', f'v_exp_f32 v{t0}, v{t0}', f'v_fract_f32 v{t1}, v{t1}',
                f'v_cos_f32 v{d}, v{t1}', f'v_sin_f32 v{d+1}, v{t1}', f'v_mul_f32 v{d}, v{d}, v{t0}', f'v_mul_f32 v{d+1}, v{d+1}, v{t0}']
    L += direct(F8, 8.0) + direct(F1, 1.0) + direct(F256, 256.0)
    L += [f'v_mov_b32 v{G8}, v{F8}', f'v_xor_b32 v{G8+1}, 0x80000000, v{F8+1}']
    L += cmul(G16, G8, G8) + cmul(F2, F1, F1) + cmul(F4, F2, F2)
    L += [f's_lshl_b32 s{sT0}, s{hw}, 13', f's_add_u32 s{sT0}, s{sT0}, {LKG}', f'v_lshl_add_u32 v{WA}, v1, 2, s{sT0}']
    for x in range(1, 16): L.append(f'v_xor_b32 v{WA+x}, {x*16}, v{WA}')
    def put(idx, src, pi):
        return [f'v_cvt_pk_f16_f32 v{P[pi&3]}, v{src}, v{src+1}', f'ds_write_b32 v{WA+(idx&15)}, v{P[pi&3]} offset:{idx*256}']
    def put2(idx, pi): return [f'ds_write_b32 v{WA+(idx&15)}, v{P[pi&3]} offset:{idx*256}']
    L += [f'v_mov_b32 v{P[0]}, 0x3c00'] + put2(0, 0) + put(1, G8, 1) + put(2, G16, 2)
    ev, od = G16, G8; pi = 3
    for j in range(3, 32):
        if j & 1:
            d = X[0] if od != X[0] else X[1]; L += cmul(d, od, G16); od = d
        else:
            d = X[2] if ev != X[2] else X[3]; L += cmul(d, ev, G16); ev = d
        L += put(j, d, pi); pi += 1
    L += [f'v_and_b32 v{t0}, 31, v1', f'v_lshrrev_b32 v{t1}, 5, v1', f'v_and_b32 v{t2}, 15, v1', f'v_xor_b32 v{t1}, v{t1}, v{t2}',
          f'v_lshlrev_b32 v{t1}, 4, v{t1}', f'v_lshl_add_u32 v{t1}, v{t0}, 8, v{t1}', f's_lshl_b32 s{sT0}, s{hw}, 13', f's_add_u32 s{sT0}, s{sT0}, {LKG}', f'v_add_u32 v{RA}, s{sT0}, v{t1}']
    for sg in range(1, 8): L.append(f'v_xor_b32 v{RA+sg}, {sg*32}, v{RA}')
    for sg in range(8): L.append(f'ds_read_b128 {v(FB+4*sg,4)}, v{RA+sg}')
    def ridx(rho, hf): return 8 * (rho >> 2) + 4 * hf + (rho & 3)
    L += put(ridx(0, 0), C, pi); pi += 1
    cur = C
    Bc = X[3]; Bn = X[2]
    L += cmul(Bc, C, F256)
    for e in range(1, 8):
        d = X[0] if cur != X[0] else X[1]; L += cmul(d, cur, F1); cur = d
        L += put(ridx(e, 0), d, pi); pi += 1
    L += put(ridx(0, 1), Bc, pi) + put2(ridx(1, 1), pi); pi += 1
    cur = Bc
    for k, rhos in enumerate([[2], [3, 4, 5], [6], [7]]):
        d = X[0] if cur != X[0] else X[1]; L += cmul(d, cur, F2); cur = d
        L += put(ridx(rhos[0], 1), d, pi)
        for r in rhos[1:]: L += put2(ridx(r, 1), pi)
        pi += 1
    for hf in range(2):
        L += cmul(Bn, Bc, F256); Bc, Bn = Bn, Bc
        L += put(ridx(8, hf), Bc, pi); pi += 1
        L += cmul(X[0], Bc, F4) + put(ridx(9, hf), X[0], pi); pi += 1
        L += cmul(X[1], Bc, F8) + put(ridx(10, hf), X[1], pi); pi += 1
    for sp in range(4):
        rho = 11 + 2 * (sp >> 1); hf = sp & 1
        L += cmul(Bn, Bc, F256); Bc, Bn = Bn, Bc
        L += put(ridx(rho, hf), Bc, pi); pi += 1
        L += cmul(X[sp & 1], Bc, F8) + put(ridx(rho + 1, hf), X[sp & 1], pi); pi += 1
    FA = 76
    for sg in range(8): L.append(f'ds_read_b128 {v(FA+4*sg,4)}, v{RA+sg}')
    D = 108
    L.append('s_waitcnt lgkmcnt(0)')
    for sg in range(8):
        L.append(f'v_mfma_f32_32x32x16_f16 {v(D,16)}, {v(FA+4*sg,4)}, {v(FB+4*sg,4)}, {"0" if sg == 0 else v(D,16)}')
    L += [f's_lshl_b32 s{sT0}, s{hw}, 13', f's_add_u32 s{sT0}, s{sT0}, {LKG}', f'v_lshl_add_u32 v{RA}, v1, 4, s{sT0}']
    for i in range(4): L.append(f'ds_write_b128 v{RA}, {v(D+4*i,4)} offset:{1024*i}')
    Q = []
    for i in range(4): Q.append(f'ds_read_b128 {v(FB+4*i,4)}, v{RA} offset:{8192+1024*i}')
    Q += [f's_mul_i32 s{sT0}, s{sD}, {KE_PITCH}', f's_add_u32 s{sT0}, s{sT0}, {WS_KE}',
          f'v_lshlrev_b32 v{RA+1}, 4, v1', f'v_sub_u32 v{RA+2}, 1008, v{RA+1}', f'v_and_b32 v{RA+3}, 1, v1', f'v_cmp_eq_u32 vcc, 1, v{RA+3}',
          's_waitcnt lgkmcnt(0)']
    for i in range(0, 16, 2): Q.append(f'v_pk_add_f32 {v(D+i,2)}, {v(D+i,2)}, {v(FB+i,2)}')
    O = 76
    def pk(d, a, b): return f'v_cvt_pk_f16_f32 v{d}, v{a}, v{b}'
    Q += [pk(O, D+7, D+6), pk(O+1, D+5, D+4), pk(O+2, D+3, D+2), pk(O+3, D+1, D+0)]
    Q += [pk(O+4, D+10, D+10), pk(O+5, D+9, D+9), pk(O+6, D+9, D+8), pk(O+7, D+8, D+8)]
    for c in range(2):
        lo, hi = D + 11 + 2 * c, D + 12 + 2 * c; o = O + 8 + 4 * c
        Q += [f'v_cndmask_b32 v{RA+4}, v{lo}, v{hi}, vcc', pk(o, hi, hi), pk(o+1, hi, RA+4), pk(o+2, lo, lo), pk(o+3, lo, lo)]
    for c in range(4): Q.append(f'buffer_store_dwordx4 {v(O+4*c,4)}, v{RA+2}, s[{sWS}:{sWS+3}], s{sT0} offen offset:{1024*(3-c)}')
    Q += [f'v_cmp_eq_u32 vcc, 4, v1', f'v_mov_b32 v{O+17}, 0', f'v_mov_b32 v{O+18}, 0', f'v_mov_b32 v{O+19}, 0', f'v_cndmask_b32 v{O+16}, 0, v{ys}, vcc',
          f's_add_u32 s{sT0}, s{sT0}, 4096', 's_mov_b64 exec, 0x1f',
          f'buffer_store_dwordx4 {v(O+16,4)}, v{RA+1}, s[{sWS}:{sWS+3}], s{sT0} offen', 's_mov_b64 exec, -1']
    return dict(pre=L, post=Q)

def build(cfg, kernels):
    A = Asm()
    head = open('cdna_kernels/%s.s.ref' % NAME).read().split('; Override')[0]
    launches = []
    kds = []
    A.raw('.amdgcn_target "amdgcn-amd-amdhsa--gfx950"\n.text')
    for k in kernels:
        fn, nm, grid, block, lds = k
        kds.append(fn(A, cfg))
        launches.append(f'; @launch kernel={nm} grid=({grid},1,1) block=({block},1,1) lds={lds}')
    txt = head + '\n'.join(launches) + '\n' + A.text() + '.section .rodata,"a"\n' + ''.join('.p2align 6\n' + k for k in kds)
    return txt

if __name__ == '__main__':
    out = sys.argv[1]
    ks = [(gen_k1, 'k1_kernel', 256, 512, 163840)]
    try:
        from gen2 import gen_k2, K2_LDS
        ks.append((gen_k2, 'k2_kernel', 256, 512, K2_LDS))
    except ImportError:
        pass
    open(out, 'w').write(build({}, ks))
```

```python
import sys, math, struct
from asmlib import Asm
NAME = "recurrent_scan__ssm_conv_s4d__dense_activation_silu__prompt"

def f32(x): return '0x%08x' % struct.unpack('<I', struct.pack('<f', x))[0]
LOG2E = f32(math.log2(math.e)); NLOG2E = f32(-math.log2(math.e)); INV2PI = f32(1 / (2 * math.pi))

WS_H = 0
WS_XNT = 0x800000
WS_KE = 0xA00000; KE_PITCH = 4224
WS_SP = 0xD00000
WS_FLAG = 0xF00000
WS_SIZE = 0x1000000

def v(i, n=1): return 'v%d' % i if n == 1 else 'v[%d:%d]' % (i, i + n - 1)
def s(i, n=1): return 's%d' % i if n == 1 else 's[%d:%d]' % (i, i + n - 1)

def srd(A, d, base, nbytes):
    A(f's_mov_b32 s{d}, s{base}\ns_and_b32 s{d+1}, s{base+1}, 0xffff\ns_mov_b32 s{d+2}, {hex(nbytes)}\ns_mov_b32 s{d+3}, 0x00020000')

def kernel_head(A, name):
    A.raw(f'.p2align 8\n.globl {name}\n.type {name},@function\n{name}:')
    A.hist = []

def kd(name, vgpr, sgpr=100, accum=None):
    accum = accum or ((vgpr + 3) // 4 * 4)
    return f'''.amdhsa_kernel {name}
  .amdhsa_next_free_vgpr {vgpr}
  .amdhsa_next_free_sgpr {sgpr}
  .amdhsa_accum_offset {accum}
  .amdhsa_group_segment_fixed_size 0
  .amdhsa_kernarg_size 104
  .amdhsa_user_sgpr_count 2
  .amdhsa_user_sgpr_kernarg_segment_ptr 1
  .amdhsa_system_sgpr_workgroup_id_x 1
.end_amdhsa_kernel
'''

def cmul(d, a, b):
    return [f'v_pk_mul_f32 {v(d,2)}, {v(a,2)}, {v(b,2)} op_sel:[0,0] op_sel_hi:[0,1]',
            f'v_pk_fma_f32 {v(d,2)}, {v(a,2)}, {v(b,2)}, {v(d,2)} op_sel:[1,1,0] op_sel_hi:[1,0,1] neg_lo:[1,0,0]']

def bf16r(d, src):
    return [f'v_cvt_pk_bf16_f32 {v(d)}, {v(src)}, {v(src)}', f'v_lshlrev_b32 {v(d)}, 16, {v(d)}']

WS_STAMP = 0xF10000
class Stamps:
    def __init__(self, A, on, kidx): self.A, self.on, self.k, self.n = A, on, kidx, 0
    def start(self):
        if self.on: self.A('s_memrealtime s[60:61]\ns_memtime s[62:63]')
    def __call__(self, i):
        if self.on: self.A(f's_memtime s[{62+2*i}:{63+2*i}]')
    def dump(self, sWS, vt, vo, n=16):
        if not self.on: return
        A = self.A
        A('s_memrealtime s[94:95]\ns_waitcnt lgkmcnt(0)')
        for i in range(n + 2): A(f'v_writelane_b32 v{vt}, s{60+2*i}, {i}')
        A(f'''v_lshrrev_b32 v{vo}, 6, v0
        v_lshlrev_b32 v{vo}, 7, v{vo}
        v_and_b32 v{vo+1}, 63, v0
        v_lshl_add_u32 v{vo}, v{vo+1}, 2, v{vo}
        s_lshl_b32 s60, s2, 10
        s_add_u32 s60, s60, {WS_STAMP + self.k * 0x40000}
        s_mov_b64 exec, 0x3ffff
        buffer_store_dword v{vt}, v{vo}, s[{sWS}:{sWS+3}], s60 offen
        s_mov_b64 exec, -1''')

LX, LW, LKG = 0, 65536, 131072
LSTAT = LKG + 4096
LCSP = LKG + 4096 + 1024
LCS = LCSP + 2048
ST1 = ' sc1'

def interleave(*lists):
    out = []; n = max(len(l) for l in lists)
    for i in range(n):
        for l in lists:
            if i < len(l): out.append(l[i])
    return out

def gen_k1(A, cfg):
    kernel_head(A, 'k1_kernel')
    sX, sW1, sWS = 4, 8, 12
    sW1p, sWSp = 32, 36
    sWave, sRB, sCB, sT0, sT1, sT2, sOdd, sCh0, sOnes, sHalf, sDP = 40, 41, 42, 43, 44, 45, 46, 47, 48, 49, 51
    A("""s_cmp_ge_u32 s2, 256
    s_cbranch_scc1 K1_END""")
    ST = Stamps(A, cfg.get('stamps'), 0); ST.start()
    if cfg.get('cpf', 1):
        A('s_getpc_b64 s[56:57]')
        A.raw('K1_PC0:')
        A(f"""v_lshlrev_b32 v2, 7, v0
        v_cmp_gt_u32 vcc, K2_CODE_END-K1_PC0, v2
        s_and_saveexec_b64 s[58:59], vcc
        s_cbranch_execz K1_NOCPF
        global_load_dword v159, v2, s[56:57]""")
        A.label('K1_NOCPF', fence=False)
        A('s_mov_b64 exec, -1')
    A(f"""s_load_dwordx8 s[16:23], s[0:1], 0
    s_load_dwordx4 s[24:27], s[0:1], 32
    s_load_dwordx2 s[28:29], s[0:1], 48
    s_load_dwordx2 s[38:39], s[0:1], 80
    s_load_dwordx4 s[{sW1p}:{sW1p+3}], s[0:1], 64
    s_load_dwordx2 s[{sWSp}:{sWSp+1}], s[0:1], 96
    v_lshrrev_b32 v2, 6, v0
    v_and_b32 v1, 63, v0
    v_readfirstlane_b32 s{sWave}, v2
    s_bfe_u32 s{sT0}, s2, 0x20001
    s_lshl_b32 s{sT0}, s{sT0}, 2
    s_bfe_u32 s{sT1}, s2, 0x20003
    s_add_u32 s{sRB}, s{sT0}, s{sT1}
    s_and_b32 s{sHalf}, s2, 1
    s_lshl_b32 s{sT0}, s{sHalf}, 3
    s_lshr_b32 s{sT2}, s2, 5
    s_add_u32 s{sCB}, s{sT0}, s{sT2}
    s_lshl_b32 s{sT1}, s{sT1}, 1
    s_add_u32 s{sCh0}, s{sT1}, s{sT2}
    s_and_b32 s{sOdd}, s{sCB}, 1
    s_mov_b32 s{sOnes}, 0x3f803f80
    s_and_b32 s{sDP}, s2, 7
    s_lshl_b32 s{sDP}, s{sDP}, 5
    s_lshr_b32 s{sT0}, s2, 3
    s_add_u32 s{sDP}, s{sDP}, s{sT0}
    s_cmp_ge_u32 s{sWave}, 4""")
    A.fwd_branch('s_cbranch_scc1 K1_MFMA')

    def x_read_addr(A, vXr, sw, t0, t1, t2):
        A(f"""v_and_b32 v{t0}, 15, v1
        v_lshrrev_b32 v{t1}, 4, v1
        v_lshrrev_b32 v{t2}, 1, v{t0}
        v_xor_b32 v{t2}, v{t2}, v{t1}
        v_lshlrev_b32 v{t2}, 4, v{t2}
        v_lshl_add_u32 v{t2}, v{t0}, 7, v{t2}
        s_lshl_b32 s{sT0}, s{sw}, 12
        v_add_u32 v{vXr}, s{sT0}, v{t2}
        v_xor_b32 v{vXr+1}, 64, v{vXr}""")

    hw = sWave
    vXo, vWo = 4, 8
    vXr = 12; vWr = 14
    vOne = 24
    vS1, vS2, vCS = 28, 36, 44
    vFx, vFw = 80, 96
    t0, t1, t2, t3 = 72, 73, 74, 75
    A(f"""v_lshrrev_b32 v{t0}, 3, v1
    v_lshrrev_b32 v{t1}, 4, v1
    v_and_b32 v{t2}, 7, v1
    v_xor_b32 v{t2}, v{t2}, v{t1}
    v_lshlrev_b32 v{t2}, 4, v{t2}
    v_lshl_add_u32 v{vXo}, v{t0}, 10, v{t2}
    v_xor_b32 v{t3}, 64, v{vXo}
    v_add_u32 v{vXo+1}, 7168, v{t3}
    v_add_u32 v{vXo+2}, 14336, v{vXo}
    v_add_u32 v{vXo+3}, 21504, v{t3}""")
    for half in range(2):
        A(f"""v_bfe_u32 v{t0}, v1, 1, 3
        v_xor_b32 v{t0}, v{t0}, v{t1}
        v_xor_b32 v{t0}, {4*half}, v{t0}
        v_and_b32 v{t2}, 1, v1
        v_lshl_add_u32 v{t2}, v{t0}, 1, v{t2}
        s_lshl_b32 s{sT0}, s{sOdd}, 1
        v_add_u32 v{t2}, s{sT0}, v{t2}
        v_subrev_u32 v{t3}, 14, v{t2}
        v_cmp_gt_u32 vcc, 14, v{t2}
        v_cndmask_b32 v{t2}, v{t3}, v{t2}, vcc
        v_lshlrev_b32 v{t2}, 4, v{t2}
        v_mul_u32_u24 v{t3}, 3584, v{t1}
        v_add_u32 v{t2}, v{t2}, v{t3}
        v_mov_b32 v{t3}, 0x7f000000
        v_cmp_eq_u32 vcc, 7, v{t0}
        v_cndmask_b32 v{t2}, v{t2}, v{t3}, vcc
        v_add_u32 v{vWo+2*half}, {(2*half)*13312}, v{t2}
        v_add_u32 v{vWo+2*half+1}, {(2*half+1)*13312}, v{t2}""")
    sXb, sWb, sLb, sC = 52, 53, 54, 55
    A(f"""s_lshl_b32 s{sXb}, s{sRB}, 17
    s_lshl_b32 s{sT0}, s{hw}, 15
    s_add_u32 s{sXb}, s{sXb}, s{sT0}
    s_mul_i32 s{sWb}, s{hw}, {16*3584}
    s_mul_i32 s{sT0}, s{sCB}, 224
    s_add_u32 s{sWb}, s{sWb}, s{sT0}
    s_lshl_b32 s{sLb}, s{hw}, 12
    s_waitcnt lgkmcnt(0)""")
    srd(A, sX, 16, 2048 * 1024); srd(A, sW1, sW1p, 512 * 3584); srd(A, sWS, sWSp, WS_SIZE)
    ST(1)
    def dma(st):
        slot = st & 3
        L = [f's_add_u32 s{sC}, s{sCh0}, {st}', f's_and_b32 s{sC}, s{sC}, 7',
             f's_lshl_b32 s{sT0}, s{sC}, 7', f's_add_u32 s{sT0}, s{sT0}, s{sXb}',
             f's_add_u32 m0, s{sLb}, {LX + slot*16384}',
             f's_mul_i32 s{sT1}, s{sC}, {64*3584}', f's_add_u32 s{sT1}, s{sT1}, s{sWb}']
        for i in range(4): L.append(f'buffer_load_dwordx4 v{vXo+i}, s[{sX}:{sX+3}], s{sT0} offen offset:{1024*i} lds')
        L.append(f's_add_u32 m0, s{sLb}, {LW + slot*16384}')
        for i in range(4): L.append(f'buffer_load_dwordx4 v{vWo+i}, s[{sW1}:{sW1+3}], s{sT1} offen offset:{1024*i} lds')
        A('\n'.join(L))
    dma(0); dma(1)
    x_read_addr(A, vXr, hw, t0, t1, t2)
    A(f"""v_bfe_u32 v{t0}, v1, 4, 1
    v_bfe_u32 v{t1}, v1, 2, 2
    v_lshl_or_b32 v{t2}, v{t0}, 2, v{t1}
    v_lshl_add_u32 v{t0}, v{t0}, 3, v{t1}
    v_lshrrev_b32 v{t1}, 5, v1
    v_lshl_add_u32 v{t0}, v{t1}, 2, v{t0}
    v_and_b32 v{t1}, 3, v1
    v_lshlrev_b32 v{t1}, 3, v{t1}
    v_lshl_add_u32 v{t3}, v{t0}, 8, v{t1}
    s_add_u32 s{sT0}, s{sLb}, {LW}
    v_add_u32 v{t3}, s{sT0}, v{t3}""")
    for P in range(7): A(f'v_xor_b32 v{t0}, {P}, v{t2}\nv_lshl_add_u32 v{vWr+P}, v{t0}, 5, v{t3}')
    for i in range(4): A(f'v_mov_b32 v{vOne+i}, s{sOnes}')
    dma(2); dma(3)
    ST(2)
    issued = [4, 0]
    def stats(st, mid=None):
        slot = st & 3
        A(f's_waitcnt vmcnt({8*(issued[0]-1-st)+issued[1]})')
        L = []
        for kap in range(2):
            for q in range(2):
                L.append(f'ds_read_b128 {v(vFx+8*kap+4*q,4)}, v{vXr+kap} offset:{LX+slot*16384+q*2048}')
        for P in range(7): L.append(f'ds_read_b64_tr_b16 {v(vFw+4*P+2*(st&1),2)}, v{vWr+P} offset:{slot*16384}')
        A('\n'.join(L))
        if mid: mid()
        for kap in range(2):
            for q in range(2):
                A(f's_waitcnt lgkmcnt({10-2*kap-q})')
                r = vFx + 8 * kap + 4 * q; z = st == 0 and kap == 0
                A(f'v_mfma_f32_16x16x32_bf16 {v(vS1+4*q,4)}, {v(vOne,4)}, {v(r,4)}, {"0" if z else v(vS1+4*q,4)}')
                A(f'v_mfma_f32_16x16x32_bf16 {v(vS2+4*q,4)}, {v(r,4)}, {v(r,4)}, {"0" if z else v(vS2+4*q,4)}')
        A('s_waitcnt lgkmcnt(0)')
        if st & 1:
            for P in range(7):
                A(f'v_mfma_f32_16x16x32_bf16 {v(vCS+4*P,4)}, {v(vFw+4*P,4)}, {v(vOne,4)}, {"0" if st == 1 else v(vCS+4*P,4)}')
    PRE = cfg.get('stats_pre', 3)
    for st in range(PRE): stats(st)
    ST(3)
    sdone = PRE
    def issue(st):
        if 1 <= st <= 4: dma(st + 3); issued[0] += 1
        if st == 4 and cfg.get('pf', 1):
            A(f"""s_lshr_b32 s{sT0}, s2, 3
            s_lshl_b32 s{sT0}, s{sT0}, 2
            s_add_u32 s{sT0}, s{sT0}, s{hw}
            s_mul_i32 s{sT0}, s{sT0}, {112*128}
            v_lshl_add_u32 v{t0}, v1, 7, s{sT0}
            v_add_u32 v{t1}, {48*128}, v{t0}
            global_load_dword v{156}, v{t0}, s[34:35]
            global_load_dword v{157}, v{t1}, s[34:35]""")
            issued[1] = 2
    for st in range(8):
        A('s_barrier')
        ST(5 + st)
        if st == 0:
            while sdone <= 3: stats(sdone); sdone += 1
        elif st == 1:
            A(f's_bitcmp1_b32 s{hw}, 0')
            A.fwd_branch('s_cbranch_scc1 K1_KG_SKIP')
            A('\n'.join(kgen_post(hw, sWS, sT0, sT1, sDP)))
            A.label('K1_KG_SKIP')
            issue(st)
        elif st == 2: issue(st)
        elif st <= 6:
            stats(st + 1, mid=lambda: issue(st)); sdone += 1
        if st == 6:
            assert sdone == 8
            A(f"""s_lshl_b32 s{sT0}, s{hw}, 9
            s_add_u32 s{sT0}, s{sT0}, {LCSP}
            v_add_u32 v{t1}, s{sT0}, v1
            s_mov_b32 s{sT0}, 0x00010001
            s_mov_b32 exec_lo, s{sT0}
            s_mov_b32 exec_hi, s{sT0}""")
            for P in range(7): A(f'ds_write_b128 v{t1}, {v(vCS+4*P,4)} offset:{64*P}')
            A('s_mov_b64 exec, -1\ns_waitcnt lgkmcnt(0)')
        if st == 7:
            A(f"""v_and_b32 v{t0}, 31, v1
            s_lshl_b32 s{sT0}, s{hw}, 7
            v_lshl_add_u32 v{t0}, v{t0}, 2, s{sT0}
            v_add_u32 v{t0}, {LCSP}, v{t0}""")
            for w in range(4): A(f'ds_read_b32 v{44+w}, v{t0} offset:{512*w}')
            A(f"""v_and_b32 v{t1}, 3, v1
            v_cmp_eq_u32 s[56:57], 1, v{t1}
            v_cmp_eq_u32 s[58:59], 2, v{t1}
            v_cmp_eq_u32 vcc, 3, v{t1}""")
            Ls = []
            for q in range(2):
                m, e2, a, b = 48 + 8 * q, 49 + 8 * q, 50 + 8 * q, 51 + 8 * q; S = vS2 + 4 * q
                Ls.append([f'v_cndmask_b32 v{e2}, v{S}, v{S+1}, s[56:57]', f'v_cndmask_b32 v{e2}, v{e2}, v{S+2}, s[58:59]', f'v_cndmask_b32 v{e2}, v{e2}, v{S+3}, vcc',
                           f'v_mul_f32 v{m}, {f32(1/512)}, v{vS1+4*q}', f'v_mul_f32 v{e2}, {f32(1/512)}, v{e2}',
                           f'v_fma_f32 v{e2}, -v{m}, v{m}, v{e2}', f'v_max_f32 v{e2}, 0, v{e2}'] + bf16r(e2, e2) + bf16r(m, m) +
                          [f'v_add_f32 v{e2}, {f32(1e-5)}, v{e2}'] + bf16r(e2, e2) + [f'v_sqrt_f32 v{e2}, v{e2}'] + bf16r(e2, e2) +
                          [f'v_rcp_f32 v{a}, v{e2}', f'v_mul_f32_e64 v{b}, -v{m}, v{a}'])
            A('\n'.join(interleave(*Ls)))
            A(f"""s_waitcnt lgkmcnt(0)
            v_add_f32 v44, v44, v45
            v_add_f32 v46, v46, v47
            v_add_f32 v44, v44, v46
            ds_write_b32 v{t0}, v44 offset:{LCS-LCSP}
            v_and_b32 v{t0}, 15, v1
            s_lshl_b32 s{sT0}, s{hw}, 8
            s_add_u32 s{sT0}, s{sT0}, {LSTAT}
            v_lshl_add_u32 v{t1}, v{t0}, 3, s{sT0}
            s_mov_b32 exec_lo, 0x00f0000f
            s_mov_b32 exec_hi, 0xf0000f00
            ds_write_b64 v{t1}, v[50:51]
            ds_write_b64 v{t1}, v[58:59] offset:128
            s_mov_b64 exec, -1
            s_waitcnt lgkmcnt(0)
            s_barrier""")
    ST(13)
    xs = 64 + 16; ab = 96
    A(f"""v_lshrrev_b32 v{t0}, 4, v1
    v_bfe_u32 v{t1}, v1, 2, 2
    v_lshl_add_u32 v{t1}, v{t0}, 3, v{t1}
    v_bfe_u32 v{t2}, v1, 1, 1
    s_lshl_b32 s{sT0}, s{sHalf}, 2
    v_or_b32 v{t2}, s{sT0}, v{t2}
    v_bfe_u32 v{t3}, v{t1}, 1, 3
    v_xor_b32 v{t2}, v{t2}, v{t3}
    v_lshlrev_b32 v{t2}, 4, v{t2}
    v_lshl_add_u32 v{t2}, v{t1}, 7, v{t2}
    v_and_b32 v{t3}, 1, v1
    v_lshl_add_u32 v{t2}, v{t3}, 3, v{t2}
    v_add_u32 v{t2}, s{sLb}, v{t2}
    v_xor_b32 v{t3}, 32, v{t2}
    ds_read_b64_tr_b16 {v(xs,2)}, v{t2} offset:{LX+3*16384}
    ds_read_b64_tr_b16 {v(xs+2,2)}, v{t3} offset:{LX+3*16384+512}
    ds_read_b64_tr_b16 {v(xs+4,2)}, v{t3} offset:{LX+3*16384}
    ds_read_b64_tr_b16 {v(xs+6,2)}, v{t2} offset:{LX+3*16384+512}
    s_lshl_b32 s{sT0}, s{hw}, 8
    s_add_u32 s{sT0}, s{sT0}, {LSTAT}
    v_lshl_add_u32 v{t1}, v{t0}, 6, s{sT0}""")
    for i in range(4): A(f'ds_read_b128 {v(ab+4*i,4)}, v{t1} offset:{16*i}')
    A(f"""v_lshlrev_b32 v{t1}, 4, v1
    s_add_u32 s{sC}, s{sCh0}, 7
    s_and_b32 s{sC}, s{sC}, 7
    s_lshl_b32 s{sC}, s{sC}, 1
    s_add_u32 s{sC}, s{sC}, s{sHalf}
    s_lshl_b32 s{sT0}, s{sC}, 17
    s_lshl_b32 s{sT1}, s{sRB}, 12
    s_add_u32 s{sT0}, s{sT0}, s{sT1}
    s_lshl_b32 s{sT1}, s{hw}, 10
    s_add_u32 s{sT0}, s{sT0}, s{sT1}
    s_add_u32 s{sT0}, s{sT0}, {WS_XNT}
    s_add_u32 s{sT1}, s{sT0}, {65536}
    s_waitcnt lgkmcnt(0)""")
    for dt in range(2):
        o = 112 + 4 * dt
        for j in range(4):
            r = xs + 4 * dt + j
            A(f"""v_lshlrev_b32 v{t2}, 16, v{r}
            v_and_b32 v{t3}, 0xffff0000, v{r}
            v_fma_f32 v{t2}, v{t2}, v{ab+4*j}, v{ab+4*j+1}
            v_fma_f32 v{t3}, v{t3}, v{ab+4*j+2}, v{ab+4*j+3}
            v_cvt_pk_f16_f32 v{o+j}, v{t2}, v{t3}""")
        A(f'buffer_store_dwordx4 {v(o,4)}, v{t1}, s[{sWS}:{sWS+3}], s{sT0+dt} offen{ST1}')
    ST(14)
    if cfg.get('stamps'): A('s_waitcnt vmcnt(0)')
    ST(15)
    ST.dump(sWS, 150, 151)
    A(f"""s_or_b32 s{sT0}, s2, s{hw}
    s_cmp_lg_u32 s{sT0}, 0""")
    A.fwd_branch('s_cbranch_scc1 K1_END')
    A(f"""v_mov_b32 v108, 0
    v_mov_b32 v109, 0
    v_mov_b32 v110, 0
    v_mov_b32 v111, 0
    v_lshlrev_b32 v{t0}, 4, v1
    s_mov_b32 s{sT0}, {WS_FLAG}
    buffer_store_dwordx4 v[108:111], v{t0}, s[{sWS}:{sWS+3}], s{sT0} offen{ST1}
    s_endpgm""")

    A.label('K1_MFMA')
    mw = sWave
    t0, t1, t2, t3 = 16, 17, 18, 19
    kP = 64; sD = 50
    A(f"""s_sub_u32 s{mw}, s{mw}, 4
    s_lshr_b32 s{sT0}, s{mw}, 1
    s_lshl_b32 s{sD}, s{sDP}, 1
    s_add_u32 s{sD}, s{sD}, s{sT0}
    s_and_b32 s{sT1}, s{mw}, 1
    s_lshl_b32 s{sT1}, s{sT1}, 7
    s_lshl_b32 s{sT0}, s{sD}, 8
    s_add_u32 s{sT0}, s{sT0}, s{sT1}
    v_lshl_add_u32 v{t0}, v1, 1, s{sT0}
    v_xor_b32 v{t1}, 128, v{t0}
    s_lshl_b32 s{sT0}, s{sD}, 1
    v_mov_b32 v{t2}, s{sT0}
    s_waitcnt lgkmcnt(0)
    global_load_ushort v{kP+6}, v{t2}, s[26:27]
    global_load_ushort v{kP+0}, v{t0}, s[18:19]
    global_load_ushort v{kP+1}, v{t0}, s[20:21]
    global_load_ushort v{kP+2}, v{t0}, s[22:23]
    global_load_ushort v{kP+3}, v{t0}, s[24:25]
    global_load_ushort v{kP+4}, v{t1}, s[22:23]
    global_load_ushort v{kP+5}, v{t1}, s[24:25]""")
    srd(A, sWS, sWSp, WS_SIZE)
    NPL = 0
    if cfg.get('tlb', 1):
        A(f"""v_lshlrev_b32 v{t0}, 21, v1
        s_mov_b64 exec, 0xff
        buffer_load_dword v157, v{t0}, s[{sWS}:{sWS+3}], 0 offen
        s_mov_b64 exec, 1
        global_load_dword v158, v{t0}, s[38:39]
        global_load_dword v156, v{t0}, s[28:29]
        global_load_dword v155, v{t0}, s[34:35]
        s_mov_b64 exec, -1""")
        NPL = 4
    ST(1)
    vXr, vWr = 4, 6
    F = [20, 56]
    ACC = 92
    x_read_addr(A, vXr, mw, t0, t1, t2)
    A(f"""v_lshrrev_b32 v{t0}, 4, v1
    v_bfe_u32 v{t1}, v1, 2, 2
    v_and_b32 v{t2}, 1, v{t0}
    v_lshl_or_b32 v{t2}, v{t2}, 2, v{t1}
    v_lshl_add_u32 v{t0}, v{t0}, 3, v{t1}
    v_and_b32 v{t1}, 3, v1
    v_lshlrev_b32 v{t1}, 3, v{t1}
    v_lshl_add_u32 v{t3}, v{t0}, 8, v{t1}
    v_add_u32 v{t3}, {LW}, v{t3}""")
    for tau in range(7):
        A(f'v_xor_b32 v{t0}, {tau}, v{t2}\nv_lshl_add_u32 v{vWr+tau}, v{t0}, 5, v{t3}')
    pre_addr, pre = kgen_pre(mw, sT0, kP)
    A('\n'.join(pre_addr))
    A(f's_waitcnt vmcnt({NPL})')
    ST(2)
    A('\n'.join(pre))
    def reads(st, kap):
        slot = st & 3; f = F[kap]; L = []
        for q in range(2): L.append(f'ds_read_b128 {v(f+28+4*q,4)}, v{vXr+kap} offset:{LX+slot*16384+q*2048}')
        for tau in range(7):
            for hh in range(2):
                L.append(f'ds_read_b64_tr_b16 {v(f+4*tau+2*hh,2)}, v{vWr+tau} offset:{slot*16384+kap*8192+hh*1024}')
        return L
    def kstep(kap, rd, first=False):
        f = F[kap]; k = 0
        for tau in range(7):
            for q in range(2):
                a = ACC + 8 * tau + 4 * q
                A(f'v_mfma_f32_16x16x32_bf16 {v(a,4)}, {v(f+4*tau,4)}, {v(f+28+4*q,4)}, {"0" if first else v(a,4)}')
                for _ in range(2):
                    if k < len(rd): A(rd[k]); k += 1
    A('s_waitcnt lgkmcnt(0)')
    ST(3)
    A('s_barrier')
    ST(5)
    A('\n'.join(reads(0, 0)))
    ab = 20; cs = 24
    for st in range(8):
        A('s_waitcnt lgkmcnt(0)')
        kstep(0, reads(st, 1), first=(st == 0))
        A('s_waitcnt lgkmcnt(0)')
        if st < 7:
            A('s_barrier'); ST(6 + st)
            kstep(1, reads(st + 1, 0))
        else:
            A(f"""s_barrier
            v_and_b32 v{t0}, 15, v1
            s_lshl_b32 s{sT0}, s{mw}, 8
            s_add_u32 s{sT0}, s{sT0}, {LSTAT}
            v_lshl_add_u32 v{t1}, v{t0}, 3, s{sT0}
            v_lshrrev_b32 v{t0}, 4, v1
            v_lshlrev_b32 v{t0}, 4, v{t0}
            v_add_u32 v{t0}, {LCS}, v{t0}""")
            rd = [f'ds_read_b64 {v(ab,2)}, v{t1}', f'ds_read_b64 {v(ab+2,2)}, v{t1} offset:128']
            rd += [f'ds_read_b128 {v(cs+4*tau,4)}, v{t0} offset:{64*tau}' for tau in range(7)]
            kstep(1, rd)
    ST(13)
    sHb, sHs = 52, 54
    A(f"""s_lshl_b32 s{sT0}, s{sRB}, 3
    s_lshl_b32 s{sT1}, s{mw}, 1
    s_add_u32 s{sT0}, s{sT0}, s{sT1}
    s_mul_i32 s{sT0}, s{sT0}, 56
    s_lshr_b32 s{sT1}, s{sCB}, 1
    s_mul_i32 s{sT1}, s{sT1}, 7
    s_add_u32 s{sT0}, s{sT0}, s{sT1}
    s_lshl_b32 s{sT0}, s{sT0}, 10
    s_lshl_b32 s{sT1}, s{sOdd}, 12
    s_add_u32 s{sHb}, s{sT0}, s{sT1}
    s_add_u32 s{sHb+1}, s{sHb}, {56*1024}
    s_lshl_b32 s{sT1}, s{sOdd}, 9
    s_add_u32 s{sHs}, s{sT0}, s{sT1}
    s_add_u32 s{sHs}, s{sHs}, 3072
    v_and_b32 v{t0}, 15, v1
    v_lshlrev_b32 v{t0}, 4, v{t0}
    v_lshrrev_b32 v{t2}, 5, v1
    v_lshl_add_u32 v{t0}, v{t2}, 8, v{t0}
    v_bfe_u32 v{t2}, v1, 4, 1
    v_lshl_add_u32 v{t1}, v{t2}, 9, v{t0}
    v_mul_u32_u24 v{t2}, {56*1024}, v{t2}
    v_add_u32 v{t2}, v{t2}, v{t0}
    s_mov_b32 s56, {NLOG2E}
    s_mov_b32 s57, {NLOG2E}
    v_mov_b32 v14, {NLOG2E}
    v_mov_b32 v15, {NLOG2E}
    s_waitcnt lgkmcnt(0)
    v_pk_mul_f32 {v(ab,2)}, {v(ab,2)}, s[56:57]
    v_pk_mul_f32 {v(ab+2,2)}, {v(ab+2,2)}, s[56:57]""")
    Zs = [56, 72]; Es = [64, 80]; O = [148, 152]
    groups = [[(2 * g, q), (2 * g + 1, q)] for q in range(2) for g in range(3)] + [[(6, 0), (6, 1)]]
    def part1(gi):
        Z = Zs[gi & 1]; E = Es[gi & 1]; L = []
        prs = [(tau, q, p) for tau, q in groups[gi] for p in range(2)]
        for n, (tau, q, p) in enumerate(prs):
            c = cs + 4 * tau + 2 * p
            L.append(f'v_pk_mul_f32 {v(Z+2*n,2)}, {v(c,2)}, {v(ab+2*q,2)} op_sel:[0,1] op_sel_hi:[1,1]')
        for n, (tau, q, p) in enumerate(prs):
            a = ACC + 8 * tau + 4 * q + 2 * p
            L.append(f'v_pk_fma_f32 {v(Z+2*n,2)}, {v(a,2)}, {v(ab+2*q,2)}, {v(Z+2*n,2)} op_sel:[0,0,0] op_sel_hi:[1,0,1]')
        for n in range(8): L.append(f'v_exp_f32 v{E+n}, v{Z+n}')
        for n in range(4): L.append(f'v_pk_fma_f32 {v(E+2*n,2)}, {v(E+2*n,2)}, s[56:57], v[14:15]')
        for n in range(8): L.append(f'v_rcp_f32 v{E+n}, v{E+n}')
        for n in range(4): L.append(f'v_pk_mul_f32 {v(Z+2*n,2)}, {v(Z+2*n,2)}, {v(E+2*n,2)}')
        o = O[gi & 1]
        for n in range(4): L.append(f'v_cvt_pk_bf16_f32 v{o+n}, v{Z+2*n}, v{Z+2*n+1}')
        T = [f'v_permlane16_swap_b32 v{o}, v{o+2}', f'v_permlane16_swap_b32 v{o+1}, v{o+3}']
        if gi < 6: T.append(f'buffer_store_dwordx4 {v(o,4)}, v{t1}, s[{sWS}:{sWS+3}], s{sHb+gi//3} offen offset:{1024*(gi%3)}{ST1}')
        else: T.append(f'buffer_store_dwordx4 {v(o,4)}, v{t2}, s[{sWS}:{sWS+3}], s{sHs} offen{ST1}')
        return L, T
    pend = []
    for gi in range(7):
        L, T = part1(gi)
        A('\n'.join(L[:2] + pend + L[2:])); pend = T
    A('\n'.join(pend))
    ST(14)
    if cfg.get('stamps'): A('s_waitcnt vmcnt(0)')
    ST(15)
    ST.dump(sWS, 20, 21)
    A.label('K1_END', fence=False)
    A('s_endpgm')
    return kd('k1_kernel', 160)

def kgen_pre(mw, sT0, kP):
    lar, aim, cre, cim, cre2, cim2, ldt = [kP + i for i in range(7)]
    dt, a1, w1, ys, t0, t1, t2, t3 = 72, 73, 74, 75, 76, 77, 78, 79
    C = 80; F1, F2, F4, F8, F256, G8, G16, G128 = 82, 84, 86, 88, 90, 92, 94, 96
    X = [98, 100, 102, 104, 106, 108, 110, 112]
    P = 116
    WA = 20
    RA = 36
    AD = []
    AD += [f's_lshl_b32 s{sT0}, s{mw}, 13', f's_add_u32 s{sT0}, s{sT0}, {LKG}', f'v_lshl_add_u32 v{WA}, v1, 2, s{sT0}']
    for x in range(1, 16): AD.append(f'v_xor_b32 v{WA+x}, {x*16}, v{WA}')
    AD += [f'v_and_b32 v{t0}, 31, v1', f'v_lshrrev_b32 v{t1}, 5, v1', f'v_and_b32 v{t2}, 15, v1', f'v_xor_b32 v{t1}, v{t1}, v{t2}',
           f'v_lshlrev_b32 v{t1}, 4, v{t1}', f'v_lshl_add_u32 v{t1}, v{t0}, 8, v{t1}', f'v_add_u32 v{RA}, s{sT0}, v{t1}']
    for sg in range(1, 8): AD.append(f'v_xor_b32 v{RA+sg}, {sg*32}, v{RA}')
    AD.append(f'v_lshl_add_u32 v44, v1, 4, s{sT0}')
    L = []
    for r in range(7): L.append(f'v_lshlrev_b32 v{kP+r}, 16, v{kP+r}')
    L += [f'v_mul_f32 v{dt}, {LOG2E}, v{ldt}', f'v_mul_f32 v{a1}, {LOG2E}, v{lar}', f'v_exp_f32 v{dt}, v{dt}', f'v_exp_f32 v{a1}, v{a1}',
          f'v_max3_f32 v{t2}, |v{cre}|, |v{cim}|, |v{cre2}|', f'v_max_f32_e64 v{t2}, v{t2}, |v{cim2}|']
    La = bf16r(dt, dt) + bf16r(a1, a1) + [f'v_mul_f32 v{a1}, v{a1}, v{dt}', f'v_mul_f32 v{w1}, v{aim}, v{dt}', f'v_mul_f32 v{a1}, {NLOG2E}, v{a1}', f'v_mul_f32 v{w1}, {INV2PI}, v{w1}']
    def direct(d, pos, ta, tb, neg=False):
        return [f'v_mul_f32 v{ta}, {f32(pos)}, v{a1}', f'v_mul_f32 v{tb}, {f32(-pos if neg else pos)}, v{w1}', f'v_exp_f32 v{ta}, v{ta}', f'v_fract_f32 v{tb}, v{tb}',
                f'v_cos_f32 v{d}, v{tb}', f'v_sin_f32 v{d+1}, v{tb}', f'v_mul_f32 v{d}, v{d}, v{ta}', f'v_mul_f32 v{d+1}, v{d+1}, v{ta}']
    La += interleave(direct(G8, 8.0, X[0], X[0] + 1, True), direct(G128, 128.0, X[1], X[1] + 1, True))
    La += interleave(direct(F1, 1.0, X[2], X[2] + 1), direct(F256, 256.0, X[3], X[3] + 1))
    Lb = []
    for r in (1, 2, 4, 8): Lb += [f'v_max_f32_dpp v{t2}, v{t2}, v{t2} row_ror:{r} row_mask:0xf bank_mask:0xf', None]
    for op in ('v_permlane16_swap_b32', 'v_permlane32_swap_b32'):
        Lb += [f'v_mov_b32 v{t3}, v{t2}', None, f'{op} v{t2}, v{t3}', f'v_max_f32 v{t2}, v{t2}, v{t3}']
    Lb += [f'v_lshrrev_b32 v{t2}, 23, v{t2}', f'v_min_u32 v{t2}, 253, v{t2}', f'v_sub_u32 v{t3}, 254, v{t2}',
           f'v_lshlrev_b32 v{t3}, 23, v{t3}', f'v_lshlrev_b32 v{t2}, 23, v{t2}',
           f'v_mul_f32 v{C}, v{cre}, v{t3}', f'v_mul_f32 v{C+1}, v{cim}, v{t3}',
           f'v_mul_f32 v{ys}, v{t2}, v{dt}', f'v_add_f32 v{ys}, v{ys}, v{ys}']
    L += [x for x in interleave(La, Lb) if x]
    L += cmul(G16, G8, G8) + cmul(F2, F1, F1) + [f'v_mov_b32 v{F8}, v{G8}', f'v_xor_b32 v{F8+1}, 0x80000000, v{G8+1}'] + cmul(F4, F2, F2)
    def cv(idx, src): return f'v_cvt_pk_f16_f32 v{P+idx}, v{src}, v{src+1}'
    def wr(i): return f'ds_write2st64_b32 v{WA+i}, v{P+i}, v{P+i+16} offset0:{i} offset1:{i+16}'
    def colchain(par, xa, xb, xc):
        Q = []
        if par == 0:
            Q += [f'v_mov_b32 v{P}, 0x3c00', cv(16, G128), wr(0)]; cur = G16; js = range(2, 16, 2)
        else:
            cur = G8; js = range(1, 16, 2)
        first = True
        for j in js:
            if not first:
                d = xa if cur != xa else xb; Q += cmul(d, cur, G16); cur = d
            first = False
            Q += cmul(xc, cur, G128) + [cv(j, cur), cv(j + 16, xc), wr(j)]
        return Q
    L += interleave(colchain(0, X[0], X[1], X[2]), colchain(1, X[3], X[4], X[5]))
    FB = 148 - 100
    FB = 48
    L.append(f'v_mov_b32 v45, v{ys}')
    for sg in range(8): L.append(f'ds_read_b128 {v(FB+4*sg,4)}, v{RA+sg}')
    def ridx(rho, hf): return 8 * (rho >> 2) + 4 * hf + (rho & 3)
    Qa = [cv(ridx(0, 0), C)]; cur = C
    for e in range(1, 8):
        d = X[0] if cur != X[0] else X[1]; Qa += cmul(d, cur, F1) + [cv(ridx(e, 0), d)]; cur = d
    B1 = X[7]
    Qb = cmul(B1, C, F256) + [cv(ridx(0, 1), B1), cv(ridx(1, 1), B1)]
    Qc = []; cur = B1
    for k, rhos in enumerate([[2], [3, 4, 5], [6], [7]]):
        d = X[2] if cur != X[2] else X[3]; Qc += cmul(d, cur, F2) + [cv(ridx(r, 1), d) for r in rhos]; cur = d
    Bc, Bn = B1, X[4]; alt = X[5]
    for sp in range(6):
        Qb += cmul(Bn, Bc, F256); Bc = Bn; Bn = alt if Bc == X[4] else X[4]
        if sp < 2:
            Qb += [cv(ridx(8, sp), Bc)] + cmul(X[6], Bc, F4) + [cv(ridx(9, sp), X[6])] + cmul(X[6], Bc, F8) + [cv(ridx(10, sp), X[6])]
        else:
            rho = 11 + 2 * ((sp - 2) >> 1); hf = sp & 1
            Qb += [cv(ridx(rho, hf), Bc)] + cmul(X[6], Bc, F8) + [cv(ridx(rho + 1, hf), X[6])]
    L += Qb[:2] + interleave(Qb[2:], Qa + Qc)
    for i in range(16): L.append(wr(i))
    FA = 80
    for sg in range(8): L.append(f'ds_read_b128 {v(FA+4*sg,4)}, v{RA+sg}')
    D = 116
    for sg in range(8):
        L.append(f's_waitcnt lgkmcnt({7-sg})')
        L.append(f'v_mfma_f32_32x32x16_f16 {v(D,16)}, {v(FA+4*sg,4)}, {v(FB+4*sg,4)}, {"0" if sg == 0 else v(D,16)}')
    L.append(f'v_mov_b32 v{D+15}, v45')
    for i in range(4): L.append(f'ds_write_b128 v44, {v(D+4*i,4)} offset:{1024*i}')
    return AD, L

def kgen_post(hw, sWS, sT0, sT1, sDP):
    D, E, O, R = 80, 96, 124, 144
    Q = [f's_lshl_b32 s{sT0}, s{hw}, 13', f's_add_u32 s{sT0}, s{sT0}, {LKG}', f'v_lshl_add_u32 v{R}, v1, 4, s{sT0}']
    for i in range(4): Q.append(f'ds_read_b128 {v(D+4*i,4)}, v{R} offset:{1024*i}')
    for i in range(4): Q.append(f'ds_read_b128 {v(E+4*i,4)}, v{R} offset:{8192+1024*i}')
    Q += [f's_lshr_b32 s{sT0}, s{hw}, 1', f's_lshl_b32 s{sT1}, s{sDP}, 1', f's_add_u32 s{sT0}, s{sT0}, s{sT1}',
          f's_mul_i32 s{sT0}, s{sT0}, {KE_PITCH}', f's_add_u32 s{sT0}, s{sT0}, {WS_KE}',
          f'v_lshlrev_b32 v{R+1}, 4, v1', f'v_sub_u32 v{R+2}, 1008, v{R+1}', f'v_and_b32 v{R+3}, 1, v1', f'v_cmp_eq_u32 vcc, 1, v{R+3}',
          's_waitcnt lgkmcnt(0)']
    for i in range(15): Q.append(f'v_add_f32 v{D+i}, v{D+i}, v{E+i}')
    def pk(d, a, b): return f'v_cvt_pk_f16_f32 v{d}, v{a}, v{b}'
    Q += [pk(O, D+7, D+6), pk(O+1, D+5, D+4), pk(O+2, D+3, D+2), pk(O+3, D+1, D+0)]
    Q += [pk(O+4, D+10, D+10), pk(O+5, D+9, D+9), pk(O+6, D+9, D+8), pk(O+7, D+8, D+8)]
    for c in range(2):
        lo, hi = D + 11 + 2 * c, D + 12 + 2 * c; o = O + 8 + 4 * c
        Q += [f'v_cndmask_b32 v{R+4}, v{lo}, v{hi}, vcc', pk(o, hi, hi), pk(o+1, hi, R+4), pk(o+2, lo, lo), pk(o+3, lo, lo)]
    for c in range(4): Q.append(f'buffer_store_dwordx4 {v(O+4*c,4)}, v{R+2}, s[{sWS}:{sWS+3}], s{sT0} offen offset:{1024*(3-c)}{ST1}')
    Q += [f'v_cmp_eq_u32 vcc, 4, v1', f'v_mov_b32 v{O+17}, 0', f'v_mov_b32 v{O+18}, 0', f'v_mov_b32 v{O+19}, 0', f'v_cndmask_b32 v{O+16}, 0, v{D+15}, vcc',
          f's_add_u32 s{sT0}, s{sT0}, 4096', 's_mov_b64 exec, 0x1f',
          f'buffer_store_dwordx4 {v(O+16,4)}, v{R+1}, s[{sWS}:{sWS+3}], s{sT0} offen{ST1}', 's_mov_b64 exec, -1']
    return Q

def build(cfg, kernels):
    A = Asm()
    head = open('cdna_kernels/%s.s.ref' % NAME).read().split('; Override')[0]
    launches = []
    kds = []
    A.raw('.amdgcn_target "amdgcn-amd-amdhsa--gfx950"\n.text')
    for k in kernels:
        fn, nm, grid, block, lds = k
        kds.append(fn(A, cfg))
        launches.append(f'; @launch kernel={nm} grid=({grid},1,1) block=({block},1,1) lds={lds}')
    txt = head + '\n'.join(launches) + '\n' + A.text() + '.section .rodata,"a"\n' + ''.join('.p2align 6\n' + k for k in kds)
    return txt

if __name__ == '__main__':
    out = sys.argv[1]
    ks = [(gen_k1, 'k1_kernel', 256, 512, 163840)]
    try:
        from gen2 import gen_k2, K2_LDS
        ks.append((gen_k2, 'k2_kernel', 256, 512, K2_LDS))
    except ImportError:
        pass
    cfg = eval(sys.argv[2]) if len(sys.argv) > 2 else {}
    open(out, 'w').write(build(cfg, ks))
```

```python
from gen import *
DP = 5
RING = 0; RPW = DP * 4096
LU = 4 * RPW; UP = 4608
LKC = LU + 2 * UP; KCP = 4160
LEX = LKC + 8 * KCP
LSY = LEX + 32768
K2_LDS = LSY + 64
LS = LKC
PP = 272

def lds_wait(A, name, vaddr, off, val, vt, st, scap, sleep=0):
    A(f's_mov_b32 s{scap}, 0x40000')
    A.label(name)
    if sleep: A(f's_sleep {sleep}')
    A(f'''ds_read_b32 v{vt}, v{vaddr} offset:{off}
    s_waitcnt lgkmcnt(0)
    v_readfirstlane_b32 s{st}, v{vt}
    s_sub_u32 s{scap}, s{scap}, 1
    s_cselect_b32 s{st}, {val}, s{st}
    s_cmp_lg_u32 s{st}, {val}''')
    A.back_branch(f's_cbranch_scc1 {name}', name)

def gen_k2(A, cfg):
    kernel_head(A, 'k2_kernel')
    sX, sW2, sWS, sOUT = 4, 8, 12, 16
    sWave, sRB, sCB, sT0, sT1, sT2, sCap, sDP = 40, 41, 42, 43, 44, 45, 46, 47
    vX = 250
    vXo = 254
    A(f'''s_cmp_ge_u32 s2, 256
    s_cbranch_scc1 K2_END''')
    ST = Stamps(A, cfg.get('stamps'), 1); ST.start()
    A(f'''s_load_dwordx2 s[20:21], s[0:1], 0
    s_load_dwordx2 s[22:23], s[0:1], 48
    s_load_dwordx4 s[24:27], s[0:1], 72
    s_load_dwordx2 s[28:29], s[0:1], 96
    v_lshrrev_b32 v2, 6, v0
    v_and_b32 v1, 63, v0
    v_readfirstlane_b32 s{sWave}, v2
    s_and_b32 s{sT0}, s2, 7
    s_lshl_b32 s{sT0}, s{sT0}, 2
    s_bfe_u32 s{sT1}, s2, 0x20003
    s_add_u32 s{sRB}, s{sT0}, s{sT1}
    s_lshr_b32 s{sCB}, s2, 5
    s_and_b32 s{sDP}, s2, 7
    s_lshl_b32 s{sDP}, s{sDP}, 5
    s_lshr_b32 s{sT0}, s2, 3
    s_add_u32 s{sDP}, s{sDP}, s{sT0}
    v_lshrrev_b32 v2, 3, v0
    v_and_b32 v3, 7, v0
    v_lshlrev_b32 v3, 4, v3
    v_lshl_add_u32 v{vXo}, v2, 10, v3
    s_lshl_b32 s{sT0}, s{sRB}, 16
    s_lshl_b32 s{sT1}, s{sCB}, 7
    s_add_u32 s{sT0}, s{sT0}, s{sT1}
    v_add_u32 v{vXo}, s{sT0}, v{vXo}
    s_waitcnt lgkmcnt(0)''')
    srd(A, sX, 20, 2048 * 1024); srd(A, sW2, 24, 1792 * 1024); srd(A, sWS, 28, WS_SIZE); srd(A, sOUT, 26, 2048 * 1024)
    ST(1)
    A(f's_cmp_ge_u32 s{sWave}, 4')
    A.fwd_branch('s_cbranch_scc1 K2_CONV')

    kw = sWave
    vH, vW, vR = 4, 8, 12
    t0, t1, t2, t3 = 16, 17, 18, 19
    WF = 20
    ACC = 36
    HB = 100
    sH, sWo, sRing, sK = 48, 49, 50, 51
    A(f'''v_lshlrev_b32 v{vH}, 4, v1
    v_add_u32 v{vH+1}, {57344}, v{vH}
    v_add_u32 v{vH+2}, {2*57344}, v{vH}
    v_add_u32 v{vH+3}, {3*57344}, v{vH}
    s_mul_i32 s{sH}, s{sRB}, {4*57344}
    s_mul_i32 s{sT0}, s{kw}, {14*1024}
    s_add_u32 s{sH}, s{sH}, s{sT0}
    v_lshrrev_b32 v{t0}, 3, v1
    v_bfe_u32 v{t1}, v1, 4, 1
    v_lshlrev_b32 v{t1}, 1, v{t1}
    v_and_b32 v{t2}, 7, v1
    v_xor_b32 v{t2}, v{t2}, v{t1}
    v_lshlrev_b32 v{t2}, 4, v{t2}
    v_lshl_add_u32 v{vW}, v{t0}, 10, v{t2}
    v_xor_b32 v{t3}, 64, v{vW}
    v_add_u32 v{vW+1}, 7168, v{t3}
    v_add_u32 v{vW+2}, 14336, v{vW}
    v_add_u32 v{vW+3}, 21504, v{t3}
    s_mul_i32 s{sWo}, s{kw}, {14*32768}
    s_lshl_b32 s{sT0}, s{sCB}, 7
    s_add_u32 s{sWo}, s{sWo}, s{sT0}
    s_mul_i32 s{sRing}, s{kw}, {RPW}
    s_mul_i32 s{sK}, s{sCB}, 14
    s_lshr_b32 s{sK}, s{sK}, 3''')
    def ldW(i):
        L = [f's_add_u32 m0, s{sRing}, {RING + (i % DP)*4096}', f's_lshl_b32 s{sT0}, s{sK}, 15', f's_add_u32 s{sT0}, s{sWo}, s{sT0}']
        for e in range(4): L.append(f'buffer_load_dwordx4 v{vW+e}, s[{sW2}:{sW2+3}], s{sT0} offen offset:{1024*e} lds')
        A('\n'.join(L))
    def ldH(i):
        L = [f's_lshl_b32 s{sT1}, s{sK}, 10', f's_add_u32 s{sT1}, s{sH}, s{sT1}']
        for q in range(4): L.append(f'buffer_load_dwordx4 {v(HB+16*(i%DP)+4*q,4)}, v{vH+q}, s[{sWS}:{sWS+3}], s{sT1} offen')
        L += [f's_add_u32 s{sK}, s{sK}, 1', f's_cmp_eq_u32 s{sK}, 14', f's_cselect_b32 s{sK}, 0, s{sK}']
        A('\n'.join(L))
    A(f'buffer_load_dwordx4 {v(vX,4)}, v{vXo}, s[{sX}:{sX+3}], 0 offen')
    ldW(0); ldH(0)
    A('s_barrier')
    for i in range(1, DP): ldW(i); ldH(i)
    A(f'''v_lshrrev_b32 v{t0}, 4, v1
    v_bfe_u32 v{t1}, v1, 2, 2
    v_lshl_add_u32 v{t0}, v{t0}, 3, v{t1}
    v_bfe_u32 v{t1}, v1, 3, 2
    v_and_b32 v{t2}, 3, v1
    v_lshlrev_b32 v{t2}, 3, v{t2}
    v_lshl_add_u32 v{t2}, v{t0}, 7, v{t2}
    v_add_u32 v{t2}, s{sRing}, v{t2}''')
    for T in range(4): A(f'v_xor_b32 v{t3}, {T}, v{t1}\nv_lshl_add_u32 v{vR+T}, v{t3}, 5, v{t2}')
    for i in range(64): A(f'v_mov_b32 v{ACC+i}, 0')
    ST(2)
    for i in range(14):
        younger = min(DP - 1, 13 - i)
        A(f's_waitcnt vmcnt({8*younger})')
        if i % 2 == 0: ST(3 + i // 2)
        L = []
        if i == cfg.get('trig', 7):
            L += [f'v_mov_b32 v{t0}, {LSY}', f'v_mov_b32 v{t1}, 1', f'ds_write_b32 v{t0}, v{t1} offset:12']
        for T in range(4):
            for hh in range(2):
                L.append(f'ds_read_b64_tr_b16 {v(WF+4*T+2*hh,2)}, v{vR+T} offset:{RING+(i%DP)*4096+hh*512}')
        A('\n'.join(L))
        for T in range(4):
            A(f's_waitcnt lgkmcnt({6-2*T})')
            if T == 3 and i + DP < 14: ldW(i + DP)
            for q in range(4):
                a = ACC + 16 * T + 4 * q
                A(f'v_mfma_f32_16x16x32_bf16 {v(a,4)}, {v(WF+4*T,4)}, {v(HB+16*(i%DP)+4*q,4)}, {v(a,4)}')
        if i + DP < 14: ldH(i + DP)
    ST(10)
    A(f'''v_and_b32 v{t0}, 15, v1
    v_lshrrev_b32 v{t1}, 4, v1
    v_mul_u32_u24 v{t0}, {PP}, v{t0}
    v_lshl_add_u32 v{t0}, v{t1}, 4, v{t0}
    v_add_u32 v{t0}, s{sRing}, v{t0}''')
    for T in range(4):
        for q in range(4):
            A(f'ds_write_b128 v{t0}, {v(ACC+16*T+4*q,4)} offset:{RING+q*16*PP+T*64}')
    A.fwd_branch('s_branch K2_FINAL')

    A.label('K2_CONV')
    cw = sWave
    sC, sHF, sYS, sDS = 48, 49, 50, 52
    sUb, sKb = 54, 55
    vK, vU, vSy = 4, 5, 6
    t0, t1, t2, t3 = 8, 9, 10, 11
    ACC = 12
    FK = [44, 108]; FU = [76, 140]
    A(f'''s_setprio 2
    s_sub_u32 s{cw}, s{cw}, 4
    s_lshr_b32 s{sC}, s{cw}, 1
    s_and_b32 s{sHF}, s{cw}, 1
    s_lshl_b32 s{sT2}, s{sDP}, 1
    s_add_u32 s{sT2}, s{sT2}, s{sC}
    s_mul_i32 s{sUb}, s{sC}, {UP}
    s_add_u32 s{sUb}, s{sUb}, {LU}
    s_mul_i32 s{sKb}, s{sC}, {4*KCP}
    s_add_u32 s{sKb}, s{sKb}, {LKC}
    v_lshlrev_b32 v{t0}, 4, v1
    s_lshl_b32 s{sT1}, s{sHF}, 11
    s_mul_i32 s{sT0}, s{sT2}, {KE_PITCH}
    s_add_u32 s{sT0}, s{sT0}, s{sT1}
    s_add_u32 s{sT0}, s{sT0}, {WS_KE}''')
    KA = 44
    for rd in range(2):
        for sh in range(3):
            A(f'buffer_load_dwordx4 {v(KA+12*rd+4*sh,4)}, v{t0}, s[{sWS}:{sWS+3}], s{sT0} offen offset:{1024*rd+4*sh}')
    A(f'''s_lshr_b32 s{sT0}, s{sT2}, 4
    s_lshl_b32 s{sT0}, s{sT0}, 16
    s_and_b32 s{sT2}, s{sT2}, 15
    s_lshl_b32 s{sT2}, s{sT2}, 4
    s_add_u32 s{sT0}, s{sT0}, s{sT2}
    s_lshl_b32 s{sT2}, s{sHF}, 15
    s_add_u32 s{sT0}, s{sT0}, s{sT2}
    s_add_u32 s{sT0}, s{sT0}, {WS_XNT}
    s_add_u32 s{sCap}, s{sT0}, {16384-1024}
    v_lshlrev_b32 v{t1}, 8, v1
    s_add_u32 s{sT1}, s{sT1}, s{sUb}
    s_add_u32 m0, s{sT1}, 480
    s_mul_i32 s{sT2}, s{sDP}, {2*KE_PITCH}
    buffer_load_dwordx4 v{t1}, s[{sWS}:{sWS+3}], s{sT0} offen lds
    buffer_load_dwordx4 v{t1}, s[{sWS}:{sWS+3}], s{sCap} offen offset:1024 lds
    buffer_load_dwordx4 {v(vX,4)}, v{vXo}, s[{sX}:{sX+3}], 0 offen
    s_add_u32 s{sT2}, s{sT2}, {WS_KE+4160}
    s_load_dword s{sYS}, s[28:29], s{sT2}
    s_add_u32 s{sT2}, s{sT2}, {KE_PITCH}
    s_load_dword s{sYS+1}, s[28:29], s{sT2}
    s_lshl_b32 s{sT2}, s{sDP}, 2
    s_load_dword s{sDS}, s[22:23], s{sT2}
    v_mov_b32 v12, 0
    v_mov_b32 v13, 0
    v_mov_b32 v14, 0
    v_mov_b32 v15, 0
    v_mov_b32 v{vSy}, {LSY}
    ds_write_b128 v{vSy}, v[12:15]
    v_add_u32 v{t1}, s{sUb}, v{t0}
    v_lshrrev_b32 v{t2}, 2, v1
    v_mul_u32_u24 v{t2}, {KCP}, v{t2}
    v_and_b32 v{t3}, 3, v1
    v_lshl_add_u32 v{t2}, v{t3}, 4, v{t2}
    v_add_u32 v{t2}, s{sKb}, v{t2}
    s_mov_b64 exec, 0x3fffffff
    ds_write_b128 v{t1}, v[12:15]
    s_mov_b64 exec, 0xffff
    ds_write_b128 v{t2}, v[12:15] offset:4096
    s_mov_b64 exec, -1
    s_waitcnt lgkmcnt(0)
    s_barrier''')
    ST(2)
    A(f'''v_and_b32 v{t1}, 3, v1
    v_sub_u32 v{t1}, 3, v{t1}
    v_mul_u32_u24 v{t1}, {KCP}, v{t1}
    v_bfe_u32 v{t2}, v1, 2, 2
    v_lshrrev_b32 v{t3}, 4, v1
    v_lshlrev_b32 v{vK}, 1, v{t3}
    v_sub_u32 v{vK}, v{vK}, v{t2}
    v_lshl_add_u32 v{vK}, v{vK}, 3, v{t1}
    s_lshl_b32 s{sT0}, s{sHF}, 8
    s_sub_u32 s{sT1}, s{sKb}, s{sT0}
    s_add_u32 s{sT1}, s{sT1}, {8*507-192-3584}
    v_add_u32 v{vK}, s{sT1}, v{vK}
    v_and_b32 v{t1}, 15, v1
    v_lshlrev_b32 v{t1}, 5, v{t1}
    v_lshl_add_u32 v{vU}, v{t3}, 4, v{t1}
    s_sub_u32 s{sT1}, s{sUb}, s{sT0}
    s_add_u32 s{sT1}, s{sT1}, {448-192}
    v_add_u32 v{vU}, s{sT1}, v{vU}
    s_lshl_b32 s{sT0}, s{sHF}, 11
    s_add_u32 s{sT0}, s{sT0}, s{sKb}
    v_add_u32 v{t1}, s{sT0}, v{t0}
    s_and_b32 s{sDS+1}, s{sDS}, 0xffff0000
    s_lshl_b32 s{sDS}, s{sDS}, 16''')
    for i in range(4, 32): A(f'v_mov_b32 v{ACC+i}, 0')
    for rd in range(2):
        a0, a2, a4 = KA + 12 * rd, KA + 12 * rd + 4, KA + 12 * rd + 8
        c1, c3 = 76 + 8 * rd, 80 + 8 * rd
        A(f's_waitcnt vmcnt({6-3*rd})')
        A(f'ds_write_b128 v{t1}, {v(a0,4)} offset:{1024*rd}\nds_write_b128 v{t1}, {v(a2,4)} offset:{1024*rd+2*KCP}')
        for i in range(4): A(f'v_alignbit_b32 v{c1+i}, v{a2+i}, v{a0+i}, 16\nv_alignbit_b32 v{c3+i}, v{a4+i}, v{a2+i}, 16')
        A(f'ds_write_b128 v{t1}, {v(c1,4)} offset:{1024*rd+KCP}\nds_write_b128 v{t1}, {v(c3,4)} offset:{1024*rd+3*KCP}')
    A(f'''v_mov_b32 v{t2}, 1
    s_waitcnt vmcnt(1) lgkmcnt(0)
    s_mov_b64 exec, 1
    ds_add_u32 v{vSy}, v{t2}
    s_mov_b64 exec, -1''')
    ST(3)
    lds_wait(A, 'K2_W0', vSy, 0, 4, t3, sT0, sCap)
    ST(4)
    def creads(rl):
        b = rl & 1; L = []
        for m in range(8):
            L.append(f'ds_read_b128 {v(FU[b]+4*m,4)}, v{vU} offset:{512*m+64*(3-rl)}')
            for hh in range(2):
                L.append(f'ds_read_b64 {v(FK[b]+4*m+2*hh,2)}, v{vK} offset:{512*(7-m)+64*(3-rl)+8*hh}')
        return L
    A('\n'.join(creads(0)))
    for rl in range(4):
        b = rl & 1
        nxt = creads(rl + 1) if rl < 3 else []
        A('s_waitcnt lgkmcnt(0)')
        k = 0
        for m in range(8):
            for jj in range(8 - m):
                a = ACC + 4 * (m + jj)
                A(f'v_mfma_f32_16x16x32_f16 {v(a,4)}, {v(FK[b]+4*m,4)}, {v(FU[b]+4*jj,4)}, {v(a,4)}')
                if k < len(nxt): A(nxt[k])
                k += 1
    ST(5)
    A(f'''s_lshl_b32 s{sT0}, s{cw}, 13
    s_add_u32 s{sT0}, s{sT0}, {LEX}
    v_add_u32 v{t1}, s{sT0}, v{t0}''')
    for i in range(8): A(f'ds_write_b128 v{t1}, {v(ACC+4*i,4)} offset:{1024*i}')
    A(f'''s_lshl_b32 s{sT0}, s{cw}, 11
    s_add_u32 s{sT1}, s{sT0}, {LEX}
    v_add_u32 v{t1}, s{sT1}, v{t0}
    v_and_b32 v{vK}, 15, v1
    v_lshrrev_b32 v{vU}, 4, v1
    v_lshlrev_b32 v{vU}, 2, v{vU}
    v_lshl_add_u32 v{vK}, v{vK}, 4, v{vU}
    s_lshl_b32 s{sT1}, s{cw}, 10
    s_add_u32 s{sT1}, s{sT1}, {LU+480}
    v_lshl_add_u32 v{vU}, v{vK}, 1, s{sT1}
    v_lshlrev_b32 v{vK}, 2, v{vK}
    s_lshl_b32 s{sT1}, s{sDP}, 13
    s_add_u32 s{sT1}, s{sT1}, s{sT0}
    s_add_u32 s{sT1}, s{sT1}, {WS_SP}
    s_waitcnt lgkmcnt(0)
    s_mov_b64 exec, 1
    ds_add_u32 v{vSy}, v{t2} offset:4
    s_mov_b64 exec, -1''')
    UU = 108
    for ti in range(2):
        for c in range(2): A(f'ds_read_b64 {v(UU+4*ti+2*c,2)}, v{vU} offset:{512*ti+UP*c}')
    lds_wait(A, 'K2_W1', vSy, 4, 4, t3, sT0, sCap)
    ST(6)
    PB = 44
    for ti in range(2):
        for w in range(4): A(f'ds_read_b128 {v(PB+16*ti+4*w,4)}, v{t1} offset:{8192*w+1024*ti}')
    for ti in range(2):
        A(f's_waitcnt lgkmcnt({4-4*ti})')
        for c in range(2):
            p0, p1 = PB + 16 * ti + 8 * c, PB + 16 * ti + 8 * c + 4
            for e in range(4):
                A(f'''v_add_f32 v{p0+e}, v{p0+e}, v{p1+e}
                v_mul_f32 v{p0+e}, s{sYS+c}, v{p0+e}
                v_fma_mix_f32 v{p0+e}, v{UU+4*ti+2*c+(e>>1)}, s{sDS+c}, v{p0+e} op_sel:[{e&1},0,0] op_sel_hi:[1,0,0]''')
        o = 120 + 4 * ti
        for e in range(4): A(f'v_cvt_pk_bf16_f32 v{o+e}, v{PB+16*ti+e}, v{PB+16*ti+8+e}')
        A(f'buffer_store_dwordx4 {v(o,4)}, v{vK}, s[{sWS}:{sWS+3}], s{sT1} offen offset:{1024*ti} sc1')
    ST(7)
    A(f'''s_waitcnt vmcnt(0)
    s_mov_b64 exec, 1
    ds_add_rtn_u32 v{t3}, v{vSy}, v{t2} offset:8
    s_mov_b64 exec, -1
    s_lshl_b32 s{sT1}, s{sDP}, 2
    s_add_u32 s{sT1}, s{sT1}, {WS_FLAG}
    v_mov_b32 v{t1}, 0
    s_waitcnt lgkmcnt(0)
    v_readfirstlane_b32 s{sT0}, v{t3}
    s_cmp_lg_u32 s{sT0}, 3''')
    A.fwd_branch('s_cbranch_scc1 K2_NOFLAG')
    A(f'''s_mov_b64 exec, 1
    buffer_store_dword v{t2}, v{t1}, s[{sWS}:{sWS+3}], s{sT1} offen sc1
    s_mov_b64 exec, -1''')
    A.label('K2_NOFLAG')
    ST(8)
    A(f'''s_setprio 0
    v_and_b32 v{t1}, 7, v1
    v_lshlrev_b32 v{t1}, 2, v{t1}
    s_lshl_b32 s{sT0}, s{sCB}, 7
    s_lshl_b32 s{sT1}, s{cw}, 5
    s_add_u32 s{sT0}, s{sT0}, s{sT1}
    s_add_u32 s{sT0}, s{sT0}, {WS_FLAG}
    v_lshrrev_b32 v{vK}, 4, v1
    v_and_b32 v{vU}, 15, v1
    v_lshlrev_b32 v{t2}, 4, v{vU}
    v_lshl_add_u32 v{t2}, v{vK}, 13, v{t2}
    s_lshl_b32 s{sT1}, s{sCB}, 18
    s_lshl_b32 s{sT2}, s{cw}, 16
    s_add_u32 s{sT1}, s{sT1}, s{sT2}
    s_lshl_b32 s{sT2}, s{sRB}, 8
    s_add_u32 s{sT1}, s{sT1}, s{sT2}
    s_add_u32 s{sT1}, s{sT1}, {WS_SP}
    s_add_u32 s{sT2}, s{sT1}, {4*8192}
    s_lshl_b32 s{sC}, s{cw}, 3
    v_add_u32 v{vK}, s{sC}, v{vK}
    v_and_b32 v{t3}, 7, v1
    v_lshlrev_b32 v{t3}, 2, v{t3}
    v_xor_b32 v{vK}, v{vK}, v{t3}
    v_lshlrev_b32 v{vK}, 2, v{vK}
    v_lshl_add_u32 v{vK}, v{vU}, 9, v{vK}
    v_add_u32 v{vK}, {LS}, v{vK}
    v_xor_b32 v{vU}, 16, v{vK}
''')
    lds_wait(A, 'K2_W2', vSy, 12, 1, t3, sHF, sCap, sleep=4)
    A(f's_mov_b32 s{sCap}, 0x8000')
    A.label('K2_POLL')
    A(f'''buffer_load_dword v{t3}, v{t1}, s[{sWS}:{sWS+3}], s{sT0} offen sc1
    s_sub_u32 s{sCap}, s{sCap}, 1
    s_cbranch_scc1 K2_POLLED
    s_waitcnt vmcnt(0)
    v_cmp_eq_u32 vcc, 0, v{t3}
    s_cbranch_vccz K2_POLLED
    s_sleep 8''')
    A.back_branch('s_branch K2_POLL', 'K2_POLL')
    A.label('K2_POLLED')
    ST(9)
    A(f'''buffer_load_dwordx4 v[44:47], v{t2}, s[{sWS}:{sWS+3}], s{sT1} offen sc1
    buffer_load_dwordx4 v[48:51], v{t2}, s[{sWS}:{sWS+3}], s{sT2} offen sc1
    s_waitcnt vmcnt(1)''')
    for e in range(4): A(f'ds_write_b32 v{vK}, v{44+e} offset:{128*e}')
    A('s_waitcnt vmcnt(0)')
    for e in range(4): A(f'ds_write_b32 v{vU}, v{48+e} offset:{128*e}')

    A.label('K2_FINAL')
    t0, t1, t2 = 4, 5, 6
    PB = 8; SV = 40; E = 44; XU = 52; SU = 60
    A(f'''v_lshrrev_b32 v{t0}, 3, v0
    v_and_b32 v{t1}, 7, v0
    v_mul_u32_u24 v{t2}, {PP}, v{t0}
    v_lshl_add_u32 v{t2}, v{t1}, 5, v{t2}
    v_bfe_u32 v3, v0, 5, 3
    v_xor_b32 v{t1}, v{t1}, v3
    v_lshlrev_b32 v{t1}, 4, v{t1}
    v_lshl_add_u32 v{t1}, v{t0}, 7, v{t1}
    v_add_u32 v{t1}, {LS}, v{t1}
    s_mov_b32 s56, {NLOG2E}
    s_mov_b32 s57, {NLOG2E}
    s_waitcnt vmcnt(0) lgkmcnt(0)''')
    ST(11)
    A('s_barrier')
    ST(12)
    for w in range(4):
        for hh in range(2): A(f'ds_read_b128 {v(PB+8*w+4*hh,4)}, v{t2} offset:{RING+w*RPW+16*hh}')
    A(f'ds_read_b128 {v(SV,4)}, v{t1}')
    for j in range(4): A(f'v_lshlrev_b32 v{XU+2*j}, 16, v{vX+j}\nv_and_b32 v{XU+2*j+1}, 0xffff0000, v{vX+j}')
    A('s_waitcnt lgkmcnt(5)')
    for j in range(4): A(f'v_pk_add_f32 {v(PB+2*j,2)}, {v(PB+2*j,2)}, {v(PB+8+2*j,2)}')
    A('s_waitcnt lgkmcnt(1)')
    for j in range(4): A(f'v_pk_add_f32 {v(PB+16+2*j,2)}, {v(PB+16+2*j,2)}, {v(PB+24+2*j,2)}')
    for j in range(4): A(f'v_pk_add_f32 {v(PB+2*j,2)}, {v(PB+2*j,2)}, {v(PB+16+2*j,2)}')
    for j in range(4): A(f'v_pk_mul_f32 {v(E+2*j,2)}, {v(PB+2*j,2)}, s[56:57]')
    for j in range(8): A(f'v_exp_f32 v{E+j}, v{E+j}')
    for j in range(4): A(f'v_pk_add_f32 {v(E+2*j,2)}, {v(E+2*j,2)}, 1.0 op_sel_hi:[1,0]')
    for j in range(8): A(f'v_rcp_f32 v{E+j}, v{E+j}')
    A('s_waitcnt lgkmcnt(0)')
    for j in range(4): A(f'v_lshlrev_b32 v{SU+2*j}, 16, v{SV+j}\nv_and_b32 v{SU+2*j+1}, 0xffff0000, v{SV+j}')
    for j in range(4): A(f'v_pk_mul_f32 {v(PB+2*j,2)}, {v(PB+2*j,2)}, {v(E+2*j,2)}')
    for j in range(4): A(f'v_pk_fma_f32 {v(PB+2*j,2)}, {v(PB+2*j,2)}, {v(SU+2*j,2)}, {v(XU+2*j,2)}')
    for j in range(4): A(f'v_cvt_pk_bf16_f32 v{SV+j}, v{PB+2*j}, v{PB+2*j+1}')
    A(f'buffer_store_dwordx4 {v(SV,4)}, v{vXo}, s[{sOUT}:{sOUT+3}], 0 offen')
    ST(13)
    if cfg.get('stamps'): A('s_waitcnt vmcnt(0)')
    ST(14)
    ST.dump(sWS, 100, 101)
    A.label('K2_END', fence=False)
    A('s_endpgm')
    A.raw('K2_CODE_END:')
    return kd('k2_kernel', 256)
```

```python
import sys, math, struct
from asmlib import Asm
from gen import NAME, f32, LOG2E, NLOG2E, INV2PI, v, s, srd, kernel_head, kd, cmul, bf16r, interleave

WS_H = 0
WS_XN = 0x700000
WS_SP = 0x900000
WS_GR = 0xB00000
WS_F1 = WS_GR + 0x4000
WS_F2 = WS_F1 + 0x400
WS_F3 = WS_F2 + 0x400
WS_EP = WS_F3 + 0x400
WS_STAMP = 0xB10000
WS_SIZE = 0xC00000
SC = ' sc1'

def Aslot(i): return i * 16384
def Bslot(i): return 65536 + i * 16384
LC = 131072
LDD = LC
LNB = LC + 16384; LNP = 1088
TOP = LC + 28672
LSTAT, LCS, LSY = TOP, TOP + 3072, TOP + 3584
LCSP = LNB
LKC = Bslot(3); KCP = 4160
LEX = LKC
LS = Aslot(3)
LU = LKC + 8 * KCP; UP = 4608
RING = [Aslot(1), Bslot(1), Aslot(2), Bslot(2), Aslot(0), Bslot(0)]
PART = [Aslot(0), Bslot(0), Aslot(1), Bslot(1)]
SY_U, SY_H, SY_K, SY_CV, SY_EX, SY_S, SY_TRIG = 0, 4, 8, 16, 20, 24, 28
SY_XN, SY_XS, SY_KG = 48, 52, 56
def CERT(st): return 64 + 4 * st
def DONE(st): return 128 + 4 * st

MINSLEEP = [0]
class Q:
    def __init__(s, A, name, mx): s.A, s.name, s.mx, s.q = A, name, mx, []
    def add(s, tag, n=1): s.q += [tag] * n
    def wait(s, tag):
        if tag not in s.q: return
        i = len(s.q) - 1 - s.q[::-1].index(tag)
        n = len(s.q) - 1 - i
        n = min(n, s.mx)
        s.A(f's_waitcnt {s.name}({n})'); s.q = s.q[len(s.q) - n:] if n else []
    def all(s):
        s.A(f's_waitcnt {s.name}(0)'); s.q = []

class BG:
    def __init__(s, A, vq, every): s.A, s.vq, s.every, s.q, s.n, s.hold = A, vq, every, [], 0, 0
    def push(s, text, tag): s.q.append((text, tag))
    def pop(s):
        t, tag = s.q.pop(0); s.A(t); s.vq.add(tag); s.n = 0
    def flush(s, tag=None):
        while s.q and (tag is None or any(t == tag for _, t in s.q)): s.pop()
    def __call__(s, text, tag=None):
        for line in text.strip().split('\n'):
            l = line.strip()
            if not l: continue
            if 'exec' in l.split(',')[0] and '-1' not in l: s.hold = 1
            if l.startswith('s_waitcnt lgkmcnt') and not s.hold:
                for _ in range(2):
                    if s.q: s.pop()
            s.A(l)
            if l.startswith(('buffer_', 'global_')):
                assert tag is not None, l
                s.vq.add(tag)
            if l.startswith('s_mov_b64 exec, -1'): s.hold = 0
            w = 3 if l.startswith('v_mfma') else 1
            s.n += w
            if s.q and not s.hold and s.n >= s.every and not l.startswith(('s_cmp', 's_sub_u32', 's_add_u32', 'v_cmp', 's_or_b64', 's_bitcmp')): s.pop()
    def __getattr__(s, k): return getattr(s.A, k)

class Stamps:
    def __init__(self, A, on): self.A, self.on, self.role = A, on, 'H'
    def start(self):
        if self.on: self.A('s_memrealtime s[70:71]\ns_memtime s[72:73]')
    def __call__(self, name):
        if self.on and name in self.on[self.role]:
            i = 1 + self.on[self.role].index(name)
            self.A(f's_memtime s[{72+2*i}:{73+2*i}]')
    def dump(self, sWS, vt, vo):
        if not self.on: return
        A = self.A
        A('s_waitcnt vmcnt(0)\ns_memtime s[98:99]\ns_memrealtime s[100:101]\ns_waitcnt lgkmcnt(0)')
        for i in range(16): A(f'v_writelane_b32 v{vt}, s{70+2*i}, {i}')
        A(f"""v_lshrrev_b32 v{vo}, 6, v0
        v_lshlrev_b32 v{vo}, 7, v{vo}
        v_and_b32 v{vo+1}, 63, v0
        v_lshl_add_u32 v{vo}, v{vo+1}, 2, v{vo}
        s_lshl_b32 s70, s2, 10
        s_add_u32 s70, s70, {WS_STAMP}
        s_mov_b64 exec, 0xffff
        buffer_store_dword v{vt}, v{vo}, s[{sWS}:{sWS+3}], s70 offen
        s_mov_b64 exec, -1""")

sX, sW1, sWS, sW2, sOUT = 4, 8, 12, 44, 48
pX, pLAR, pAIM, pCRE, pCIM, pLDT, pDSK, pW1, pW2, pOUT, pDBG, pWS = 16, 18, 20, 22, 24, 26, 28, 32, 34, 36, 38, 40
sWave, sRB, sCB, sT0, sT1, sT2, sOdd, sCh0, sDP, sNon, sCap, sRB2, sCB2 = 52, 53, 54, 55, 56, 57, 58, 59, 60, 61, 62, 63, 64
sA, sB, sC, sD, sE = 65, 66, 67, 68, 69
sK0 = 3
sM0 = 30
sM1 = 42

def lds_wait(A, name, vaddr, off, val, vt, st, sleep=0):
    sleep = max(sleep, MINSLEEP[0])
    A(f's_mov_b32 s{sCap}, 0x40000')
    A.label(name)
    if sleep: A(f's_sleep {sleep}')
    A(f'''ds_read_b32 v{vt}, v{vaddr} offset:{off}
    s_waitcnt lgkmcnt(0)
    v_readfirstlane_b32 s{st}, v{vt}
    s_sub_u32 s{sCap}, s{sCap}, 1
    s_cselect_b32 s{st}, {val}, s{st}
    s_cmp_lt_u32 s{st}, {val}''')
    A.back_branch(f's_cbranch_scc1 {name}', name)

def lds_inc(A, vaddr, off, vone, rtn=None):
    A('s_mov_b64 exec, 1')
    if rtn is None: A(f'ds_add_u32 v{vaddr}, v{vone} offset:{off}')
    else: A(f'ds_add_rtn_u32 v{rtn}, v{vaddr}, v{vone} offset:{off}')
    A('s_mov_b64 exec, -1')

def gpoll(A, name, load, checks, sleep=8, first=None):
    A(f's_mov_b32 s{sCap}, 0x8000')
    if first:
        first()
        A.fwd_branch(f's_branch {name}_C')
    A.label(name)
    A(f'{load}\ns_waitcnt vmcnt(0)')
    A.label(name + '_C')
    A(f'v_cmp_ne_u32 vcc, s{sNon}, v{checks[0]}')
    for c in checks[1:]:
        A(f'v_cmp_ne_u32 s[{sM1}:{sM1+1}], s{sNon}, v{c}\ns_or_b64 vcc, vcc, s[{sM1}:{sM1+1}]')
    A(f'''s_cmp_eq_u64 vcc, 0
    s_cbranch_scc1 {name}_D
    s_sub_u32 s{sCap}, s{sCap}, 1
    s_cbranch_scc1 {name}_D
    s_sleep {sleep}''')
    A.back_branch(f's_branch {name}', name)
    A.label(name + '_D')

def x_read_addr(A, vXr, sw, t0, t1, t2):
    A(f"""v_and_b32 v{t0}, 15, v1
    v_lshrrev_b32 v{t1}, 4, v1
    v_lshrrev_b32 v{t2}, 1, v{t0}
    v_xor_b32 v{t2}, v{t2}, v{t1}
    v_lshlrev_b32 v{t2}, 4, v{t2}
    v_lshl_add_u32 v{t2}, v{t0}, 7, v{t2}
    s_lshl_b32 s{sT0}, s{sw}, 12
    v_add_u32 v{vXr}, s{sT0}, v{t2}
    v_xor_b32 v{vXr+1}, 64, v{vXr}""")

def kgen_pre(mw, D, KB):
    kP = 64 + KB
    lar, aim, cre, cim, cre2, cim2, ldt = [kP + i for i in range(7)]
    dt, a1, w1, ys, t0, t1, t2, t3 = [KB + x for x in (72, 73, 74, 75, 76, 77, 78, 79)]
    C = 80 + KB; F1, F2, F4, F8, F256, G8, G16, G128 = [KB + x for x in (82, 84, 86, 88, 90, 92, 94, 96)]
    X = [KB + x for x in (98, 100, 102, 104, 106, 108, 110, 112)]
    P = 116 + KB; WA = 20 + KB; RA = 36 + KB; DA, YS, PA = 44 + KB, 45 + KB, 46 + KB
    AD = [f's_and_b32 s{sT0}, s{mw}, 1', f's_lshl_b32 s{sT0}, s{sT0}, 13', f's_lshr_b32 s{sT1}, s{mw}, 1', f's_lshl_b32 s{sT1}, s{sT1}, 16',
          f's_add_u32 s{sT0}, s{sT0}, s{sT1}', f's_add_u32 s{sT0}, s{sT0}, {Aslot(0)}', f'v_lshl_add_u32 v{WA}, v1, 2, s{sT0}']
    for x in range(1, 16): AD.append(f'v_xor_b32 v{WA+x}, {x*16}, v{WA}')
    AD += [f'v_and_b32 v{t0}, 31, v1', f'v_lshrrev_b32 v{t1}, 5, v1', f'v_and_b32 v{t2}, 15, v1', f'v_xor_b32 v{t1}, v{t1}, v{t2}',
           f'v_lshlrev_b32 v{t1}, 4, v{t1}', f'v_lshl_add_u32 v{t1}, v{t0}, 8, v{t1}', f'v_add_u32 v{RA}, s{sT0}, v{t1}']
    for sg in range(1, 8): AD.append(f'v_xor_b32 v{RA+sg}, {sg*32}, v{RA}')
    AD += [f'v_lshl_add_u32 v{DA}, v1, 4, s{sT0}', f'v_xor_b32 v{PA}, 0x2000, v{DA}']
    L = []
    for r in range(7): L.append(f'v_lshlrev_b32 v{kP+r}, 16, v{kP+r}')
    L += [f'v_mul_f32 v{dt}, {LOG2E}, v{ldt}', f'v_mul_f32 v{a1}, {LOG2E}, v{lar}', f'v_exp_f32 v{dt}, v{dt}', f'v_exp_f32 v{a1}, v{a1}',
          f'v_max3_f32 v{t2}, |v{cre}|, |v{cim}|, |v{cre2}|', f'v_max_f32_e64 v{t2}, v{t2}, |v{cim2}|']
    La = bf16r(dt, dt) + bf16r(a1, a1) + [f'v_mul_f32 v{a1}, v{a1}, v{dt}', f'v_mul_f32 v{w1}, v{aim}, v{dt}', f'v_mul_f32 v{a1}, {NLOG2E}, v{a1}', f'v_mul_f32 v{w1}, {INV2PI}, v{w1}']
    def direct(d, pos, ta, tb, neg=False):
        return [f'v_mul_f32 v{ta}, {f32(pos)}, v{a1}', f'v_mul_f32 v{tb}, {f32(-pos if neg else pos)}, v{w1}', f'v_exp_f32 v{ta}, v{ta}', f'v_fract_f32 v{tb}, v{tb}',
                f'v_cos_f32 v{d}, v{tb}', f'v_sin_f32 v{d+1}, v{tb}', f'v_mul_f32 v{d}, v{d}, v{ta}', f'v_mul_f32 v{d+1}, v{d+1}, v{ta}']
    La += interleave(direct(G8, 8.0, X[0], X[0] + 1, True), direct(G128, 128.0, X[1], X[1] + 1, True))
    La += interleave(direct(F1, 1.0, X[2], X[2] + 1), direct(F256, 256.0, X[3], X[3] + 1))
    Lb = []
    for r in (1, 2, 4, 8): Lb += [f'v_max_f32_dpp v{t2}, v{t2}, v{t2} row_ror:{r} row_mask:0xf bank_mask:0xf', None]
    for op in ('v_permlane16_swap_b32', 'v_permlane32_swap_b32'):
        Lb += [f'v_mov_b32 v{t3}, v{t2}', None, f'{op} v{t2}, v{t3}', f'v_max_f32 v{t2}, v{t2}, v{t3}']
    Lb += [f'v_lshrrev_b32 v{t2}, 23, v{t2}', f'v_min_u32 v{t2}, 253, v{t2}', f'v_sub_u32 v{t3}, 254, v{t2}',
           f'v_lshlrev_b32 v{t3}, 23, v{t3}', f'v_lshlrev_b32 v{t2}, 23, v{t2}',
           f'v_mul_f32 v{C}, v{cre}, v{t3}', f'v_mul_f32 v{C+1}, v{cim}, v{t3}',
           f'v_mul_f32 v{YS}, v{t2}, v{dt}']
    L += [x for x in interleave(La, Lb) if x]
    L += cmul(G16, G8, G8) + cmul(F2, F1, F1) + [f'v_mov_b32 v{F8}, v{G8}', f'v_xor_b32 v{F8+1}, 0x80000000, v{G8+1}'] + cmul(F4, F2, F2)
    nsetup = len(L)
    def cv(idx, src): return f'v_cvt_pk_f16_f32 v{P+idx}, v{src}, v{src+1}'
    def wr(i): return f'ds_write2st64_b32 v{WA+i}, v{P+i}, v{P+i+16} offset0:{i} offset1:{i+16}'
    def colchain(par, xa, xb, xc):
        Qq = []
        if par == 0:
            Qq += [f'v_mov_b32 v{P}, 0x3c00', cv(16, G128), wr(0)]; cur = G16; js = range(2, 16, 2)
        else:
            cur = G8; js = range(1, 16, 2)
        first = True
        for j in js:
            if not first:
                d = xa if cur != xa else xb; Qq += cmul(d, cur, G16); cur = d
            first = False
            Qq += cmul(xc, cur, G128) + [cv(j, cur), cv(j + 16, xc), wr(j)]
        return Qq
    L += interleave(colchain(0, X[0], X[1], X[2]), colchain(1, X[3], X[4], X[5]))
    FB = 48 + KB
    for sg in range(8): L.append(f'ds_read_b128 {v(FB+4*sg,4)}, v{RA+sg}')
    def ridx(rho, hf): return 8 * (rho >> 2) + 4 * hf + (rho & 3)
    Qa = [cv(ridx(0, 0), C)]; cur = C
    for e in range(1, 8):
        d = X[0] if cur != X[0] else X[1]; Qa += cmul(d, cur, F1) + [cv(ridx(e, 0), d)]; cur = d
    B1 = X[7]
    Qb = cmul(B1, C, F256) + [cv(ridx(0, 1), B1), cv(ridx(1, 1), B1)]
    Qc = []; cur = B1
    for k, rhos in enumerate([[2], [3, 4, 5], [6], [7]]):
        d = X[2] if cur != X[2] else X[3]; Qc += cmul(d, cur, F2) + [cv(ridx(r, 1), d) for r in rhos]; cur = d
    Bc, Bn = B1, X[4]; alt = X[5]
    for sp in range(6):
        Qb += cmul(Bn, Bc, F256); Bc = Bn; Bn = alt if Bc == X[4] else X[4]
        if sp < 2:
            Qb += [cv(ridx(8, sp), Bc)] + cmul(X[6], Bc, F4) + [cv(ridx(9, sp), X[6])] + cmul(X[6], Bc, F8) + [cv(ridx(10, sp), X[6])]
        else:
            rho = 11 + 2 * ((sp - 2) >> 1); hf = sp & 1
            Qb += [cv(ridx(rho, hf), Bc)] + cmul(X[6], Bc, F8) + [cv(ridx(rho + 1, hf), X[6])]
    L += Qb[:2] + interleave(Qb[2:], Qa + Qc)
    for i in range(16): L.append(wr(i))
    FA = 80 + KB
    for sg in range(8): L.append(f'ds_read_b128 {v(FA+4*sg,4)}, v{RA+sg}')
    for sg in range(8):
        L.append(f's_waitcnt lgkmcnt({7-sg})')
        L.append(f'v_mfma_f32_32x32x16_f16 {v(D,16)}, {v(FA+4*sg,4)}, {v(FB+4*sg,4)}, {"0" if sg == 0 else v(D,16)}')
    L.append(f'v_mov_b32 v{D+15}, v{YS}')
    for i in range(4): L.append(f'ds_write_b128 v{DA}, {v(D+4*i,4)} offset:{1024*i}')
    return AD, L[:nsetup], L[nsetup:], PA

KN = NAME + '_kernel'

def gen(A, cfg):
    kernel_head(A, KN)
    A('s_cmp_ge_u32 s2, 256\ns_cbranch_scc1 L_END')
    ST = Stamps(A, cfg.get('stamps')); ST.start()
    A(f"""s_load_dwordx16 s[16:31], s[0:1], 0
    s_load_dwordx8 s[32:39], s[0:1], 64
    s_load_dwordx2 s[40:41], s[0:1], 96
    s_getpc_b64 s[{sM1}:{sM1+1}]""")
    A.raw('L_PC0:')
    A(f"""v_lshlrev_b32 v2, 7, v0
    v_cmp_gt_u32 vcc, L_CODE_END-L_PC0, v2
    s_and_saveexec_b64 s[{sA+1}:{sA+2}], vcc
    s_cbranch_execz L_NOCPF
    global_load_dword v255, v2, s[{sM1}:{sM1+1}]""")
    A.label('L_NOCPF', fence=False)
    A(f"""s_mov_b64 exec, -1
    v_lshrrev_b32 v2, 6, v0
    v_and_b32 v1, 63, v0
    v_readfirstlane_b32 s{sWave}, v2
    s_bfe_u32 s{sT0}, s2, 0x20001
    s_lshl_b32 s{sT0}, s{sT0}, 2
    s_bfe_u32 s{sT1}, s2, 0x20003
    s_add_u32 s{sRB}, s{sT0}, s{sT1}
    s_and_b32 s{sT0}, s2, 1
    s_lshl_b32 s{sT0}, s{sT0}, 3
    s_lshr_b32 s{sCB2}, s2, 5
    s_add_u32 s{sCB}, s{sT0}, s{sCB2}
    s_lshl_b32 s{sT2}, s{sT1}, 1
    s_add_u32 s{sCh0}, s{sT2}, s{sCB2}
    s_and_b32 s{sOdd}, s{sCB}, 1
    s_and_b32 s{sT0}, s2, 7
    s_lshl_b32 s{sRB2}, s{sT0}, 2
    s_add_u32 s{sRB2}, s{sRB2}, s{sT1}
    s_lshl_b32 s{sDP}, s{sT0}, 5
    s_lshr_b32 s{sT0}, s2, 3
    s_add_u32 s{sDP}, s{sDP}, s{sT0}
    s_mul_i32 s{sK0}, s{sCB2}, 14
    s_lshr_b32 s{sK0}, s{sK0}, 3
    s_mul_i32 s{sT0}, s{sT1}, 7
    s_lshr_b32 s{sT0}, s{sT0}, 1
    s_add_u32 s{sK0}, s{sK0}, s{sT0}
    s_sub_u32 s{sT0}, s{sK0}, 14
    s_cmp_ge_u32 s{sK0}, 14
    s_cselect_b32 s{sK0}, s{sT0}, s{sK0}
    v_lshlrev_b32 v2, 2, v1
    v_add_u32 v2, {LSY}, v2
    v_mov_b32 v14, 0
    ds_write_b32 v2, v14
    s_cmp_lt_u32 s{sWave}, 4""")
    A.fwd_branch('s_cbranch_scc1 L_H')
    gen_M(A, cfg, ST)
    gen_H(A, cfg, ST)
    gen_final(A, cfg, ST)
    A.label('L_END', fence=False)
    A('s_endpgm')
    A.raw('L_CODE_END:')
    return kd(KN, 256, 102)

vX, vXo = 8, 12

def load_x_final(A):
    A(f"""v_lshrrev_b32 v2, 3, v0
    v_and_b32 v3, 7, v0
    v_lshlrev_b32 v3, 4, v3
    v_lshl_add_u32 v{vXo}, v2, 10, v3
    s_lshl_b32 s{sT0}, s{sRB2}, 16
    s_lshl_b32 s{sT1}, s{sCB2}, 7
    s_add_u32 s{sT0}, s{sT0}, s{sT1}
    v_add_u32 v{vXo}, s{sT0}, v{vXo}
    buffer_load_dwordx4 {v(vX,4)}, v{vXo}, s[{sX}:{sX+3}], 0 offen""")

def gen_M(A, cfg, ST):
    ST.role = 'M'
    mw = sWave
    t0, t1, t2, t3 = 16, 17, 18, 19
    kP = 64; D = 232
    vRow, vTmp, vOne = 160, 168, 196
    vSyM, vOneM, vFl = 14, 15, 3
    A(f"""s_sub_u32 s{mw}, s{mw}, 4
    v_lshlrev_b32 v{t3}, 21, v1
    v_lshlrev_b32 v198, 4, v1
    v_mov_b32 v199, {WS_EP}
    s_lshl_b32 s{sT0}, s{sDP}, 13
    s_lshl_b32 s{sT1}, s{mw}, 11
    s_add_u32 s{sT0}, s{sT0}, s{sT1}
    v_add_u32 v197, s{sT0}, v198
    s_waitcnt lgkmcnt(0)
    global_load_dword v199, v199, s[{pWS}:{pWS+1}]{SC}
    global_load_dwordx4 {v(vRow,4)}, v197, s[{pX}:{pX+1}]
    global_load_dwordx4 {v(vRow+4,4)}, v197, s[{pX}:{pX+1}] offset:1024""")
    srd(A, sWS, pWS, WS_SIZE); srd(A, sX, pX, 2048 * 1024); srd(A, sOUT, pOUT, 2048 * 1024)
    A(f"""s_mov_b64 exec, 0x3f
    buffer_load_dword v254, v{t3}, s[{sWS}:{sWS+3}], 0 offen
    s_mov_b64 exec, 1
    global_load_dword v253, v{t3}, s[{pOUT}:{pOUT+1}]
    global_load_dword v252, v{t3}, s[{pW2}:{pW2+1}]
    s_mov_b64 exec, -1
    s_barrier
    s_lshl_b32 s{sT0}, s{sDP}, 2
    s_load_dword s{sD}, s[{pDSK}:{pDSK+1}], s{sT0}""")
    ST('ld')
    vXr, vWr = 4, 6
    F = [20, 56]; ACC = 92
    x_read_addr(A, vXr, mw, t0, t1, t2)
    A(f"""v_lshrrev_b32 v{t0}, 4, v1
    v_bfe_u32 v{t1}, v1, 2, 2
    v_and_b32 v{t2}, 1, v{t0}
    v_lshl_or_b32 v{t2}, v{t2}, 2, v{t1}
    v_lshl_add_u32 v{t0}, v{t0}, 3, v{t1}
    v_and_b32 v{t1}, 3, v1
    v_lshlrev_b32 v{t1}, 3, v{t1}
    v_lshl_add_u32 v{t3}, v{t0}, 8, v{t1}
    v_add_u32 v{t3}, {Bslot(0)}, v{t3}""")
    for tau in range(7):
        A(f'v_xor_b32 v{t0}, {tau}, v{t2}\nv_lshl_add_u32 v{vWr+tau}, v{t0}, 5, v{t3}')
    A(f'v_mov_b32 v{vOne}, 0x3f803f80\ns_waitcnt lgkmcnt(0)')
    A('s_waitcnt vmcnt(3)')
    ST('row')
    S = [vTmp + i for i in range(4)]
    T = [vTmp + 4 + i for i in range(4)]
    for r in range(2):
        for j in range(4):
            x = vRow + 4 * r + j
            if j == 0:
                A(f'v_dot2_f32_bf16 v{S[r]}, v{x}, v{vOne}, 0\nv_dot2_f32_bf16 v{S[2+r]}, v{x}, v{x}, 0')
            else:
                A(f'v_dot2_f32_bf16 v{S[r]}, v{x}, v{vOne}, v{S[r]}\nv_dot2_f32_bf16 v{S[2+r]}, v{x}, v{x}, v{S[2+r]}')
    for rr in (1, 2, 4, 8):
        for i in range(4): A(f'v_add_f32_dpp v{S[i]}, v{S[i]}, v{S[i]} row_ror:{rr} row_mask:0xf bank_mask:0xf')
    for op in ('v_permlane16_swap_b32', 'v_permlane32_swap_b32'):
        for i in range(4): A(f'v_mov_b32 v{T[i]}, v{S[i]}')
        for i in range(4): A(f'{op} v{S[i]}, v{T[i]}')
        for i in range(4): A(f'v_add_f32 v{S[i]}, v{S[i]}, v{T[i]}')
    Ls = []
    for r in range(2):
        m, e2, a, b = S[r], S[2 + r], T[r], T[2 + r]
        Ls.append([f'v_mul_f32 v{m}, {f32(1/512)}, v{m}', f'v_mul_f32 v{e2}, {f32(1/512)}, v{e2}',
                   f'v_fma_f32 v{e2}, -v{m}, v{m}, v{e2}', f'v_max_f32 v{e2}, 0, v{e2}'] + bf16r(e2, e2) + bf16r(m, m) +
                  [f'v_add_f32 v{e2}, {f32(1e-5)}, v{e2}'] + bf16r(e2, e2) + [f'v_sqrt_f32 v{e2}, v{e2}'] + bf16r(e2, e2) +
                  [f'v_rcp_f32 v{a}, v{e2}', f'v_mul_f32_e64 v{b}, -v{m}, v{a}', f'v_lshrrev_b32 v{m}, 16, v{m}', f'v_or_b32 v{m}, v{m}, v{e2}'])
    A('\n'.join(interleave(*Ls)))
    vSy, vI1 = vSyM, vOneM
    A(f"""v_readfirstlane_b32 s{sNon}, v199
    v_mov_b32 v{vSy}, {LSY}
    v_mov_b32 v{vI1}, 1
    s_mul_i32 s{sNon}, s{sNon}, 0x9e3779b1
    s_add_u32 s{sNon}, s{sNon}, 0x7f4a7c15
    v_cmp_eq_u32 vcc, 1, v1
    v_cndmask_b32 v{vTmp+8}, v{S[0]}, v{S[1]}, vcc
    v_mov_b32 v{vTmp+9}, s{sNon}
    ds_write_b32 v{vSy}, v{vTmp+9} offset:32""")
    for r in range(2):
        for j in range(4):
            x = vRow + 4 * r + j; u = vTmp + 10 + 2 * (j & 1)
            A(f"""v_lshlrev_b32 v{u}, 16, v{x}
            v_and_b32 v{u+1}, 0xffff0000, v{x}
            v_fma_f32 v{u}, v{u}, v{T[r]}, v{T[2+r]}
            v_fma_f32 v{u+1}, v{u+1}, v{T[r]}, v{T[2+r]}
            v_cvt_pk_f16_f32 v{x}, v{u}, v{u+1}""")
    A(f"""s_mul_i32 s{sT0}, s{mw}, {2*LNP}
    s_add_u32 s{sT0}, s{sT0}, {LNB}
    v_add_u32 v{t0}, s{sT0}, v198
    ds_write_b128 v{t0}, {v(vRow,4)}
    ds_write_b128 v{t0}, {v(vRow+4,4)} offset:{LNP}""")
    lds_inc(A, vSy, SY_XN, vI1)
    A(f"""v_bfe_u32 v{t0}, v1, 2, 2
    v_mul_u32_u24 v{t0}, {LNP}, v{t0}
    v_lshrrev_b32 v{t1}, 4, v1
    v_lshl_add_u32 v{t0}, v{t1}, 5, v{t0}
    v_and_b32 v{t1}, 3, v1
    v_lshl_add_u32 v{t0}, v{t1}, 3, v{t0}
    s_lshl_b32 s{sT0}, s{mw}, 8
    s_add_u32 s{sT0}, s{sT0}, {LNB}
    v_add_u32 v{t0}, s{sT0}, v{t0}""")
    lds_wait(A, 'L_WXN', vSy, SY_XN, 4, t3, sT0)
    for i in range(2):
        for hh in range(2): A(f'ds_read_b64_tr_b16 {v(vRow+4*i+2*hh,2)}, v{t0} offset:{128*i+4*LNP*hh}')
    ST('xn')
    lq = Q(A, 'lgkmcnt', 15)
    def reads(st, kap):
        slot = st & 3; f = F[kap]; L = []
        for q in range(2): L.append((f'ds_read_b128 {v(f+28+4*q,4)}, v{vXr+kap} offset:{Aslot(slot)+q*2048}', (st, kap, 0)))
        for tau in range(7):
            for hh in range(2):
                L.append((f'ds_read_b64_tr_b16 {v(f+4*tau+2*hh,2)}, v{vWr+tau} offset:{slot*16384+kap*8192+hh*1024}', (st, kap, tau)))
        return L
    def emit(rd):
        for t, tag in rd: A(t); lq.add(tag)
    vSyM, vOneM, vFl = 14, 15, 3
    def kstep(st, kap, rd, first=False, bar_at=None, bar_fn=None):
        f = F[kap]; k = 0; n = 0
        start = 0 if bar_at is None else bar_at
        slots = 14 - start - 1
        flag = False
        if flag: A(f'ds_read_b32 v{vFl}, v{vSyM} offset:{CERT(st+1)}'); lq.add('fl')
        for tau in range(7):
            lq.wait((st, kap, tau))
            for q in range(2):
                if n == bar_at:
                    lq.all()
                    if flag:
                        A(f'v_readfirstlane_b32 s{sT0}, v{vFl}')
                        lds_inc(A, vSyM, DONE(st), vOneM); lq.add('dn')
                        A(f's_cmp_ge_u32 s{sT0}, {0 if cfg.get("nocheck") else 4}')
                        A(f's_cbranch_scc1 L_CK{st}')
                        lds_wait(A, f'L_CW{st}', vSyM, CERT(st+1), 4, vFl, sT0)
                        A.label(f'L_CK{st}', fence=False)
                    else:
                        if st == cfg.get('f1st', 2) - 1: A('s_waitcnt vmcnt(0)')
                        if st == cfg.get('f1st', 2):
                            A(f"""s_lshl_b32 s{sT1}, s{sDP}, 2
                            s_add_u32 s{sT1}, s{sT1}, {WS_F1}
                            v_mov_b32 v{t0}, 0
                            s_cmp_eq_u32 s{mw}, 0
                            s_cselect_b32 exec_lo, 1, 0
                            s_mov_b32 exec_hi, 0
                            s_cbranch_scc0 L_NOF1
                            buffer_store_dword v{vFl}, v{t0}, s[{sWS}:{sWS+3}], s{sT1} offen{SC}""")
                            A.label('L_NOF1', fence=False)
                            A('s_mov_b64 exec, -1')
                        A('s_barrier')
                    bar_fn and bar_fn()
                a = ACC + 8 * tau + 4 * q
                A(f'v_mfma_f32_16x16x32_bf16 {v(a,4)}, {v(f+4*tau,4)}, {v(f+28+4*q,4)}, {"0" if first else v(a,4)}')
                if n >= start:
                    want = min(len(rd), -(-len(rd) * (n - start + 1) // slots))
                    emit(rd[k:want]); k = max(k, want)
                n += 1
        emit(rd[k:])
    A(f"""v_lshlrev_b32 v{t0}, 3, v1
    s_lshl_b32 s{sT0}, s{sDP}, 6
    s_lshl_b32 s{sT1}, s{mw}, 4
    s_add_u32 s{sT0}, s{sT0}, s{sT1}
    s_add_u32 s{sT0}, s{sT0}, {WS_GR}
    s_mov_b64 exec, 3
    buffer_store_dwordx2 {v(vTmp+8,2)}, v{t0}, s[{sWS}:{sWS+3}], s{sT0} offen{SC}
    s_mov_b64 exec, -1
    s_lshl_b32 s{sT0}, s{sDP}, 13
    s_lshl_b32 s{sT1}, s{mw}, 11
    s_add_u32 s{sT0}, s{sT0}, s{sT1}
    s_add_u32 s{sT0}, s{sT0}, {WS_XN}
    s_waitcnt lgkmcnt(0)
    buffer_store_dwordx4 {v(vRow,4)}, v198, s[{sWS}:{sWS+3}], s{sT0} offen{SC}
    buffer_store_dwordx4 {v(vRow+4,4)}, v198, s[{sWS}:{sWS+3}], s{sT0} offen offset:1024{SC}
    s_waitcnt lgkmcnt(0)""")
    ST('kg')
    A('s_barrier')
    ST('B0')
    emit(reads(0, 0))
    A(f'v_mov_b32 v{vFl}, s{sNon}')
    ab = 20; cs = 24
    BA = cfg.get('bar_at', 4)
    for st in range(8):
        kstep(st, 0, reads(st, 1), first=(st == 0))
        if st < 7:
            def bf(st=st):
                ST(f'B{st+1}')
            kstep(st, 1, reads(st + 1, 0), bar_at=BA, bar_fn=bf)
        else:
            A(f"""v_and_b32 v{t0}, 15, v1
            s_lshl_b32 s{sT0}, s{mw}, 8
            s_add_u32 s{sT0}, s{sT0}, {LSTAT}
            v_lshl_add_u32 v{t1}, v{t0}, 3, s{sT0}
            v_lshrrev_b32 v{t0}, 4, v1
            v_lshlrev_b32 v{t0}, 4, v{t0}
            v_add_u32 v{t0}, {LCS}, v{t0}""")
            rd = [(f'ds_read_b64 {v(ab,2)}, v{t1}', 'e'), (f'ds_read_b64 {v(ab+2,2)}, v{t1} offset:128', 'e')]
            rd += [(f'ds_read_b128 {v(cs+4*tau,4)}, v{t0} offset:{64*tau}', 'e') for tau in range(7)]
            kstep(st, 1, rd, bar_at=BA, bar_fn=lambda: ST('B8'))
    ST('g1')
    if cfg.get('mprio', 2): A(f's_setprio {cfg.get("mprio", 2)}')
    sHb, sHs = sA, sC
    A(f"""s_lshl_b32 s{sT0}, s{sRB}, 3
    s_lshl_b32 s{sT1}, s{mw}, 1
    s_add_u32 s{sT0}, s{sT0}, s{sT1}
    s_mul_i32 s{sT0}, s{sT0}, 56
    s_lshr_b32 s{sT1}, s{sCB}, 1
    s_mul_i32 s{sT1}, s{sT1}, 7
    s_add_u32 s{sT0}, s{sT0}, s{sT1}
    s_lshl_b32 s{sT0}, s{sT0}, 10
    s_lshl_b32 s{sT1}, s{sOdd}, 12
    s_add_u32 s{sHb}, s{sT0}, s{sT1}
    s_add_u32 s{sHb+1}, s{sHb}, {56*1024}
    s_lshl_b32 s{sT1}, s{sOdd}, 9
    s_add_u32 s{sHs}, s{sT0}, s{sT1}
    s_add_u32 s{sHs}, s{sHs}, 3072
    v_and_b32 v{t0}, 15, v1
    v_lshlrev_b32 v{t0}, 4, v{t0}
    v_lshrrev_b32 v{t2}, 5, v1
    v_lshl_add_u32 v{t0}, v{t2}, 8, v{t0}
    v_bfe_u32 v{t2}, v1, 4, 1
    v_lshl_add_u32 v{t1}, v{t2}, 9, v{t0}
    v_mul_u32_u24 v{t2}, {56*1024}, v{t2}
    v_add_u32 v{t2}, v{t2}, v{t0}
    s_mov_b32 s{sM0}, {NLOG2E}
    s_mov_b32 s{sM0+1}, {NLOG2E}
    v_mov_b32 v2, {NLOG2E}
    v_mov_b32 v3, {NLOG2E}
    s_waitcnt lgkmcnt(0)""")
    Zs = [56, 72]; Es = [64, 80]; O = [148, 152]
    groups = [[(2 * g, q), (2 * g + 1, q)] for q in range(2) for g in range(3)] + [[(6, 0), (6, 1)]]
    def part1(gi):
        Z = Zs[gi & 1]; E = Es[gi & 1]; L = []
        prs = [(tau, q, p) for tau, q in groups[gi] for p in range(2)]
        for n, (tau, q, p) in enumerate(prs):
            c = cs + 4 * tau + 2 * p
            L.append(f'v_pk_mul_f32 {v(Z+2*n,2)}, {v(c,2)}, {v(ab+2*q,2)} op_sel:[0,1] op_sel_hi:[1,1]')
        for n, (tau, q, p) in enumerate(prs):
            a = ACC + 8 * tau + 4 * q + 2 * p
            L.append(f'v_pk_fma_f32 {v(Z+2*n,2)}, {v(a,2)}, {v(ab+2*q,2)}, {v(Z+2*n,2)} op_sel:[0,0,0] op_sel_hi:[1,0,1]')
        for n in range(8): L.append(f'v_exp_f32 v{E+n}, v{Z+n}')
        for n in range(4): L.append(f'v_pk_fma_f32 {v(E+2*n,2)}, {v(E+2*n,2)}, s[{sM0}:{sM0+1}], v[2:3]')
        for n in range(8): L.append(f'v_rcp_f32 v{E+n}, v{E+n}')
        for n in range(4): L.append(f'v_pk_mul_f32 {v(Z+2*n,2)}, {v(Z+2*n,2)}, {v(E+2*n,2)}')
        o = O[gi & 1]
        for n in range(4): L.append(f'v_cvt_pk_bf16_f32 v{o+n}, v{Z+2*n}, v{Z+2*n+1}')
        T = [f'v_permlane16_swap_b32 v{o}, v{o+2}', f'v_permlane16_swap_b32 v{o+1}, v{o+3}']
        if gi < 6: T.append(f'buffer_store_dwordx4 {v(o,4)}, v{t1}, s[{sWS}:{sWS+3}], s{sHb+gi//3} offen offset:{1024*(gi%3)}{SC}')
        else: T.append(f'buffer_store_dwordx4 {v(o,4)}, v{t2}, s[{sWS}:{sWS+3}], s{sHs} offen{SC}')
        return L, T
    pend = []
    for gi in range(7):
        L, T = part1(gi)
        A('\n'.join(L[:2] + pend + L[2:])); pend = T
    A('\n'.join(pend))
    ST('epi')
    cw = mw
    sCh, sHF, sUb, sKb = sA, sB, sC, sE
    vK, vU, vSy, vOne, vL16 = 4, 5, 6, 7, 13
    A(f"""s_lshr_b32 s{sCh}, s{cw}, 1
    s_and_b32 s{sHF}, s{cw}, 1
    s_mul_i32 s{sUb}, s{sCh}, {UP}
    s_add_u32 s{sUb}, s{sUb}, {LU}
    s_mul_i32 s{sKb}, s{sCh}, {4*KCP}
    s_add_u32 s{sKb}, s{sKb}, {LKC}
    v_lshlrev_b32 v{vL16}, 4, v1
    v_mov_b32 v{vSy}, {LSY}
    v_mov_b32 v{vOne}, 1
    s_lshl_b32 s{sT0}, s{sCh}, 2
    v_add_u32 v{t0}, s{sT0}, v{vSy}
    v_and_b32 v{t1}, 3, v1
    v_sub_u32 v{t1}, 3, v{t1}
    v_mul_u32_u24 v{t1}, {KCP}, v{t1}
    v_bfe_u32 v{t2}, v1, 2, 2
    v_lshrrev_b32 v{t3}, 4, v1
    v_lshlrev_b32 v{vK}, 1, v{t3}
    v_sub_u32 v{vK}, v{vK}, v{t2}
    v_lshl_add_u32 v{vK}, v{vK}, 3, v{t1}
    s_lshl_b32 s{sT0}, s{sHF}, 8
    s_sub_u32 s{sT1}, s{sKb}, s{sT0}
    s_add_u32 s{sT1}, s{sT1}, {8*507-192-3584}
    v_add_u32 v{vK}, s{sT1}, v{vK}
    v_and_b32 v{t1}, 15, v1
    v_lshlrev_b32 v{t1}, 5, v{t1}
    v_lshl_add_u32 v{vU}, v{t3}, 4, v{t1}
    s_sub_u32 s{sT1}, s{sUb}, s{sT0}
    s_add_u32 s{sT1}, s{sT1}, {448-192}
    v_add_u32 v{vU}, s{sT1}, v{vU}""")
    def flag(word, soff_code, lbl):
        A('s_waitcnt vmcnt(0)')
        lds_inc(A, vSy, word, vOne, rtn=t3)
        A(soff_code + f"""
        v_mov_b32 v{t1}, 0
        v_mov_b32 v{t2}, s{sNon}
        s_waitcnt lgkmcnt(0)
        v_readfirstlane_b32 s{sT0}, v{t3}
        s_cmp_lg_u32 s{sT0}, 3""")
        A.fwd_branch(f's_cbranch_scc1 {lbl}')
        A(f's_mov_b64 exec, 1\nbuffer_store_dword v{t2}, v{t1}, s[{sWS}:{sWS+3}], s{sT1} offen{SC}\ns_mov_b64 exec, -1')
        A.label(lbl)
    flag(SY_H, f's_lshl_b32 s{sT1}, s{sRB}, 4\ns_add_u32 s{sT1}, s{sT1}, s{sCB}\ns_lshl_b32 s{sT1}, s{sT1}, 2\ns_add_u32 s{sT1}, s{sT1}, {WS_F2}', 'L_NOF2')
    ST('f2')
    lds_wait(A, 'L_WK', t0, SY_K, 2, t3, sT0, sleep=1)
    lds_wait(A, 'L_WU', vSy, SY_U, 4, t3, sT0, sleep=1)
    ST('cv0')
    ACC = 20
    FK = [52, 116]; FU = [84, 148]
    def creads(rl):
        b = rl & 1; L = []
        for m in range(8):
            L.append(f'ds_read_b128 {v(FU[b]+4*m,4)}, v{vU} offset:{512*m+64*(3-rl)}')
            for hh in range(2):
                L.append(f'ds_read_b64 {v(FK[b]+4*m+2*hh,2)}, v{vK} offset:{512*(7-m)+64*(3-rl)+8*hh}')
        return L
    A('\n'.join(creads(0)))
    load_x_final(A)
    for rl in range(4):
        b = rl & 1
        nxt = creads(rl + 1) if rl < 3 else []
        A('s_waitcnt lgkmcnt(0)')
        if rl == 3: lds_inc(A, vSy, SY_CV, vOne)
        k = 0
        for m in range(8):
            for jj in range(8 - m):
                a = ACC + 4 * (m + jj)
                A(f'v_mfma_f32_16x16x32_f16 {v(a,4)}, {v(FK[b]+4*m,4)}, {v(FU[b]+4*jj,4)}, {"0" if rl == 0 and m == 0 else v(a,4)}')
                if k < len(nxt): A(nxt[k])
                k += 1
    ST('cv1')
    lds_wait(A, 'L_WCV', vSy, SY_CV, 4, t3, sT0)
    A(f"""s_lshl_b32 s{sT0}, s{cw}, 13
    s_add_u32 s{sT0}, s{sT0}, {LEX}
    v_add_u32 v{t1}, s{sT0}, v{vL16}""")
    for i in range(8): A(f'ds_write_b128 v{t1}, {v(ACC+4*i,4)} offset:{1024*i}')
    UU = 116; YS = 124
    A(f"""s_lshl_b32 s{sT0}, s{cw}, 11
    s_add_u32 s{sT1}, s{sT0}, {LEX}
    v_add_u32 v{t0}, s{sT1}, v{vL16}
    v_and_b32 v{vK}, 15, v1
    v_lshrrev_b32 v{vU}, 4, v1
    v_lshlrev_b32 v{vU}, 2, v{vU}
    v_lshl_add_u32 v{vK}, v{vK}, 4, v{vU}
    s_lshl_b32 s{sT1}, s{cw}, 10
    s_add_u32 s{sT1}, s{sT1}, {LU+480}
    v_lshl_add_u32 v{vU}, v{vK}, 1, s{sT1}
    v_lshlrev_b32 v{vK}, 2, v{vK}
    s_lshl_b32 s{sT2}, s{sDP}, 13
    s_add_u32 s{sT2}, s{sT2}, s{sT0}
    s_add_u32 s{sT2}, s{sT2}, {WS_SP}
    s_and_b32 s{sE}, s{sD}, 0xffff0000
    s_lshl_b32 s{sD}, s{sD}, 16
    s_waitcnt lgkmcnt(0)""")
    for ti in range(2):
        for c in range(2): A(f'ds_read_b64 {v(UU+4*ti+2*c,2)}, v{vU} offset:{512*ti+UP*c}')
    lds_inc(A, vSy, SY_EX, vOne)
    A(f'ds_read_b64 {v(YS,2)}, v{vSy} offset:40')
    lds_wait(A, 'L_WEX', vSy, SY_EX, 4, t3, sT0)
    PB = 52
    for ti in range(2):
        for w in range(4): A(f'ds_read_b128 {v(PB+16*ti+4*w,4)}, v{t0} offset:{8192*w+1024*ti}')
    for ti in range(2):
        A(f's_waitcnt lgkmcnt({4-4*ti})')
        for c in range(2):
            p0, p1 = PB + 16 * ti + 8 * c, PB + 16 * ti + 8 * c + 4
            for e in range(4): A(f'v_add_f32 v{p0+e}, v{p0+e}, v{p1+e}')
            for e in range(4): A(f'v_mul_f32 v{p0+e}, v{YS+c}, v{p0+e}')
            for e in range(4): A(f'v_fma_mix_f32 v{p0+e}, v{UU+4*ti+2*c+(e>>1)}, s{sD+c}, v{p0+e} op_sel:[{e&1},0,0] op_sel_hi:[1,0,0]')
        o = 128 + 4 * ti
        for e in range(4): A(f'v_cvt_pk_bf16_f32 v{o+e}, v{PB+16*ti+e}, v{PB+16*ti+8+e}')
        A(f'buffer_store_dwordx4 {v(o,4)}, v{vK}, s[{sWS}:{sWS+3}], s{sT2} offen offset:{1024*ti}{SC}')
    flag(SY_S, f's_lshl_b32 s{sT1}, s{sDP}, 2\ns_add_u32 s{sT1}, s{sT1}, {WS_F3}', 'L_NOF3')
    ST('f3')
    A(f"""v_and_b32 v{t1}, 7, v1
    v_lshlrev_b32 v{t1}, 2, v{t1}
    s_lshl_b32 s{sA}, s{sCB2}, 7
    s_lshl_b32 s{sT1}, s{cw}, 5
    s_add_u32 s{sA}, s{sA}, s{sT1}
    s_add_u32 s{sA}, s{sA}, {WS_F3}
    v_lshrrev_b32 v{vK}, 4, v1
    v_and_b32 v{vU}, 15, v1
    v_lshlrev_b32 v{t2}, 4, v{vU}
    v_lshl_add_u32 v{t2}, v{vK}, 13, v{t2}
    s_lshl_b32 s{sT1}, s{sCB2}, 18
    s_lshl_b32 s{sT2}, s{cw}, 16
    s_add_u32 s{sT1}, s{sT1}, s{sT2}
    s_lshl_b32 s{sT2}, s{sRB2}, 8
    s_add_u32 s{sT1}, s{sT1}, s{sT2}
    s_add_u32 s{sT1}, s{sT1}, {WS_SP}
    s_add_u32 s{sT2}, s{sT1}, {4*8192}
    s_lshl_b32 s{sB}, s{cw}, 3
    v_add_u32 v{vK}, s{sB}, v{vK}
    v_and_b32 v{t3}, 7, v1
    v_lshlrev_b32 v{t3}, 2, v{t3}
    v_xor_b32 v{vK}, v{vK}, v{t3}
    v_lshlrev_b32 v{vK}, 2, v{vK}
    v_lshl_add_u32 v{vK}, v{vU}, 9, v{vK}
    v_add_u32 v{vK}, {LS}, v{vK}
    v_xor_b32 v{vU}, 16, v{vK}""")
    lds_wait(A, 'L_WT', vSy, SY_TRIG, 1, t3, sT0, sleep=4)
    gpoll(A, 'L_P3', f'buffer_load_dword v{t3}, v{t1}, s[{sWS}:{sWS+3}], s{sA} offen{SC}', [t3])
    ST('p3')
    A(f"""buffer_load_dwordx4 v[44:47], v{t2}, s[{sWS}:{sWS+3}], s{sT1} offen{SC}
    buffer_load_dwordx4 v[48:51], v{t2}, s[{sWS}:{sWS+3}], s{sT2} offen{SC}
    s_waitcnt vmcnt(1)""")
    for e in range(4): A(f'ds_write_b32 v{vK}, v{44+e} offset:{128*e}')
    A('s_waitcnt vmcnt(0)')
    for e in range(4): A(f'ds_write_b32 v{vU}, v{48+e} offset:{128*e}')
    A.fwd_branch('s_branch L_FINAL')

def gen_H(A, cfg, ST):
    ST.role = 'H'
    A.label('L_H')
    hw = sWave
    vXo_, vWo = 16, 20
    vWr = 24
    vOne = 32
    t0, t1, t2, t3 = 36, 37, 38, 39
    vH, vW, vR = 48, 52, 56
    vRow = 64
    vTmp = 72
    vCS, vFw = 192, 220
    sXb, sWb, sLb, sCk = sA, sB, sC, sD
    sH, sWo, sK, sKw = 30, 31, 38, 39
    vq = Q(A, 'vmcnt', 63)
    A0 = A; A = BG(A0, vq, cfg.get('every', 6))
    b0, b1, b2 = 28, 29, 17
    def vwait(tag): A.flush(tag); vq.wait(tag)
    A(f"""v_lshrrev_b32 v{t0}, 3, v1
    v_lshrrev_b32 v{t1}, 4, v1
    v_and_b32 v{t2}, 7, v1
    v_xor_b32 v{t2}, v{t2}, v{t1}
    v_lshlrev_b32 v{t2}, 4, v{t2}
    v_lshl_add_u32 v{vXo_}, v{t0}, 10, v{t2}
    v_xor_b32 v{t3}, 64, v{vXo_}
    v_add_u32 v{vXo_+1}, 7168, v{t3}
    v_add_u32 v{vXo_+2}, 14336, v{vXo_}
    v_add_u32 v{vXo_+3}, 21504, v{t3}""")
    for half in range(2):
        A(f"""v_bfe_u32 v{t0}, v1, 1, 3
        v_xor_b32 v{t0}, v{t0}, v{t1}
        v_xor_b32 v{t0}, {4*half}, v{t0}
        v_and_b32 v{t2}, 1, v1
        v_lshl_add_u32 v{t2}, v{t0}, 1, v{t2}
        s_lshl_b32 s{sT0}, s{sOdd}, 1
        v_add_u32 v{t2}, s{sT0}, v{t2}
        v_subrev_u32 v{t3}, 14, v{t2}
        v_cmp_gt_u32 vcc, 14, v{t2}
        v_cndmask_b32 v{t2}, v{t3}, v{t2}, vcc
        v_lshlrev_b32 v{t2}, 4, v{t2}
        v_mul_u32_u24 v{t3}, 3584, v{t1}
        v_add_u32 v{t2}, v{t2}, v{t3}
        v_mov_b32 v{t3}, 0x7f000000
        v_cmp_eq_u32 vcc, 7, v{t0}
        v_cndmask_b32 v{t2}, v{t2}, v{t3}, vcc
        v_add_u32 v{vWo+2*half}, {(2*half)*13312}, v{t2}
        v_add_u32 v{vWo+2*half+1}, {(2*half+1)*13312}, v{t2}""")
    A(f"""s_lshl_b32 s{sXb}, s{sRB}, 17
    s_lshl_b32 s{sT0}, s{hw}, 15
    s_add_u32 s{sXb}, s{sXb}, s{sT0}
    s_mul_i32 s{sWb}, s{hw}, {16*3584}
    s_mul_i32 s{sT0}, s{sCB}, 224
    s_add_u32 s{sWb}, s{sWb}, s{sT0}
    s_lshl_b32 s{sLb}, s{hw}, 12
    v_lshlrev_b32 v13, 4, v1
    s_lshr_b32 s{sT0}, s{hw}, 1
    s_lshl_b32 s{sT2}, s{sDP}, 1
    s_add_u32 s{sT2}, s{sT2}, s{sT0}
    s_and_b32 s{sT1}, s{hw}, 1
    s_lshl_b32 s{sT1}, s{sT1}, 7
    s_lshl_b32 s{sT0}, s{sT2}, 8
    s_add_u32 s{sT0}, s{sT0}, s{sT1}
    v_lshl_add_u32 v100, v1, 1, s{sT0}
    v_xor_b32 v101, 128, v100
    s_lshl_b32 s{sT0}, s{sT2}, 1
    v_mov_b32 v102, s{sT0}
    s_waitcnt lgkmcnt(0)""")
    srd(A, sX, pX, 2048 * 1024); srd(A, sW1, pW1, 512 * 3584)
    KB = 44; kP = 64 + KB; D = 232
    A(f"""s_barrier
    global_load_ushort v{kP+6}, v102, s[{pLDT}:{pLDT+1}]
    global_load_ushort v{kP+0}, v100, s[{pLAR}:{pLAR+1}]
    global_load_ushort v{kP+1}, v100, s[{pAIM}:{pAIM+1}]
    global_load_ushort v{kP+2}, v100, s[{pCRE}:{pCRE+1}]
    global_load_ushort v{kP+3}, v100, s[{pCIM}:{pCIM+1}]
    global_load_ushort v{kP+4}, v101, s[{pCRE}:{pCRE+1}]
    global_load_ushort v{kP+5}, v101, s[{pCIM}:{pCIM+1}]""", 'par')
    ST('ld')
    def dma(st, now=False):
        slot = st & 3
        for i in range(4):
            pre = ''
            if i == 0:
                pre = f's_add_u32 s{b2}, s{sCh0}, {st}\ns_and_b32 s{b2}, s{b2}, 7\ns_lshl_b32 s{b0}, s{b2}, 7\ns_add_u32 s{b0}, s{b0}, s{sXb}\ns_add_u32 m0, s{sLb}, {Aslot(slot)}\ns_mul_i32 s{b1}, s{b2}, {64*3584}\ns_add_u32 s{b1}, s{b1}, s{sWb}\n'
            A.push(pre + f'buffer_load_dwordx4 v{vXo_+i}, s[{sX}:{sX+3}], s{b0} offen offset:{1024*i} lds', ('d', st))
        for i in range(4):
            pre = f's_add_u32 m0, s{sLb}, {Bslot(slot)}\n' if i == 0 else ''
            A.push(pre + f'buffer_load_dwordx4 v{vWo+i}, s[{sW1}:{sW1+3}], s{b1} offen offset:{1024*i} lds', ('d', st))
        if now: A.flush()
    dma(0, now=True)
    dma(1); A.pop(); A.pop()
    srd(A, sWS, pWS, WS_SIZE); srd(A, sW2, pW2, 1792 * 1024); srd(A, sOUT, pOUT, 2048 * 1024)
    A(f"""v_bfe_u32 v{t0}, v1, 4, 1
    v_bfe_u32 v{t1}, v1, 2, 2
    v_lshl_or_b32 v{t2}, v{t0}, 2, v{t1}
    v_lshl_add_u32 v{t0}, v{t0}, 3, v{t1}
    v_lshrrev_b32 v{t1}, 5, v1
    v_lshl_add_u32 v{t0}, v{t1}, 2, v{t0}
    v_and_b32 v{t1}, 3, v1
    v_lshlrev_b32 v{t1}, 3, v{t1}
    v_lshl_add_u32 v{t3}, v{t0}, 8, v{t1}
    s_add_u32 s{sT0}, s{sLb}, {Bslot(0)}
    v_add_u32 v{t3}, s{sT0}, v{t3}""")
    for P in range(7): A(f'v_xor_b32 v{t0}, {P}, v{t2}\nv_lshl_add_u32 v{vWr+P}, v{t0}, 5, v{t3}')
    for i in range(4): A(f'v_mov_b32 v{vOne+i}, 0x3f803f80')
    A(f"""v_lshlrev_b32 v{vH}, 4, v1
    v_add_u32 v{vH+1}, {57344}, v{vH}
    v_add_u32 v{vH+2}, {2*57344}, v{vH}
    v_add_u32 v{vH+3}, {3*57344}, v{vH}
    s_mul_i32 s{sH}, s{sRB2}, {4*57344}
    s_mul_i32 s{sT0}, s{hw}, {14*1024}
    s_add_u32 s{sH}, s{sH}, s{sT0}
    v_lshrrev_b32 v{t0}, 3, v1
    v_bfe_u32 v{t1}, v1, 4, 1
    v_lshlrev_b32 v{t1}, 1, v{t1}
    v_and_b32 v{t2}, 7, v1
    v_xor_b32 v{t2}, v{t2}, v{t1}
    v_lshlrev_b32 v{t2}, 4, v{t2}
    v_lshl_add_u32 v{vW}, v{t0}, 10, v{t2}
    v_xor_b32 v{t3}, 64, v{vW}
    v_add_u32 v{vW+1}, 7168, v{t3}
    v_add_u32 v{vW+2}, 14336, v{vW}
    v_add_u32 v{vW+3}, 21504, v{t3}
    s_mul_i32 s{sWo}, s{hw}, {14*32768}
    s_lshl_b32 s{sT0}, s{sCB2}, 7
    s_add_u32 s{sWo}, s{sWo}, s{sT0}
    s_mov_b32 s{sKw}, s{sK0}
    s_mov_b32 s{sK}, s{sK0}
    v_lshrrev_b32 v{t0}, 4, v1
    v_bfe_u32 v{t1}, v1, 2, 2
    v_lshl_add_u32 v{t0}, v{t0}, 3, v{t1}
    v_bfe_u32 v{t1}, v1, 3, 2
    v_and_b32 v{t2}, 3, v1
    v_lshlrev_b32 v{t2}, 3, v{t2}
    v_lshl_add_u32 v{t2}, v{t0}, 7, v{t2}
    v_add_u32 v{t2}, s{sLb}, v{t2}""")
    for T in range(4): A(f'v_xor_b32 v{t3}, {T}, v{t1}\nv_lshl_add_u32 v{vR+T}, v{t3}, 5, v{t2}')
    for T in range(4): A(f'v_add_u32 v{vR+4+T}, 65536, v{vR+T}')
    ST('d01')
    vSy, vI1 = 6, 7
    A(f'v_mov_b32 v{vSy}, {LSY}\nv_mov_b32 v{vI1}, 1')
    def colsum(st):
        slot = st & 3
        vwait(('d', st))
        for P in range(7): A(f'ds_read_b64_tr_b16 {v(vFw+4*P+2*(st&1),2)}, v{vWr+P} offset:{slot*16384}')
        A('s_waitcnt lgkmcnt(0)')
        if st == 7:
            for P in range(4, 7): A(f'v_mov_b32 v{vFw+4*P}, 0\nv_mov_b32 v{vFw+4*P+1}, 0')
        for P in range(7):
            if (P < 4 and st & 1) or (P >= 4 and (not st & 1 or st == 7)):
                A(f'v_mfma_f32_16x16x32_bf16 {v(vCS+4*P,4)}, {v(vFw+4*P,4)}, {v(vOne,4)}, {"0" if st <= 1 else v(vCS+4*P,4)}')
    for P in range(4, 7): A(f'v_mov_b32 v{vFw+4*P+2}, 0\nv_mov_b32 v{vFw+4*P+3}, 0')
    ST('pre')
    NREG = cfg.get('nreg', 8)
    WR = 192 - 16 * NREG
    def ldW(i):
        for e in range(4):
            pre = f's_add_u32 m0, s{sLb}, {RING[i % 6]}\ns_lshl_b32 s{b0}, s{sKw}, 15\ns_add_u32 s{b0}, s{sWo}, s{b0}\ns_add_u32 s{sKw}, s{sKw}, 1\ns_cmp_eq_u32 s{sKw}, 14\ns_cselect_b32 s{sKw}, 0, s{sKw}\n' if e == 0 else ''
            A.push(pre + f'buffer_load_dwordx4 v{vW+e}, s[{sW2}:{sW2+3}], s{b0} offen offset:{1024*e} lds', ('w', i))
    def rdW(i, dst):
        base = RING[i % 6]; hi = 4 if base >= 65536 else 0; base &= 65535
        for T in range(4):
            for hh in range(2):
                A(f'ds_read_b64_tr_b16 {v(dst+4*T+2*hh,2)}, v{vR+hi+T} offset:{base+hh*512}')
    nw = [0]
    def ldWn(n):
        for _ in range(n): ldW(nw[0]); nw[0] += 1
    def cert(st):
        vwait(('d', st)); lds_inc(A0, vSy, CERT(st), vI1); ST(f'c{st}')
    def wdone(st): lds_wait(A0, f'L_DN{st}', vSy, DONE(st), 4, t3, sT0, sleep=1); ST(f'w{st}')
    def pop3():
        for _ in range(3):
            if A.q: A.pop()
    def bar(st):
        if st < 8: vwait(('d', st))
        ST(f'b{st}'); A0('s_barrier'); ST(f'B{st}')
    A(f"""s_lshl_b32 s{sT0}, s{sK0}, 5
    s_mul_i32 s{sT1}, s{hw}, {448*1024}
    s_lshl_b32 s{sT2}, s{sCB2}, 7
    s_add_u32 s{sT1}, s{sT1}, s{sT2}""")
    for k in range(2):
        A(f"""v_add_u32 v{t0}, s{sT0}, v1
        v_add_u32 v{t0}, {48*k}, v{t0}
        v_subrev_u32 v{t1}, 448, v{t0}
        v_cmp_gt_u32 vcc, 448, v{t0}
        v_cndmask_b32 v{t0}, v{t1}, v{t0}, vcc
        v_lshl_add_u32 v{45+k}, v{t0}, 10, s{sT1}""")
    sF1 = 16
    A(f"""v_and_b32 v{t0}, 31, v1
    v_lshlrev_b32 v2, 3, v{t0}
    s_lshl_b32 s{sE}, s{sRB}, 10
    s_lshl_b32 s{sT1}, s{hw}, 8
    s_add_u32 s{sE}, s{sE}, s{sT1}
    s_add_u32 s{sE}, s{sE}, {WS_GR}
    s_mov_b32 s{sF1}, {WS_F1}""")
    A.flush()
    kg_addr, kg_setup, kg_main, PA = kgen_pre(hw, D, KB)
    A('\n'.join(kg_addr))
    nd = [2]
    AHEAD = cfg.get('ahead', [2, 1, 1, 1, 1])
    kgs = list(kg_setup); kgm = list(kg_main)
    def run(L, n):
        A('\n'.join(L[:n])) if L[:n] else None
        del L[:n]
    for k in range(6):
        bar(k)
        for _ in range(AHEAD[k] if k < len(AHEAD) else 1):
            if nd[0] < 8:
                assert nd[0] <= k + 3
                dma(nd[0]); nd[0] += 1
        last = nd[0] == 8 and not A.q
        pop3()
        if last:
            A(f'buffer_load_dwordx2 v[4:5], v2, s[{sWS}:{sWS+3}], s{sE} offen{SC}', 'gl')
            if cfg.get('touch', 1):
                A(f'buffer_load_dword v250, v45, s[{sW2}:{sW2+3}], 0 offen\nbuffer_load_dword v251, v46, s[{sW2}:{sW2+3}], 0 offen', 'tw')
        if k == 0: A(f'ds_read_b32 v15, v{vSy} offset:32')
        colsum(k)
        if k == 0: A(f'v_readfirstlane_b32 s{sNon}, v15')
        if k < 5: run(kgs, cfg.get('kgs', 20))
        A.flush()
    assert 'gl' in vq.q
    colsum(6)
    run(kgs, 999)
    run(kgm, cfg.get('kgm', [20, 20, 20])[0])
    bar(6)
    A(f'buffer_load_dwordx4 v[40:43], v13, s[{sWS}:{sWS+3}], s{sF1} offen{SC}', 'f1')
    colsum(7)
    A(f"""s_lshl_b32 s{sT0}, s{hw}, 9
    s_add_u32 s{sT0}, s{sT0}, {LCSP}
    v_add_u32 v{t1}, s{sT0}, v1""")
    A0("s_mov_b32 exec_lo, 0x00010001\ns_mov_b32 exec_hi, 0x00010001")
    for P in range(7): A0(f'ds_write_b128 v{t1}, {v(vCS+4*P,4)} offset:{64*P}')
    A0('s_mov_b64 exec, -1')
    run(kgm, cfg.get('kgm', [20, 20, 20])[1])
    A0('s_waitcnt lgkmcnt(0)')
    bar(7)
    A(f"""v_and_b32 v{t0}, 31, v1
    s_lshl_b32 s{sT0}, s{hw}, 7
    v_lshl_add_u32 v{t0}, v{t0}, 2, s{sT0}
    v_add_u32 v{t0}, {LCSP}, v{t0}""")
    for w in range(4): A(f'ds_read_b32 v{vCS+w}, v{t0} offset:{512*w}')
    gpoll(A0, 'L_PG', f'buffer_load_dwordx2 v[4:5], v2, s[{sWS}:{sWS+3}], s{sE} offen{SC}', [5], first=lambda: vwait('gl'))
    A(f"""v_and_b32 v{t2}, 0xffff0000, v4
    v_lshlrev_b32 v{t3}, 16, v4
    v_rcp_f32 v{t2}, v{t2}
    s_lshl_b32 s{sT0}, s{hw}, 8
    s_add_u32 s{sT0}, s{sT0}, {LSTAT}
    v_add_u32 v{t1}, s{sT0}, v2
    v_mul_f32 v{t2}, {NLOG2E}, v{t2}
    v_mul_f32_e64 v{t3}, -v{t3}, v{t2}
    ds_write_b64 v{t1}, v[{t2}:{t3}]
    s_waitcnt lgkmcnt(1)
    v_add_f32 v{vCS}, v{vCS}, v{vCS+1}
    v_add_f32 v{vCS+2}, v{vCS+2}, v{vCS+3}
    v_add_f32 v{vCS}, v{vCS}, v{vCS+2}
    ds_write_b32 v{t0}, v{vCS} offset:{LCS-LCSP}""")
    run(kgm, cfg.get('kgm', [20, 20, 20])[2])
    A0('s_waitcnt lgkmcnt(0)')
    bar(8)
    run(kgm, cfg.get('kg8', 60))
    gpoll(A0, 'L_P1', f'buffer_load_dwordx4 v[40:43], v13, s[{sWS}:{sWS+3}], s{sF1} offen{SC}', [40, 41, 42, 43], first=lambda: vwait('f1'))
    ST('p1')
    UG = 200
    A(f"""v_lshrrev_b32 v{t0}, 1, v1
    v_and_b32 v{t1}, 1, v1
    v_lshlrev_b32 v{t2}, 4, v{t1}
    v_lshl_add_u32 v{t2}, v{t0}, 13, v{t2}
    s_lshl_b32 s{sT0}, s{sDP}, 5
    s_lshl_b32 s{sT1}, s{hw}, 19
    s_add_u32 s{sT0}, s{sT0}, s{sT1}
    s_add_u32 s{sT0}, s{sT0}, {WS_XN}
    s_add_u32 s{sT1}, s{sT0}, {32*8192}
    buffer_load_dwordx4 {v(UG,4)}, v{t2}, s[{sWS}:{sWS+3}], s{sT0} offen{SC}
    buffer_load_dwordx4 {v(UG+4,4)}, v{t2}, s[{sWS}:{sWS+3}], s{sT1} offen{SC}
    v_mul_u32_u24 v{t1}, {UP}, v{t1}
    v_lshl_add_u32 v44, v{t0}, 4, v{t1}
    s_lshl_b32 s{sT0}, s{hw}, 10
    s_add_u32 s{sT0}, s{sT0}, {LU+480}
    v_add_u32 v44, s{sT0}, v44
    s_or_b32 s{sT0}, s2, s{hw}
    s_cmp_lg_u32 s{sT0}, 0""", 'u')
    A.fwd_branch('s_cbranch_scc1 L_NOEP')
    A0(f's_mov_b32 s{sT0}, {WS_EP}\nv_mov_b32 v{t0}, s{sNon}\ns_mov_b64 exec, 1\nbuffer_store_dword v{t0}, v14, s[{sWS}:{sWS+3}], s{sT0} offen{SC}\ns_mov_b64 exec, -1')
    A.label('L_NOEP')
    run(kgm, 999)
    ST('kg')
    O = 64; R = 100
    def pk(d, a, b): return f'v_cvt_pk_f16_f32 v{d}, v{a}, v{b}'
    sCh, sHF, sKb = sXb, sWb, sCk
    A(f"""s_lshr_b32 s{sCh}, s{hw}, 1
    s_and_b32 s{sHF}, s{hw}, 1
    s_mul_i32 s{sKb}, s{sCh}, {4*KCP}
    s_add_u32 s{sKb}, s{sKb}, {LKC}
    s_lshl_b32 s{sT0}, s{sCh}, 2
    v_add_u32 v{R}, s{sT0}, v{vSy}""")
    lds_inc(A0, R, SY_KG, vI1)
    A(f"""v_mov_b32 v{R+4}, 0
    v_mov_b32 v{R+5}, 0
    v_mov_b32 v{R+6}, 0
    v_mov_b32 v{R+7}, 0
    v_lshrrev_b32 v{t1}, 2, v1
    v_mul_u32_u24 v{t1}, {KCP}, v{t1}
    v_and_b32 v{t2}, 3, v1
    v_lshl_add_u32 v{t1}, v{t2}, 4, v{t1}
    v_add_u32 v{t1}, s{sKb}, v{t1}
    s_mul_i32 s{sT0}, s{sCh}, {UP}
    s_add_u32 s{sT0}, s{sT0}, {LU}
    v_add_u32 v{t2}, s{sT0}, v13
    s_mov_b64 exec, 0xffff
    ds_write_b128 v{t1}, {v(R+4,4)} offset:4096
    s_mov_b64 exec, 0x3fffffff
    ds_write_b128 v{t2}, {v(R+4,4)}
    s_mov_b64 exec, -1
    s_add_u32 s{sT0}, s{sKb}, 1008
    v_sub_u32 v{t0}, s{sT0}, v13
    s_lshl_b32 s{sT0}, s{sHF}, 11
    s_add_u32 s{sT0}, s{sT0}, s{sKb}
    v_add_u32 v{t1}, s{sT0}, v13""")
    lds_wait(A0, 'L_WKG', R, SY_KG, 2, t3, sT0)
    for i in range(4): A(f'ds_read_b128 {v(112+4*i,4)}, v{PA} offset:{1024*i}')
    A(f'v_and_b32 v{t3}, 1, v1\nv_cmp_eq_u32 vcc, 1, v{t3}\ns_waitcnt lgkmcnt(0)')
    for i in range(16): A(f'v_add_f32 v{D+i}, v{D+i}, v{112+i}')
    Qk = [pk(O, D+7, D+6), pk(O+1, D+5, D+4), pk(O+2, D+3, D+2), pk(O+3, D+1, D+0)]
    Qk += [pk(O+4, D+10, D+10), pk(O+5, D+9, D+9), pk(O+6, D+9, D+8), pk(O+7, D+8, D+8)]
    for c in range(2):
        lo, hi = D + 11 + 2 * c, D + 12 + 2 * c; o = O + 8 + 4 * c
        Qk += [f'v_cndmask_b32 v{t3}, v{lo}, v{hi}, vcc', pk(o, hi, hi), pk(o+1, hi, t3), pk(o+2, lo, lo), pk(o+3, lo, lo)]
    A('\n'.join(Qk))
    for c in range(4): A(f'ds_write_b128 v{t0}, {v(O+4*c,4)} offset:{1024*(3-c)}')
    A(f'ds_write_b32 v{R}, v{D+15} offset:40')
    for rd in range(2):
        E = 128 + 24 * rd
        A(f'ds_read_b128 {v(E,4)}, v{t1} offset:{1024*rd}\nds_read_b64 {v(E+4,2)}, v{t1} offset:{1024*rd+16}')
    for rd in range(2):
        E = 128 + 24 * rd; c1, c2, c3 = E + 8, E + 12, E + 16
        A(f's_waitcnt lgkmcnt({2+rd})')
        for i in range(4):
            A(f'v_alignbit_b32 v{c1+i}, v{E+i+1}, v{E+i}, 16\nv_mov_b32 v{c2+i}, v{E+i+1}\nv_alignbit_b32 v{c3+i}, v{E+i+2}, v{E+i+1}, 16')
        for k, c in enumerate((c1, c2, c3)): A(f'ds_write_b128 v{t1}, {v(c,4)} offset:{1024*rd+(k+1)*KCP}')
    lds_inc(A0, R, SY_K, vI1)
    lds_inc(A0, vSy, SY_XS, vI1)
    vwait('u')
    A(f'ds_write_b128 v44, {v(UG,4)}\nds_write_b128 v44, {v(UG+4,4)} offset:512')
    lds_inc(A0, vSy, SY_U, vI1); ST('u')
    A0('s_waitcnt lgkmcnt(0)')
    ldWn(cfg.get('d2', 4)); A.flush()
    D2 = cfg.get('d2', 4)
    NW = NREG + 6
    for i in range(NW):
        vwait(('w', i))
        if i < NREG:
            rdW(i, WR + 16 * i)
        while nw[0] < NW and nw[0] <= i + D2:
            if nw[0] >= 6:
                assert nw[0] - 6 <= i
                A0('s_waitcnt lgkmcnt(0)')
            if nw[0] == 4: lds_wait(A0, 'L_WXS', vSy, SY_XS, 4, t3, sT0)
            ldWn(1); A.flush()
    A.flush()
    load_x_final(A0); vq.add('x')
    ST('wpre')
    A(f"""s_lshr_b32 s{sE}, s{sRB2}, 1
    s_lshl_b32 s{sE}, s{sE}, 6
    s_lshl_b32 s{sT1}, s{hw}, 4
    s_add_u32 s{sE}, s{sE}, s{sT1}
    s_add_u32 s{sE}, s{sE}, {WS_F2}
    v_and_b32 v{t0}, 3, v1
    v_lshlrev_b32 v{t0}, 2, v{t0}""")
    lds_wait(A0, 'L_WH', vSy, SY_H, 4, t3, sT0, sleep=2)
    gpoll(A0, 'L_P2', f'buffer_load_dword v{t3}, v{t0}, s[{sWS}:{sWS+3}], s{sE} offen{SC}', [t3], sleep=cfg.get('p2sleep', 4))
    vq.q = []
    ST('p2')
    if cfg.get('hprio'): A(f's_setprio {cfg["hprio"]}')
    ACC = 192
    free = [16, 32] + list(range(64, WR, 16))
    hbuf = {}
    nh = 0
    def ldH():
        nonlocal nh
        if nh >= 14 or not free: return
        b = free.pop(0); hbuf[nh] = b
        L = [f's_lshl_b32 s{sT1}, s{sK}, 10', f's_add_u32 s{sT1}, s{sH}, s{sT1}']
        for q in range(4): L.append(f'buffer_load_dwordx4 {v(b+4*q,4)}, v{vH+q}, s[{sWS}:{sWS+3}], s{sT1} offen{SC}')
        L += [f's_add_u32 s{sK}, s{sK}, 1', f's_cmp_eq_u32 s{sK}, 14', f's_cselect_b32 s{sK}, 0, s{sK}']
        A('\n'.join(L), ('h', nh)); nh += 1
    while free: ldH()
    wfrag = {i: WR + 16 * i for i in range(NREG)}
    wtmp = []
    for i in range(14):
        if i == cfg.get('trig', 5):
            A(f'ds_write_b32 v{vSy}, v{vI1} offset:{SY_TRIG}')
        if NREG <= i + 1 < 14:
            vwait(('w', i + 1))
            wfrag[i + 1] = wtmp.pop(0); rdW(i + 1, wfrag[i + 1])
        vwait(('h', i))
        if i >= NREG:
            A(f's_waitcnt lgkmcnt({8 if i + 1 < 14 else 0})')
            if nw[0] < 14: ldWn(1); A.flush()
        for T in range(4):
            for q in range(4):
                a = ACC + 16 * T + 4 * q
                A(f'v_mfma_f32_16x16x32_bf16 {v(a,4)}, {v(wfrag[i]+4*T,4)}, {v(hbuf[i]+4*q,4)}, {"0" if i == 0 else v(a,4)}')
        free.append(hbuf[i])
        if i >= NREG - 3: wtmp.append(wfrag[i])
        else: free.append(wfrag[i])
        ldH(); ldH()
    ST('g2')
    t0, t1, t2, t3 = 16, 17, 18, 19
    A(f"""v_and_b32 v{t0}, 15, v1
    v_lshrrev_b32 v{t1}, 4, v1
    v_xor_b32 v{t1}, v{t1}, v{t0}
    v_lshlrev_b32 v{t1}, 4, v{t1}
    v_lshl_add_u32 v{t0}, v{t0}, 8, v{t1}
    v_add_u32 v{t0}, s{sLb}, v{t0}""")
    for T in range(4): A(f'v_xor_b32 v{20+T}, {64*T}, v{t0}\nv_add_u32 v{24+T}, 65536, v{20+T}')
    for T in range(4):
        for q in range(4):
            base = PART[q]; hi = 4 if base >= 65536 else 0
            A(f'ds_write_b128 v{20+hi+T}, {v(ACC+16*T+4*q,4)} offset:{base & 65535}')

def gen_final(A, cfg, ST):
    A.label('L_FINAL')
    t0, t1, t2, t3 = 4, 5, 6, 7
    PB = 16; SV = 48; E = 52; XU = 60; SU = 68
    A(f"""v_lshrrev_b32 v{t0}, 3, v0
    v_and_b32 v{t1}, 7, v0
    v_and_b32 v2, 15, v{t0}
    v_lshlrev_b32 v3, 1, v{t1}
    v_xor_b32 v3, v3, v2
    v_lshlrev_b32 v3, 4, v3
    v_lshl_add_u32 v{t2}, v2, 8, v3
    v_bfe_u32 v2, v0, 7, 1
    v_lshl_add_u32 v{t2}, v2, 16, v{t2}
    v_lshrrev_b32 v2, 8, v0
    v_lshl_add_u32 v{t2}, v2, 14, v{t2}
    v_xor_b32 v{t3}, 16, v{t2}
    v_bfe_u32 v3, v0, 5, 3
    v_xor_b32 v{t1}, v{t1}, v3
    v_lshlrev_b32 v{t1}, 4, v{t1}
    v_lshl_add_u32 v{t1}, v{t0}, 7, v{t1}
    v_add_u32 v{t1}, {LS}, v{t1}
    s_mov_b32 s{sM0}, {NLOG2E}
    s_mov_b32 s{sM0+1}, {NLOG2E}
    s_waitcnt vmcnt(0) lgkmcnt(0)
    s_barrier""")
    for w in range(4):
        for hh in range(2): A(f'ds_read_b128 {v(PB+8*w+4*hh,4)}, v{t2+hh} offset:{w*4096}')
    A(f'ds_read_b128 {v(SV,4)}, v{t1}')
    for j in range(4): A(f'v_lshlrev_b32 v{XU+2*j}, 16, v{vX+j}\nv_and_b32 v{XU+2*j+1}, 0xffff0000, v{vX+j}')
    A('s_waitcnt lgkmcnt(5)')
    for j in range(4): A(f'v_pk_add_f32 {v(PB+2*j,2)}, {v(PB+2*j,2)}, {v(PB+8+2*j,2)}')
    A('s_waitcnt lgkmcnt(1)')
    for j in range(4): A(f'v_pk_add_f32 {v(PB+16+2*j,2)}, {v(PB+16+2*j,2)}, {v(PB+24+2*j,2)}')
    for j in range(4): A(f'v_pk_add_f32 {v(PB+2*j,2)}, {v(PB+2*j,2)}, {v(PB+16+2*j,2)}')
    for j in range(4): A(f'v_pk_mul_f32 {v(E+2*j,2)}, {v(PB+2*j,2)}, s[{sM0}:{sM0+1}]')
    for j in range(8): A(f'v_exp_f32 v{E+j}, v{E+j}')
    for j in range(4): A(f'v_pk_add_f32 {v(E+2*j,2)}, {v(E+2*j,2)}, 1.0 op_sel_hi:[1,0]')
    for j in range(8): A(f'v_rcp_f32 v{E+j}, v{E+j}')
    A('s_waitcnt lgkmcnt(0)')
    for j in range(4): A(f'v_lshlrev_b32 v{SU+2*j}, 16, v{SV+j}\nv_and_b32 v{SU+2*j+1}, 0xffff0000, v{SV+j}')
    for j in range(4): A(f'v_pk_mul_f32 {v(PB+2*j,2)}, {v(PB+2*j,2)}, {v(E+2*j,2)}')
    for j in range(4): A(f'v_pk_fma_f32 {v(PB+2*j,2)}, {v(PB+2*j,2)}, {v(SU+2*j,2)}, {v(XU+2*j,2)}')
    for j in range(4): A(f'v_cvt_pk_bf16_f32 v{SV+j}, v{PB+2*j}, v{PB+2*j+1}')
    A(f'buffer_store_dwordx4 {v(SV,4)}, v{vXo}, s[{sOUT}:{sOUT+3}], 0 offen')
    ST.dump(sWS, 100, 101)

if __name__ == '__main__':
    out = sys.argv[1]
    cfg = eval(sys.argv[2]) if len(sys.argv) > 2 else {}
    PRESET = {1: dict(H=['d01','b0','B0','B4','B8','p1','kg','u','wpre','p2','g2','x'], M=['row','xn','kg','B0','B4','g1','epi','f2','cv0','cv1','f3','p3']),
              2: dict(H=['b0','b1','b2','b3','b4','b5','b6','b7','b8','p1','u','wpre'], M=['kg','B0','B1','B2','B3','B4','B5','B6','B7','B8','g1','epi'])}
    PRESET[3] = dict(H=['wpre','p2','g2'], M=['B0','g1','epi','f2','cv1','p3'])
    if cfg.get('stamps') in PRESET:
        cfg['stamps'] = PRESET[cfg['stamps']]
        print('H:', ' '.join('%6s' % a for a in ['t0'] + cfg['stamps']['H'] + ['end']))
        print('M:', ' '.join('%6s' % a for a in ['t0'] + cfg['stamps']['M'] + ['end']))
    MINSLEEP[0] = cfg.get('minsleep', 0)
    A = Asm()
    head = open('cdna_kernels/%s.s.ref' % NAME).read().split('; Override')[0]
    A.raw('.amdgcn_target "amdgcn-amd-amdhsa--gfx950"\n.text')
    k = gen(A, cfg)
    open(out, 'w').write(head + '; @launch grid=(256,1,1) block=(512,1,1) lds=163840\n' + A.text() + '.section .rodata,"a"\n.p2align 6\n' + k)
```

```python
import sys, math, struct
from asmlib import Asm
from gen import NAME, f32, LOG2E, NLOG2E, INV2PI, v, s, srd, kernel_head, kd, cmul, bf16r, interleave

WS_H = 0
WS_XN = 0x700000
WS_SP = 0x900000
WS_GR = 0xD00000
WS_F1 = WS_GR + 0x4000
WS_F2 = WS_F1 + 0x1000
WS_F3 = WS_F2 + 0x1000
WS_EP = WS_F3 + 0x400
WS_STAMP = 0xD10000
WS_SIZE = 0xE00000
SC = ' sc1'

def Aslot(i): return i * 16384
def Bslot(i): return 65536 + i * 16384
LC = 131072
LDD = LC
LNB = LC + 16384; LNP = 1088
TOP = LC + 28672
LSTAT, LCS, LSY = TOP, TOP + 3072, TOP + 3584
LCSP = LNB
LKC = Bslot(3); KCP = 4160
LEX = LKC
LU = LKC + 8 * KCP; UP = 4608
LS = LU
RING = [Aslot(0), Bslot(0), Aslot(1), Bslot(1), Aslot(2), Bslot(2)]
PART = [Aslot(0), Aslot(1), Aslot(2), Aslot(3)]
SY_U, SY_H, SY_K, SY_CV, SY_EX, SY_S, SY_TRIG = 0, 4, 8, 16, 20, 24, 28
SY_XN, SY_XS, SY_KG, SY_ST = 48, 52, 56, 68
def CERT(st): return 64 + 4 * st
def DONE(st): return 128 + 4 * st

MINSLEEP = [0]
class Q:
    def __init__(s, A, name, mx): s.A, s.name, s.mx, s.q = A, name, mx, []
    def add(s, tag, n=1): s.q += [tag] * n
    def wait(s, tag):
        if tag not in s.q: return
        i = len(s.q) - 1 - s.q[::-1].index(tag)
        n = len(s.q) - 1 - i
        n = min(n, s.mx)
        s.A(f's_waitcnt {s.name}({n})'); s.q = s.q[len(s.q) - n:] if n else []
    def all(s):
        s.A(f's_waitcnt {s.name}(0)'); s.q = []

class BG:
    def __init__(s, A, vq, every): s.A, s.vq, s.every, s.q, s.n, s.hold = A, vq, every, [], 0, 0
    def push(s, text, tag): s.q.append((text, tag))
    def pop(s):
        t, tag = s.q.pop(0); s.A(t); s.vq.add(tag); s.n = 0
    def flush(s, tag=None):
        while s.q and (tag is None or any(t == tag for _, t in s.q)): s.pop()
    def __call__(s, text, tag=None):
        for line in text.strip().split('\n'):
            l = line.strip()
            if not l: continue
            if 'exec' in l.split(',')[0] and '-1' not in l: s.hold = 1
            if l.startswith('s_waitcnt lgkmcnt') and not s.hold:
                for _ in range(2):
                    if s.q: s.pop()
            s.A(l)
            if l.startswith(('buffer_', 'global_')):
                assert tag is not None, l
                s.vq.add(tag)
            if l.startswith('s_mov_b64 exec, -1'): s.hold = 0
            w = 3 if l.startswith('v_mfma') else 1
            s.n += w
            if s.q and not s.hold and s.n >= s.every and not l.startswith(('s_cmp', 's_sub_u32', 's_add_u32', 'v_cmp', 's_or_b64', 's_bitcmp')): s.pop()
    def __getattr__(s, k): return getattr(s.A, k)

class Stamps:
    def __init__(self, A, on): self.A, self.on, self.role = A, on, 'H'
    def start(self):
        if self.on: self.A('s_memrealtime s[70:71]\ns_memtime s[72:73]')
    def __call__(self, name):
        if self.on and name in self.on[self.role]:
            i = 1 + self.on[self.role].index(name)
            self.A(f's_memtime s[{72+2*i}:{73+2*i}]')
    def dump(self, sWS, vt, vo):
        if not self.on: return
        A = self.A
        A('s_waitcnt vmcnt(0)\ns_memtime s[98:99]\ns_memrealtime s[100:101]\ns_waitcnt lgkmcnt(0)')
        for i in range(16): A(f'v_writelane_b32 v{vt}, s{70+2*i}, {i}')
        A(f"""v_lshrrev_b32 v{vo}, 6, v0
        v_lshlrev_b32 v{vo}, 7, v{vo}
        v_and_b32 v{vo+1}, 63, v0
        v_lshl_add_u32 v{vo}, v{vo+1}, 2, v{vo}
        s_lshl_b32 s70, s2, 10
        s_add_u32 s70, s70, {WS_STAMP}
        s_mov_b64 exec, 0xffff
        buffer_store_dword v{vt}, v{vo}, s[{sWS}:{sWS+3}], s70 offen
        s_mov_b64 exec, -1""")

sX, sW1, sWS, sW2, sOUT = 4, 8, 12, 44, 48
pX, pLAR, pAIM, pCRE, pCIM, pLDT, pDSK, pW1, pW2, pOUT, pDBG, pWS = 16, 18, 20, 22, 24, 26, 28, 32, 34, 36, 38, 40
sWave, sRB, sCB, sT0, sT1, sT2, sOdd, sCh0, sDP, sNon, sCap, sRB2, sCB2 = 52, 53, 54, 55, 56, 57, 58, 59, 60, 61, 62, 63, 64
sA, sB, sC, sD, sE = 65, 66, 67, 68, 69
sK0 = 3
sM0 = 30
sM1 = 42

def lds_wait(A, name, vaddr, off, val, vt, st, sleep=0):
    sleep = max(sleep, MINSLEEP[0])
    A(f's_mov_b32 s{sCap}, 0x40000')
    A.label(name)
    if sleep: A(f's_sleep {sleep}')
    A(f'''ds_read_b32 v{vt}, v{vaddr} offset:{off}
    s_waitcnt lgkmcnt(0)
    v_readfirstlane_b32 s{st}, v{vt}
    s_sub_u32 s{sCap}, s{sCap}, 1
    s_cselect_b32 s{st}, {val}, s{st}
    s_cmp_lt_u32 s{st}, {val}''')
    A.back_branch(f's_cbranch_scc1 {name}', name)

def lds_inc(A, vaddr, off, vone, rtn=None):
    A('s_mov_b64 exec, 1')
    if rtn is None: A(f'ds_add_u32 v{vaddr}, v{vone} offset:{off}')
    else: A(f'ds_add_rtn_u32 v{rtn}, v{vaddr}, v{vone} offset:{off}')
    A('s_mov_b64 exec, -1')

def gpoll(A, name, load, checks, sleep=8, first=None):
    A(f's_mov_b32 s{sCap}, 0x8000')
    if first:
        first()
        A.fwd_branch(f's_branch {name}_C')
    A.label(name)
    A(f'{load}\ns_waitcnt vmcnt(0)')
    A.label(name + '_C')
    A(f'v_cmp_ne_u32 vcc, s{sNon}, v{checks[0]}')
    for c in checks[1:]:
        A(f'v_cmp_ne_u32 s[{sM1}:{sM1+1}], s{sNon}, v{c}\ns_or_b64 vcc, vcc, s[{sM1}:{sM1+1}]')
    A(f'''s_cmp_eq_u64 vcc, 0
    s_cbranch_scc1 {name}_D
    s_sub_u32 s{sCap}, s{sCap}, 1
    s_cbranch_scc1 {name}_D
    s_sleep {sleep}''')
    A.back_branch(f's_branch {name}', name)
    A.label(name + '_D')

def x_read_addr(A, vXr, sw, t0, t1, t2):
    A(f"""v_and_b32 v{t0}, 15, v1
    v_lshrrev_b32 v{t1}, 4, v1
    v_lshrrev_b32 v{t2}, 1, v{t0}
    v_xor_b32 v{t2}, v{t2}, v{t1}
    v_lshlrev_b32 v{t2}, 4, v{t2}
    v_lshl_add_u32 v{t2}, v{t0}, 7, v{t2}
    s_lshl_b32 s{sT0}, s{sw}, 12
    v_add_u32 v{vXr}, s{sT0}, v{t2}
    v_xor_b32 v{vXr+1}, 64, v{vXr}""")

def kgen_tables(kP, PC, PR, YS):
    lar, aim, cre, cim, cre2, cim2, ldt = [kP + i for i in range(7)]
    dt, a1, w1, t2, t3 = 72, 73, 74, 78, 79
    C = 80; F1, F2, F4, F8, F256, G8, G16, G128 = 82, 84, 86, 88, 90, 92, 94, 96
    X = [98, 100, 102, 104, 106, 108, 110, 112]
    L = []
    for r in range(7): L.append(f'v_lshlrev_b32 v{kP+r}, 16, v{kP+r}')
    L += [f'v_mul_f32 v{dt}, {LOG2E}, v{ldt}', f'v_mul_f32 v{a1}, {LOG2E}, v{lar}', f'v_exp_f32 v{dt}, v{dt}', f'v_exp_f32 v{a1}, v{a1}',
          f'v_max3_f32 v{t2}, |v{cre}|, |v{cim}|, |v{cre2}|', f'v_max_f32_e64 v{t2}, v{t2}, |v{cim2}|']
    La = bf16r(dt, dt) + bf16r(a1, a1) + [f'v_mul_f32 v{a1}, v{a1}, v{dt}', f'v_mul_f32 v{w1}, v{aim}, v{dt}', f'v_mul_f32 v{a1}, {NLOG2E}, v{a1}', f'v_mul_f32 v{w1}, {INV2PI}, v{w1}']
    def direct(d, pos, ta, tb, neg=False):
        return [f'v_mul_f32 v{ta}, {f32(pos)}, v{a1}', f'v_mul_f32 v{tb}, {f32(-pos if neg else pos)}, v{w1}', f'v_exp_f32 v{ta}, v{ta}', f'v_fract_f32 v{tb}, v{tb}',
                f'v_cos_f32 v{d}, v{tb}', f'v_sin_f32 v{d+1}, v{tb}', f'v_mul_f32 v{d}, v{d}, v{ta}', f'v_mul_f32 v{d+1}, v{d+1}, v{ta}']
    La += interleave(direct(G8, 8.0, X[0], X[0] + 1, True), direct(G128, 128.0, X[1], X[1] + 1, True))
    La += interleave(direct(F1, 1.0, X[2], X[2] + 1), direct(F256, 256.0, X[3], X[3] + 1))
    Lb = []
    for r in (1, 2, 4, 8): Lb += [f'v_max_f32_dpp v{t2}, v{t2}, v{t2} row_ror:{r} row_mask:0xf bank_mask:0xf', None]
    for op in ('v_permlane16_swap_b32', 'v_permlane32_swap_b32'):
        Lb += [f'v_mov_b32 v{t3}, v{t2}', None, f'{op} v{t2}, v{t3}', f'v_max_f32 v{t2}, v{t2}, v{t3}']
    Lb += [f'v_lshrrev_b32 v{t2}, 23, v{t2}', f'v_min_u32 v{t2}, 253, v{t2}', f'v_sub_u32 v{t3}, 254, v{t2}',
           f'v_lshlrev_b32 v{t3}, 23, v{t3}', f'v_lshlrev_b32 v{t2}, 23, v{t2}',
           f'v_mul_f32 v{C}, v{cre}, v{t3}', f'v_mul_f32 v{C+1}, v{cim}, v{t3}',
           f'v_mul_f32 v{YS}, v{t2}, v{dt}', f'v_add_f32 v{YS}, v{YS}, v{YS}']
    L += [x for x in interleave(La, Lb) if x]
    L += cmul(G16, G8, G8) + cmul(F2, F1, F1) + [f'v_mov_b32 v{F8}, v{G8}', f'v_xor_b32 v{F8+1}, 0x80000000, v{G8+1}'] + cmul(F4, F2, F2)
    def cv(P, idx, src): return f'v_cvt_pk_f16_f32 v{P+idx}, v{src}, v{src+1}'
    def colchain(par, xa, xb, xc):
        Qq = []
        if par == 0:
            Qq += [f'v_mov_b32 v{PC}, 0x3c00', cv(PC, 16, G128)]; cur = G16; js = range(2, 16, 2)
        else:
            cur = G8; js = range(1, 16, 2)
        first = True
        for j in js:
            if not first:
                d = xa if cur != xa else xb; Qq += cmul(d, cur, G16); cur = d
            first = False
            Qq += cmul(xc, cur, G128) + [cv(PC, j, cur), cv(PC, j + 16, xc)]
        return Qq
    L += interleave(colchain(0, X[0], X[1], X[2]), colchain(1, X[3], X[4], X[5]))
    def ridx(rho, hf): return 8 * (rho >> 2) + 4 * hf + (rho & 3)
    Qa = [cv(PR, ridx(0, 0), C)]; cur = C
    for e in range(1, 8):
        d = X[0] if cur != X[0] else X[1]; Qa += cmul(d, cur, F1) + [cv(PR, ridx(e, 0), d)]; cur = d
    B1 = X[7]
    Qb = cmul(B1, C, F256) + [cv(PR, ridx(0, 1), B1), cv(PR, ridx(1, 1), B1)]
    Qc = []; cur = B1
    for k, rhos in enumerate([[2], [3, 4, 5], [6], [7]]):
        d = X[2] if cur != X[2] else X[3]; Qc += cmul(d, cur, F2) + [cv(PR, ridx(r, 1), d) for r in rhos]; cur = d
    Bc, Bn = B1, X[4]; alt = X[5]
    for sp in range(6):
        Qb += cmul(Bn, Bc, F256); Bc = Bn; Bn = alt if Bc == X[4] else X[4]
        if sp < 2:
            Qb += [cv(PR, ridx(8, sp), Bc)] + cmul(X[6], Bc, F4) + [cv(PR, ridx(9, sp), X[6])] + cmul(X[6], Bc, F8) + [cv(PR, ridx(10, sp), X[6])]
        else:
            rho = 11 + 2 * ((sp - 2) >> 1); hf = sp & 1
            Qb += [cv(PR, ridx(rho, hf), Bc)] + cmul(X[6], Bc, F8) + [cv(PR, ridx(rho + 1, hf), X[6])]
    L += Qb[:2] + interleave(Qb[2:], Qa + Qc)
    L += [f'v_mov_b32 v{PR+27}, 0', f'v_mov_b32 v{PR+31}, 0']
    return L

KN = NAME + '_kernel'

def gen(A, cfg):
    kernel_head(A, KN)
    A('s_cmp_ge_u32 s2, 256\ns_cbranch_scc1 L_END')
    ST = Stamps(A, cfg.get('stamps')); ST.start()
    A(f"""s_load_dwordx16 s[16:31], s[0:1], 0
    s_load_dwordx8 s[32:39], s[0:1], 64
    s_load_dwordx2 s[40:41], s[0:1], 96
    s_getpc_b64 s[{sM1}:{sM1+1}]""")
    A.raw('L_PC0:')
    A(f"""v_lshlrev_b32 v2, 7, v0
    v_cmp_gt_u32 vcc, L_CODE_END-L_PC0, v2
    s_and_saveexec_b64 s[{sA+1}:{sA+2}], vcc
    s_cbranch_execz L_NOCPF
    global_load_dword v159, v2, s[{sM1}:{sM1+1}]""")
    A.label('L_NOCPF', fence=False)
    A(f"""s_mov_b64 exec, -1
    v_lshrrev_b32 v2, 6, v0
    v_and_b32 v1, 63, v0
    v_readfirstlane_b32 s{sWave}, v2
    s_bfe_u32 s{sT0}, s2, 0x20001
    s_lshl_b32 s{sT0}, s{sT0}, 2
    s_bfe_u32 s{sT1}, s2, 0x20003
    s_add_u32 s{sRB}, s{sT0}, s{sT1}
    s_and_b32 s{sT0}, s2, 1
    s_lshl_b32 s{sT0}, s{sT0}, 3
    s_lshr_b32 s{sCB2}, s2, 5
    s_add_u32 s{sCB}, s{sT0}, s{sCB2}
    s_lshl_b32 s{sT2}, s{sT1}, 1
    s_add_u32 s{sCh0}, s{sT2}, s{sCB2}
    s_and_b32 s{sOdd}, s{sCB}, 1
    s_and_b32 s{sT0}, s2, 7
    s_lshl_b32 s{sRB2}, s{sT0}, 2
    s_add_u32 s{sRB2}, s{sRB2}, s{sT1}
    s_lshl_b32 s{sDP}, s{sT0}, 5
    s_lshr_b32 s{sT0}, s2, 3
    s_add_u32 s{sDP}, s{sDP}, s{sT0}
    s_mul_i32 s{sK0}, s{sCB2}, 14
    s_lshr_b32 s{sK0}, s{sK0}, 3
    s_mul_i32 s{sT0}, s{sT1}, 7
    s_lshr_b32 s{sT0}, s{sT0}, 1
    s_add_u32 s{sK0}, s{sK0}, s{sT0}
    s_sub_u32 s{sT0}, s{sK0}, 14
    s_cmp_ge_u32 s{sK0}, 14
    s_cselect_b32 s{sK0}, s{sT0}, s{sK0}
    v_lshlrev_b32 v2, 2, v1
    v_add_u32 v2, {LSY}, v2
    v_mov_b32 v14, 0
    ds_write_b32 v2, v14
    s_cmp_lt_u32 s{sWave}, 4""")
    A.fwd_branch('s_cbranch_scc1 L_H')
    gen_M(A, cfg, ST)
    gen_H(A, cfg, ST)
    gen_final(A, cfg, ST)
    A.label('L_END', fence=False)
    A('s_endpgm')
    A.raw('L_CODE_END:')
    return kd(KN, 256, 102)

vX, vXo = 8, 12

def load_x_final(A):
    A(f"""v_lshrrev_b32 v2, 3, v0
    v_and_b32 v3, 7, v0
    v_lshlrev_b32 v3, 4, v3
    v_lshl_add_u32 v{vXo}, v2, 10, v3
    s_lshl_b32 s{sT0}, s{sRB2}, 16
    s_lshl_b32 s{sT1}, s{sCB2}, 7
    s_add_u32 s{sT0}, s{sT0}, s{sT1}
    v_add_u32 v{vXo}, s{sT0}, v{vXo}
    buffer_load_dwordx4 {v(vX,4)}, v{vXo}, s[{sX}:{sX+3}], 0 offen""")

def gen_M(A, cfg, ST):
    ST.role = 'M'
    mw = sWave
    t0, t1, t2, t3 = 16, 17, 18, 19
    kP = 64; D = 232
    vRow, vTmp, vOne = 160, 168, 184
    PC, PR, YS, WA = 192, 224, 189, 160
    vSyM, vOneM, vFl = 14, 15, 3
    A(f"""s_sub_u32 s{mw}, s{mw}, 4
    v_lshlrev_b32 v{t3}, 21, v1
    v_lshlrev_b32 v187, 4, v1
    v_mov_b32 v188, {WS_EP}
    s_lshl_b32 s{sT0}, s{sDP}, 13
    s_lshl_b32 s{sT1}, s{mw}, 11
    s_add_u32 s{sT0}, s{sT0}, s{sT1}
    v_add_u32 v186, s{sT0}, v187
    s_lshl_b32 s{sT0}, s2, 2
    s_add_u32 s{sT0}, s{sT0}, s{mw}
    s_mul_i32 s{sT0}, s{sT0}, {14*128}
    v_lshl_add_u32 v185, v1, 7, s{sT0}
    s_waitcnt lgkmcnt(0)
    global_load_dword v188, v188, s[{pWS}:{pWS+1}]{SC}
    global_load_dwordx4 {v(vRow,4)}, v186, s[{pX}:{pX+1}]
    global_load_dwordx4 {v(vRow+4,4)}, v186, s[{pX}:{pX+1}] offset:1024""")
    srd(A, sWS, pWS, WS_SIZE); srd(A, sX, pX, 2048 * 1024); srd(A, sOUT, pOUT, 2048 * 1024)
    A(f"""s_mov_b64 exec, 0x7f
    buffer_load_dword v156, v{t3}, s[{sWS}:{sWS+3}], 0 offen
    s_mov_b64 exec, 1
    global_load_dword v157, v{t3}, s[{pOUT}:{pOUT+1}]
    s_mov_b64 exec, {'0x3fff' if cfg.get('mall', 0) else '1'}
    global_load_dword v158, v185, s[{pW2}:{pW2+1}]
    s_mov_b64 exec, -1
    s_barrier
    s_lshl_b32 s{sT0}, s{sDP}, 2
    s_load_dword s{sD}, s[{pDSK}:{pDSK+1}], s{sT0}""")
    ST('ld')
    vXr, vWr = 4, 6
    F = [20, 56]; ACC = 92
    x_read_addr(A, vXr, mw, t0, t1, t2)
    A(f"""v_lshrrev_b32 v{t0}, 4, v1
    v_bfe_u32 v{t1}, v1, 2, 2
    v_and_b32 v{t2}, 1, v{t0}
    v_lshl_or_b32 v{t2}, v{t2}, 2, v{t1}
    v_lshl_add_u32 v{t0}, v{t0}, 3, v{t1}
    v_and_b32 v{t1}, 3, v1
    v_lshlrev_b32 v{t1}, 3, v{t1}
    v_lshl_add_u32 v{t3}, v{t0}, 8, v{t1}
    v_add_u32 v{t3}, {Bslot(0)}, v{t3}""")
    for tau in range(7):
        A(f'v_xor_b32 v{t0}, {tau}, v{t2}\nv_lshl_add_u32 v{vWr+tau}, v{t0}, 5, v{t3}')
    A(f'v_mov_b32 v{vOne}, 0x3f803f80\ns_waitcnt lgkmcnt(0)')
    A('s_waitcnt vmcnt(3)')
    ST('row')
    class Col:
        def __init__(s): s.L = []
        def __call__(s, t): s.L += [x.strip() for x in t.strip().split('\n') if x.strip()]
    A_ = A; A = Col()
    S = [vTmp + i for i in range(4)]
    T = [vTmp + 4 + i for i in range(4)]
    for r in range(2):
        for j in range(4):
            x = vRow + 4 * r + j
            if j == 0:
                A(f'v_dot2_f32_bf16 v{S[r]}, v{x}, v{vOne}, 0\nv_dot2_f32_bf16 v{S[2+r]}, v{x}, v{x}, 0')
            else:
                A(f'v_dot2_f32_bf16 v{S[r]}, v{x}, v{vOne}, v{S[r]}\nv_dot2_f32_bf16 v{S[2+r]}, v{x}, v{x}, v{S[2+r]}')
    for rr in (1, 2, 4, 8):
        for i in range(4): A(f'v_add_f32_dpp v{S[i]}, v{S[i]}, v{S[i]} row_ror:{rr} row_mask:0xf bank_mask:0xf')
    for op in ('v_permlane16_swap_b32', 'v_permlane32_swap_b32'):
        for i in range(4): A(f'v_mov_b32 v{T[i]}, v{S[i]}')
        for i in range(4): A(f'{op} v{S[i]}, v{T[i]}')
        for i in range(4): A(f'v_add_f32 v{S[i]}, v{S[i]}, v{T[i]}')
    Ls = []
    for r in range(2):
        m, e2, a, b = S[r], S[2 + r], T[r], T[2 + r]
        Ls.append([f'v_mul_f32 v{m}, {f32(1/512)}, v{m}', f'v_mul_f32 v{e2}, {f32(1/512)}, v{e2}',
                   f'v_fma_f32 v{e2}, -v{m}, v{m}, v{e2}', f'v_max_f32 v{e2}, 0, v{e2}'] + bf16r(e2, e2) + bf16r(m, m) +
                  [f'v_add_f32 v{e2}, {f32(1e-5)}, v{e2}'] + bf16r(e2, e2) + [f'v_sqrt_f32 v{e2}, v{e2}'] + bf16r(e2, e2) +
                  [f'v_rcp_f32 v{a}, v{e2}', f'v_mul_f32_e64 v{b}, -v{m}, v{a}', f'v_lshrrev_b32 v{m}, 16, v{m}', f'v_or_b32 v{m}, v{m}, v{e2}'])
    A('\n'.join(interleave(*Ls)))
    vSy, vI1 = vSyM, vOneM
    A(f"""v_readfirstlane_b32 s{sNon}, v188
    v_mov_b32 v{vSy}, {LSY}
    v_mov_b32 v{vI1}, 1
    s_mul_i32 s{sNon}, s{sNon}, 0x9e3779b1
    s_add_u32 s{sNon}, s{sNon}, 0x7f4a7c15
    v_cmp_eq_u32 vcc, 1, v1
    v_cndmask_b32 v{vTmp+8}, v{S[0]}, v{S[1]}, vcc
    v_mov_b32 v{vTmp+9}, s{sNon}
    ds_write_b32 v{vSy}, v{vTmp+9} offset:32""")
    for r in range(2):
        for j in range(4):
            x = vRow + 4 * r + j; u = vTmp + 10 + 2 * (j & 1)
            A(f"""v_lshlrev_b32 v{u}, 16, v{x}
            v_and_b32 v{u+1}, 0xffff0000, v{x}
            v_fma_f32 v{u}, v{u}, v{T[r]}, v{T[2+r]}
            v_fma_f32 v{u+1}, v{u+1}, v{T[r]}, v{T[2+r]}
            v_cvt_pk_f16_f32 v{x}, v{u}, v{u+1}""")
    A(f"""s_mul_i32 s{sT0}, s{mw}, {2*LNP}
    s_add_u32 s{sT0}, s{sT0}, {LNB}
    v_add_u32 v{t0}, s{sT0}, v187
    ds_write_b128 v{t0}, {v(vRow,4)}
    ds_write_b128 v{t0}, {v(vRow+4,4)} offset:{LNP}""")
    LNL = A.L; A = A_
    A('\n'.join(LNL))
    lds_inc(A, vSy, SY_XN, vI1)
    A(f"""v_bfe_u32 v{t0}, v1, 2, 2
    v_mul_u32_u24 v{t0}, {LNP}, v{t0}
    v_lshrrev_b32 v{t1}, 4, v1
    v_lshl_add_u32 v{t0}, v{t1}, 5, v{t0}
    v_and_b32 v{t1}, 3, v1
    v_lshl_add_u32 v{t0}, v{t1}, 3, v{t0}
    s_lshl_b32 s{sT0}, s{mw}, 8
    s_add_u32 s{sT0}, s{sT0}, {LNB}
    v_add_u32 v{t0}, s{sT0}, v{t0}""")
    lds_wait(A, 'L_WXN', vSy, SY_XN, 4, t3, sT0)
    for i in range(2):
        for hh in range(2): A(f'ds_read_b64_tr_b16 {v(vRow+4*i+2*hh,2)}, v{t0} offset:{128*i+4*LNP*hh}')
    ST('xn')
    ST('kt')
    lq = Q(A, 'lgkmcnt', 15)
    def reads(st, kap):
        slot = st & 3; f = F[kap]; L = []
        for q in range(2): L.append((f'ds_read_b128 {v(f+28+4*q,4)}, v{vXr+kap} offset:{Aslot(slot)+q*2048}', (st, kap, 0)))
        for tau in range(7):
            for hh in range(2):
                L.append((f'ds_read_b64_tr_b16 {v(f+4*tau+2*hh,2)}, v{vWr+tau} offset:{slot*16384+kap*8192+hh*1024}', (st, kap, tau)))
        return L
    def emit(rd):
        for t, tag in rd: A(t); lq.add(tag)
    vSyM, vOneM, vFl = 14, 15, 3
    def kstep(st, kap, rd, first=False, bar_at=None, bar_fn=None):
        f = F[kap]; k = 0; n = 0
        start = 0 if bar_at is None else bar_at
        slots = 14 - start - 1
        flag = bar_at is not None and st == 7
        if flag: A(f'ds_read_b32 v{vFl}, v{vSyM} offset:{CERT(st+1)}'); lq.add('fl')
        for tau in range(7):
            lq.wait((st, kap, tau))
            for q in range(2):
                if n == bar_at:
                    lq.all()
                    if flag:
                        A(f'v_readfirstlane_b32 s{sT0}, v{vFl}')
                        lds_inc(A, vSyM, DONE(st), vOneM); lq.add('dn')
                        A(f's_cmp_ge_u32 s{sT0}, {0 if cfg.get("nocheck") else 4}')
                        A(f's_cbranch_scc1 L_CK{st}')
                        lds_wait(A, f'L_CW{st}', vSyM, CERT(st+1), 4, vFl, sT0)
                        A.label(f'L_CK{st}', fence=False)
                    else:
                        if st == cfg.get('f1st', 0):
                            A(f"""s_lshl_b32 s{sT1}, s{sDP}, 2
                            s_lshl_b32 s{sT0}, s{mw}, 10
                            s_add_u32 s{sT1}, s{sT1}, s{sT0}
                            s_add_u32 s{sT1}, s{sT1}, {WS_F1}
                            v_mov_b32 v{t0}, 0
                            s_waitcnt vmcnt(0)
                            s_mov_b64 exec, 1
                            buffer_store_dword v{vFl}, v{t0}, s[{sWS}:{sWS+3}], s{sT1} offen{SC}
                            s_mov_b64 exec, -1""")
                        A('s_barrier')
                    bar_fn and bar_fn()
                a = ACC + 8 * tau + 4 * q
                A(f'v_mfma_f32_16x16x32_bf16 {v(a,4)}, {v(f+4*tau,4)}, {v(f+28+4*q,4)}, {"0" if first else v(a,4)}')
                if n >= start:
                    want = min(len(rd), -(-len(rd) * (n - start + 1) // slots))
                    emit(rd[k:want]); k = max(k, want)
                n += 1
        emit(rd[k:])
    A(f"""v_lshlrev_b32 v{t0}, 3, v1
    s_lshl_b32 s{sT0}, s{sDP}, 6
    s_lshl_b32 s{sT1}, s{mw}, 4
    s_add_u32 s{sT0}, s{sT0}, s{sT1}
    s_add_u32 s{sT0}, s{sT0}, {WS_GR}
    s_mov_b64 exec, 3
    buffer_store_dwordx2 {v(vTmp+8,2)}, v{t0}, s[{sWS}:{sWS+3}], s{sT0} offen{SC}
    s_mov_b64 exec, -1
    s_lshl_b32 s{sT0}, s{sDP}, 13
    s_lshl_b32 s{sT1}, s{mw}, 11
    s_add_u32 s{sT0}, s{sT0}, s{sT1}
    s_add_u32 s{sT0}, s{sT0}, {WS_XN}
    s_waitcnt lgkmcnt(0)
    buffer_store_dwordx4 {v(vRow,4)}, v187, s[{sWS}:{sWS+3}], s{sT0} offen{SC}
    buffer_store_dwordx4 {v(vRow+4,4)}, v187, s[{sWS}:{sWS+3}], s{sT0} offen offset:1024{SC}
    s_waitcnt lgkmcnt(0)""")
    ST('kg')
    A('s_barrier')
    ST('B0')
    emit(reads(0, 0))
    A(f'v_mov_b32 v{vFl}, s{sNon}')
    def twr(P, off): return [(f'ds_write2st64_b32 v{WA+i}, v{P+i}, v{P+i+16} offset0:{off+i} offset1:{off+i+16}', 'tw') for i in range(16)]
    ab = 20; cs = 24
    BA = cfg.get('bar_at', 4)
    for st in range(8):
        kstep(st, 0, reads(st, 1), first=(st == 0))
        if st < 7:
            def bf(st=st):
                ST(f'B{st+1}')
            if st == 6: kstep(st, 1, reads(st + 1, 0))
            else: kstep(st, 1, reads(st + 1, 0), bar_at=BA, bar_fn=bf)
        else:
            A(f"""v_and_b32 v{t0}, 15, v1
            s_lshl_b32 s{sT0}, s{mw}, 8
            s_add_u32 s{sT0}, s{sT0}, {LSTAT}
            v_lshl_add_u32 v{t1}, v{t0}, 3, s{sT0}
            v_lshrrev_b32 v{t0}, 4, v1
            v_lshlrev_b32 v{t0}, 4, v{t0}
            v_add_u32 v{t0}, {LCS}, v{t0}""")
            rd = [(f'ds_read_b64 {v(ab,2)}, v{t1}', 'e'), (f'ds_read_b64 {v(ab+2,2)}, v{t1} offset:128', 'e')]
            rd += [(f'ds_read_b128 {v(cs+4*tau,4)}, v{t0} offset:{64*tau}', 'e') for tau in range(7)]
            kstep(st, 1, rd, bar_at=BA, bar_fn=lambda: ST('B8'))
    ST('g1')
    if cfg.get('mprio', 2): A(f's_setprio {cfg.get("mprio", 2)}')
    sHb, sHs = sA, sC
    A(f"""s_lshl_b32 s{sT0}, s{sRB}, 3
    s_lshl_b32 s{sT1}, s{mw}, 1
    s_add_u32 s{sT0}, s{sT0}, s{sT1}
    s_mul_i32 s{sT0}, s{sT0}, 56
    s_lshr_b32 s{sT1}, s{sCB}, 1
    s_mul_i32 s{sT1}, s{sT1}, 7
    s_add_u32 s{sT0}, s{sT0}, s{sT1}
    s_lshl_b32 s{sT0}, s{sT0}, 10
    s_lshl_b32 s{sT1}, s{sOdd}, 12
    s_add_u32 s{sHb}, s{sT0}, s{sT1}
    s_add_u32 s{sHb+1}, s{sHb}, {56*1024}
    s_lshl_b32 s{sT1}, s{sOdd}, 9
    s_add_u32 s{sHs}, s{sT0}, s{sT1}
    s_add_u32 s{sHs}, s{sHs}, 3072
    v_and_b32 v{t0}, 15, v1
    v_lshlrev_b32 v{t0}, 4, v{t0}
    v_lshrrev_b32 v{t2}, 5, v1
    v_lshl_add_u32 v{t0}, v{t2}, 8, v{t0}
    v_bfe_u32 v{t2}, v1, 4, 1
    v_lshl_add_u32 v{t1}, v{t2}, 9, v{t0}
    v_mul_u32_u24 v{t2}, {56*1024}, v{t2}
    v_add_u32 v{t2}, v{t2}, v{t0}
    s_mov_b32 s{sM0}, {NLOG2E}
    s_mov_b32 s{sM0+1}, {NLOG2E}
    v_mov_b32 v2, {NLOG2E}
    v_mov_b32 v3, {NLOG2E}
    s_waitcnt lgkmcnt(0)""")
    Zs = [56, 72]; Es = [64, 80]; O = [148, 152]
    groups = [[(2 * g, q), (2 * g + 1, q)] for q in range(2) for g in range(3)] + [[(6, 0), (6, 1)]]
    def part1(gi):
        Z = Zs[gi & 1]; E = Es[gi & 1]; L = []
        prs = [(tau, q, p) for tau, q in groups[gi] for p in range(2)]
        for n, (tau, q, p) in enumerate(prs):
            c = cs + 4 * tau + 2 * p
            L.append(f'v_pk_mul_f32 {v(Z+2*n,2)}, {v(c,2)}, {v(ab+2*q,2)} op_sel:[0,1] op_sel_hi:[1,1]')
        for n, (tau, q, p) in enumerate(prs):
            a = ACC + 8 * tau + 4 * q + 2 * p
            L.append(f'v_pk_fma_f32 {v(Z+2*n,2)}, {v(a,2)}, {v(ab+2*q,2)}, {v(Z+2*n,2)} op_sel:[0,0,0] op_sel_hi:[1,0,1]')
        for n in range(8): L.append(f'v_exp_f32 v{E+n}, v{Z+n}')
        for n in range(4): L.append(f'v_pk_fma_f32 {v(E+2*n,2)}, {v(E+2*n,2)}, s[{sM0}:{sM0+1}], v[2:3]')
        for n in range(8): L.append(f'v_rcp_f32 v{E+n}, v{E+n}')
        for n in range(4): L.append(f'v_pk_mul_f32 {v(Z+2*n,2)}, {v(Z+2*n,2)}, {v(E+2*n,2)}')
        o = O[gi & 1]
        for n in range(4): L.append(f'v_cvt_pk_bf16_f32 v{o+n}, v{Z+2*n}, v{Z+2*n+1}')
        T = [f'v_permlane16_swap_b32 v{o}, v{o+2}', f'v_permlane16_swap_b32 v{o+1}, v{o+3}']
        if gi < 6: T.append(f'buffer_store_dwordx4 {v(o,4)}, v{t1}, s[{sWS}:{sWS+3}], s{sHb+gi//3} offen offset:{1024*(gi%3)}{SC}')
        else: T.append(f'buffer_store_dwordx4 {v(o,4)}, v{t2}, s[{sWS}:{sWS+3}], s{sHs} offen{SC}')
        return L, T
    pend = []
    for gi in range(7):
        L, T = part1(gi)
        A('\n'.join(L[:2] + pend + L[2:])); pend = T
    A('\n'.join(pend))
    lds_inc(A, vSyM, SY_ST, vOneM)
    ST('epi')
    cw = mw
    sCh, sHF, sUb, sKb = sA, sB, sC, sE
    vK, vU, vSy, vOne, vL16 = 4, 5, 6, 7, 13
    A(f"""s_lshr_b32 s{sCh}, s{cw}, 1
    s_and_b32 s{sHF}, s{cw}, 1
    s_mul_i32 s{sUb}, s{sCh}, {UP}
    s_add_u32 s{sUb}, s{sUb}, {LU}
    s_mul_i32 s{sKb}, s{sCh}, {4*KCP}
    s_add_u32 s{sKb}, s{sKb}, {LKC}
    v_lshlrev_b32 v{vL16}, 4, v1
    v_mov_b32 v{vSy}, {LSY}
    v_mov_b32 v{vOne}, 1
    s_lshl_b32 s{sT0}, s{sCh}, 2
    v_add_u32 v{t0}, s{sT0}, v{vSy}
    v_and_b32 v{t1}, 3, v1
    v_sub_u32 v{t1}, 3, v{t1}
    v_mul_u32_u24 v{t1}, {KCP}, v{t1}
    v_bfe_u32 v{t2}, v1, 2, 2
    v_lshrrev_b32 v{t3}, 4, v1
    v_lshlrev_b32 v{vK}, 1, v{t3}
    v_sub_u32 v{vK}, v{vK}, v{t2}
    v_lshl_add_u32 v{vK}, v{vK}, 3, v{t1}
    s_lshl_b32 s{sT0}, s{sHF}, 8
    s_sub_u32 s{sT1}, s{sKb}, s{sT0}
    s_add_u32 s{sT1}, s{sT1}, {8*507-192-3584}
    v_add_u32 v{vK}, s{sT1}, v{vK}
    v_and_b32 v{t1}, 15, v1
    v_lshlrev_b32 v{t1}, 5, v{t1}
    v_lshl_add_u32 v{vU}, v{t3}, 4, v{t1}
    s_sub_u32 s{sT1}, s{sUb}, s{sT0}
    s_add_u32 s{sT1}, s{sT1}, {448-192}
    v_add_u32 v{vU}, s{sT1}, v{vU}""")
    def flag2():
        A(f"""s_lshl_b32 s{sT1}, s{sRB}, 8
        s_lshr_b32 s{sT0}, s{mw}, 1
        s_lshl_b32 s{sT0}, s{sT0}, 7
        s_add_u32 s{sT1}, s{sT1}, s{sT0}
        s_lshl_b32 s{sT0}, s{sCB}, 3
        s_add_u32 s{sT1}, s{sT1}, s{sT0}
        s_and_b32 s{sT0}, s{mw}, 1
        s_lshl_b32 s{sT0}, s{sT0}, 2
        s_add_u32 s{sT1}, s{sT1}, s{sT0}
        s_add_u32 s{sT1}, s{sT1}, {WS_F2}
        v_mov_b32 v{t1}, 0
        v_mov_b32 v{t2}, s{sNon}
        s_waitcnt vmcnt(0)
        s_setprio 3
        s_mov_b64 exec, 1
        buffer_store_dword v{t2}, v{t1}, s[{sWS}:{sWS+3}], s{sT1} offen{SC}
        s_mov_b64 exec, -1""")
    if cfg.get('f2rl', 1) == -1:
        flag2()
        ST('f2')
        load_x_final(A)
    lds_wait(A, 'L_WK', t0, SY_K, 2, t3, sT0, sleep=1)
    lds_wait(A, 'L_WU', vSy, SY_U, 4, t3, sT0, sleep=1)
    A(f's_or_b32 s{sT0}, s2, s{mw}\ns_cmp_lg_u32 s{sT0}, 0')
    A.fwd_branch('s_cbranch_scc1 L_NOEP')
    A(f's_mov_b32 s{sT0}, {WS_EP}\nv_mov_b32 v{t1}, 0\nv_mov_b32 v{t2}, s{sNon}\ns_mov_b64 exec, 1\nbuffer_store_dword v{t2}, v{t1}, s[{sWS}:{sWS+3}], s{sT0} offen{SC}\ns_mov_b64 exec, -1')
    A.label('L_NOEP')
    if cfg.get('cvdelay'):
        for _ in range(cfg['cvdelay']): A('s_sleep 100')
    A(f's_setprio {cfg.get("cvprio", 0)}')
    ST('cv0')
    ACC = 20
    FK = [52, 116]; FU = [84, 148]
    def creads(rl):
        b = rl & 1; L = []
        for m in range(8):
            L.append(f'ds_read_b128 {v(FU[b]+4*m,4)}, v{vU} offset:{512*m+64*(3-rl)}')
            for hh in range(2):
                L.append(f'ds_read_b64 {v(FK[b]+4*m+2*hh,2)}, v{vK} offset:{512*(7-m)+64*(3-rl)+8*hh}')
        return L
    A('\n'.join(creads(0)))
    for rl in range(4):
        b = rl & 1
        nxt = creads(rl + 1) if rl < 3 else []
        if rl == cfg.get('f2rl', 1):
            flag2()
            ST('f2')
            load_x_final(A)
            A(f's_setprio {cfg.get("cvprio", 0)}')
        A('s_waitcnt lgkmcnt(0)')
        if rl == 3: lds_inc(A, vSy, SY_CV, vOne)
        k = 0
        for m in range(8):
            for jj in range(8 - m):
                a = ACC + 4 * (m + jj)
                A(f'v_mfma_f32_16x16x32_f16 {v(a,4)}, {v(FK[b]+4*m,4)}, {v(FU[b]+4*jj,4)}, {"0" if rl == 0 and m == 0 else v(a,4)}')
                if k < len(nxt): A(nxt[k])
                k += 1
    ST('cv1')
    A('s_setprio 2')
    lds_wait(A, 'L_WCV', vSy, SY_CV, 4, t3, sT0)
    A(f"""s_lshl_b32 s{sT0}, s{cw}, 13
    s_add_u32 s{sT0}, s{sT0}, {LEX}
    v_add_u32 v{t1}, s{sT0}, v{vL16}""")
    for i in range(8): A(f'ds_write_b128 v{t1}, {v(ACC+4*i,4)} offset:{1024*i}')
    UU = 116; YS = 124
    A(f"""s_lshl_b32 s{sT0}, s{cw}, 11
    s_add_u32 s{sT1}, s{sT0}, {LEX}
    v_add_u32 v{t0}, s{sT1}, v{vL16}
    v_and_b32 v{vK}, 15, v1
    v_lshrrev_b32 v{vU}, 4, v1
    v_lshlrev_b32 v{vU}, 2, v{vU}
    v_lshl_add_u32 v{vK}, v{vK}, 4, v{vU}
    s_lshl_b32 s{sT1}, s{cw}, 10
    s_add_u32 s{sT1}, s{sT1}, {LU+480}
    v_lshl_add_u32 v{vU}, v{vK}, 1, s{sT1}
    v_lshlrev_b32 v{vK}, 2, v{vK}
    s_lshl_b32 s{sT2}, s{sDP}, 14
    s_add_u32 s{sT2}, s{sT2}, s{sT0}
    s_add_u32 s{sT2}, s{sT2}, s{sT0}
    s_add_u32 s{sT2}, s{sT2}, {WS_SP}
    s_and_b32 s{sE}, s{sD}, 0xffff0000
    s_lshl_b32 s{sD}, s{sD}, 16
    s_waitcnt lgkmcnt(0)""")
    for ti in range(2):
        for c in range(2): A(f'ds_read_b64 {v(UU+4*ti+2*c,2)}, v{vU} offset:{512*ti+UP*c}')
    lds_inc(A, vSy, SY_EX, vOne)
    A(f'ds_read_b64 {v(YS,2)}, v{vSy} offset:40')
    lds_wait(A, 'L_WEX', vSy, SY_EX, 4, t3, sT0)
    PB = 52
    for ti in range(2):
        for w in range(4): A(f'ds_read_b128 {v(PB+16*ti+4*w,4)}, v{t0} offset:{8192*w+1024*ti}')
    for ti in range(2):
        A(f's_waitcnt lgkmcnt({4-4*ti})')
        for c in range(2):
            p0, p1 = PB + 16 * ti + 8 * c, PB + 16 * ti + 8 * c + 4
            for e in range(4): A(f'v_add_f32 v{p0+e}, v{p0+e}, v{p1+e}')
            for e in range(4): A(f'v_mul_f32 v{p0+e}, v{YS+c}, v{p0+e}')
            for e in range(4): A(f'v_fma_mix_f32 v{p0+e}, v{UU+4*ti+2*c+(e>>1)}, s{sD+c}, v{p0+e} op_sel:[{e&1},0,0] op_sel_hi:[1,0,0]')
        o = 128 + 8 * ti
        for e in range(4): A(f'v_cvt_pk_bf16_f32 v{o+2*e}, v{PB+16*ti+e}, v{PB+16*ti+8+e}\nv_mov_b32 v{o+2*e+1}, s{sNon}')
        for hh in range(2): A(f'buffer_store_dwordx4 {v(o+4*hh,4)}, v{vK}, s[{sWS}:{sWS+3}], s{sT2} offen offset:{2048*ti+1024*hh}{SC}')
    ST('f3')
    A(f"""v_lshrrev_b32 v{vK}, 5, v1
    v_bfe_u32 v{vU}, v1, 4, 1
    v_and_b32 v{t3}, 15, v1
    v_lshlrev_b32 v{t2}, 4, v{t3}
    v_lshl_add_u32 v{t2}, v{vU}, 10, v{t2}
    v_lshl_add_u32 v{t2}, v{vK}, 14, v{t2}
    s_lshl_b32 s{sA}, s{sCB2}, 19
    s_lshl_b32 s{sT2}, s{cw}, 17
    s_add_u32 s{sA}, s{sA}, s{sT2}
    s_lshr_b32 s{sT2}, s{sRB2}, 2
    s_lshl_b32 s{sT2}, s{sT2}, 11
    s_add_u32 s{sA}, s{sA}, s{sT2}
    s_and_b32 s{sT2}, s{sRB2}, 3
    s_lshl_b32 s{sT2}, s{sT2}, 8
    s_add_u32 s{sA}, s{sA}, s{sT2}
    s_add_u32 s{sA}, s{sA}, {WS_SP}
    s_add_u32 s{sB}, s{sA}, {32768}
    s_add_u32 s{sC}, s{sA}, {65536}
    s_add_u32 s{sD}, s{sA}, {98304}
    s_lshl_b32 s{sT2}, s{cw}, 3
    v_add_u32 v{vK}, s{sT2}, v{vK}
    v_and_b32 v{t1}, 7, v1
    v_lshlrev_b32 v{t1}, 2, v{t1}
    v_xor_b32 v{vK}, v{vK}, v{t1}
    v_lshlrev_b32 v{vK}, 2, v{vK}
    v_lshl_add_u32 v{vK}, v{t3}, 9, v{vK}
    v_lshl_add_u32 v{vK}, v{vU}, 8, v{vK}
    v_add_u32 v{vK}, {LS}, v{vK}
    v_xor_b32 v{vU}, 16, v{vK}""")
    lds_wait(A, 'L_WT', vSy, SY_TRIG, 1, t3, sT0, sleep=4)
    SG = 44
    gpoll(A, 'L_P3', '\n'.join(f'buffer_load_dwordx4 {v(SG+4*it,4)}, v{t2}, s[{sWS}:{sWS+3}], s{sA+it} offen{SC}' for it in range(4)),
          [SG + 2 * k + 1 for k in range(8)], sleep=cfg.get('p3sleep', 12))
    ST('p3')
    for it in range(4):
        for e in range(2): A(f'ds_write_b32 v{vU if it >= 2 else vK}, v{SG+4*it+2*e} offset:{128*e+8*(it&1)}')
    A.fwd_branch('s_branch L_FINAL')

def gen_H(A, cfg, ST):
    ST.role = 'H'
    A.label('L_H')
    hw = sWave
    vXo_, vWo = 16, 20
    vWr = 24
    vOne = 32
    t0, t1, t2, t3 = 36, 37, 38, 39
    vH, vW, vR = 48, 52, 56
    vRow = 64
    vTmp = 72
    vCS, vFw = 192, 220
    sXb, sWb, sLb, sCk = sA, sB, sC, sD
    sH, sWo, sK, sKw = 30, 31, 38, 39
    vq = Q(A, 'vmcnt', 63)
    A0 = A; A = BG(A0, vq, cfg.get('every', 6))
    b0, b1, b2 = 28, 29, 17
    def vwait(tag): A.flush(tag); vq.wait(tag)
    D = 232; kP = 64; PC, PR, YS, WA = 128, 160, 114, 64
    A(f"""s_lshr_b32 s{sT0}, s{hw}, 1
    s_lshl_b32 s{sT2}, s{sDP}, 1
    s_add_u32 s{sT2}, s{sT2}, s{sT0}
    s_and_b32 s{sT1}, s{hw}, 1
    s_lshl_b32 s{sT1}, s{sT1}, 7
    s_lshl_b32 s{sT0}, s{sT2}, 8
    s_add_u32 s{sT0}, s{sT0}, s{sT1}
    v_lshl_add_u32 v100, v1, 1, s{sT0}
    v_xor_b32 v101, 128, v100
    s_lshl_b32 s{sT0}, s{sT2}, 1
    v_mov_b32 v102, s{sT0}
    s_waitcnt lgkmcnt(0)
    global_load_ushort v{kP+6}, v102, s[{pLDT}:{pLDT+1}]
    global_load_ushort v{kP+0}, v100, s[{pLAR}:{pLAR+1}]
    global_load_ushort v{kP+1}, v100, s[{pAIM}:{pAIM+1}]
    global_load_ushort v{kP+2}, v100, s[{pCRE}:{pCRE+1}]
    global_load_ushort v{kP+3}, v100, s[{pCIM}:{pCIM+1}]
    global_load_ushort v{kP+4}, v101, s[{pCRE}:{pCRE+1}]
    global_load_ushort v{kP+5}, v101, s[{pCIM}:{pCIM+1}]""", 'par')
    A(f"""v_lshrrev_b32 v{t0}, 3, v1
    v_lshrrev_b32 v{t1}, 4, v1
    v_and_b32 v{t2}, 7, v1
    v_xor_b32 v{t2}, v{t2}, v{t1}
    v_lshlrev_b32 v{t2}, 4, v{t2}
    v_lshl_add_u32 v{vXo_}, v{t0}, 10, v{t2}
    v_xor_b32 v{t3}, 64, v{vXo_}
    v_add_u32 v{vXo_+1}, 7168, v{t3}
    v_add_u32 v{vXo_+2}, 14336, v{vXo_}
    v_add_u32 v{vXo_+3}, 21504, v{t3}""")
    for half in range(2):
        A(f"""v_bfe_u32 v{t0}, v1, 1, 3
        v_xor_b32 v{t0}, v{t0}, v{t1}
        v_xor_b32 v{t0}, {4*half}, v{t0}
        v_and_b32 v{t2}, 1, v1
        v_lshl_add_u32 v{t2}, v{t0}, 1, v{t2}
        s_lshl_b32 s{sT0}, s{sOdd}, 1
        v_add_u32 v{t2}, s{sT0}, v{t2}
        v_subrev_u32 v{t3}, 14, v{t2}
        v_cmp_gt_u32 vcc, 14, v{t2}
        v_cndmask_b32 v{t2}, v{t3}, v{t2}, vcc
        v_lshlrev_b32 v{t2}, 4, v{t2}
        v_mul_u32_u24 v{t3}, 3584, v{t1}
        v_add_u32 v{t2}, v{t2}, v{t3}
        v_mov_b32 v{t3}, 0x7f000000
        v_cmp_eq_u32 vcc, 7, v{t0}
        v_cndmask_b32 v{t2}, v{t2}, v{t3}, vcc
        v_add_u32 v{vWo+2*half}, {(2*half)*13312}, v{t2}
        v_add_u32 v{vWo+2*half+1}, {(2*half+1)*13312}, v{t2}""")
    A(f"""s_lshl_b32 s{sXb}, s{sRB}, 17
    s_lshl_b32 s{sT0}, s{hw}, 15
    s_add_u32 s{sXb}, s{sXb}, s{sT0}
    s_mul_i32 s{sWb}, s{hw}, {16*3584}
    s_mul_i32 s{sT0}, s{sCB}, 224
    s_add_u32 s{sWb}, s{sWb}, s{sT0}
    s_lshl_b32 s{sLb}, s{hw}, 12
    v_lshlrev_b32 v13, 4, v1
    """)
    srd(A, sX, pX, 2048 * 1024); srd(A, sW1, pW1, 512 * 3584)
    A0('s_barrier')
    ST('ld')
    def dma(st, now=False):
        slot = st & 3
        for i in range(4):
            pre = ''
            if i == 0:
                pre = f's_add_u32 s{b2}, s{sCh0}, {st}\ns_and_b32 s{b2}, s{b2}, 7\ns_lshl_b32 s{b0}, s{b2}, 7\ns_add_u32 s{b0}, s{b0}, s{sXb}\ns_add_u32 m0, s{sLb}, {Aslot(slot)}\ns_mul_i32 s{b1}, s{b2}, {64*3584}\ns_add_u32 s{b1}, s{b1}, s{sWb}\n'
            A.push(pre + f'buffer_load_dwordx4 v{vXo_+i}, s[{sX}:{sX+3}], s{b0} offen offset:{1024*i} lds', ('d', st))
        for i in range(4):
            pre = f's_add_u32 m0, s{sLb}, {Bslot(slot)}\n' if i == 0 else ''
            A.push(pre + f'buffer_load_dwordx4 v{vWo+i}, s[{sW1}:{sW1+3}], s{b1} offen offset:{1024*i} lds', ('d', st))
        if now: A.flush()
    dma(0, now=True)
    A(f"""v_lshrrev_b32 v{t0}, 2, v1
    v_mul_u32_u24 v{t0}, 3584, v{t0}
    v_and_b32 v{t1}, 3, v1
    v_mul_u32_u24 v{t1}, 72, v{t1}
    v_add_u32 v{t0}, v{t0}, v{t1}
    s_add_u32 s{sT0}, s{sCh0}, 1
    s_and_b32 s{sT0}, s{sT0}, 7
    s_mul_i32 s{sT0}, s{sT0}, {64*3584}
    s_add_u32 s{sT0}, s{sT0}, s{sWb}
    buffer_load_dword v47, v{t0}, s[{sW1}:{sW1+3}], s{sT0} offen""", 't1')
    srd(A, sWS, pWS, WS_SIZE); srd(A, sW2, pW2, 1792 * 1024); srd(A, sOUT, pOUT, 2048 * 1024)
    A(f"""v_bfe_u32 v{t0}, v1, 4, 1
    v_bfe_u32 v{t1}, v1, 2, 2
    v_lshl_or_b32 v{t2}, v{t0}, 2, v{t1}
    v_lshl_add_u32 v{t0}, v{t0}, 3, v{t1}
    v_lshrrev_b32 v{t1}, 5, v1
    v_lshl_add_u32 v{t0}, v{t1}, 2, v{t0}
    v_and_b32 v{t1}, 3, v1
    v_lshlrev_b32 v{t1}, 3, v{t1}
    v_lshl_add_u32 v{t3}, v{t0}, 8, v{t1}
    s_add_u32 s{sT0}, s{sLb}, {Bslot(0)}
    v_add_u32 v{t3}, s{sT0}, v{t3}""")
    for P in range(7): A(f'v_xor_b32 v{t0}, {P}, v{t2}\nv_lshl_add_u32 v{vWr+P}, v{t0}, 5, v{t3}')
    for i in range(4): A(f'v_mov_b32 v{vOne+i}, 0x3f803f80')
    A(f"""v_lshlrev_b32 v{vH}, 4, v1
    v_add_u32 v{vH+1}, {57344}, v{vH}
    v_add_u32 v{vH+2}, {2*57344}, v{vH}
    v_add_u32 v{vH+3}, {3*57344}, v{vH}
    s_mul_i32 s{sH}, s{sRB2}, {4*57344}
    s_mul_i32 s{sT0}, s{hw}, {14*1024}
    s_add_u32 s{sH}, s{sH}, s{sT0}
    v_lshrrev_b32 v{t0}, 3, v1
    v_bfe_u32 v{t1}, v1, 4, 1
    v_lshlrev_b32 v{t1}, 1, v{t1}
    v_and_b32 v{t2}, 7, v1
    v_xor_b32 v{t2}, v{t2}, v{t1}
    v_lshlrev_b32 v{t2}, 4, v{t2}
    v_lshl_add_u32 v{vW}, v{t0}, 10, v{t2}
    v_xor_b32 v{t3}, 64, v{vW}
    v_add_u32 v{vW+1}, 7168, v{t3}
    v_add_u32 v{vW+2}, 14336, v{vW}
    v_add_u32 v{vW+3}, 21504, v{t3}
    s_mul_i32 s{sWo}, s{hw}, {14*32768}
    s_lshl_b32 s{sT0}, s{sCB2}, 7
    s_add_u32 s{sWo}, s{sWo}, s{sT0}
    s_mov_b32 s{sKw}, s{sK0}
    s_mov_b32 s{sK}, s{sK0}
    v_lshrrev_b32 v{t0}, 4, v1
    v_bfe_u32 v{t1}, v1, 2, 2
    v_lshl_add_u32 v{t0}, v{t0}, 3, v{t1}
    v_bfe_u32 v{t1}, v1, 3, 2
    v_and_b32 v{t2}, 3, v1
    v_lshlrev_b32 v{t2}, 3, v{t2}
    v_lshl_add_u32 v{t2}, v{t0}, 7, v{t2}
    v_add_u32 v{t2}, s{sLb}, v{t2}""")
    for T in range(4): A(f'v_xor_b32 v{t3}, {T}, v{t1}\nv_lshl_add_u32 v{vR+T}, v{t3}, 5, v{t2}')
    for T in range(4): A(f'v_add_u32 v{vR+4+T}, 65536, v{vR+T}')
    ST('d01')
    vSy, vI1 = 6, 7
    A(f'v_mov_b32 v{vSy}, {LSY}\nv_mov_b32 v{vI1}, 1')
    def colsum(st):
        slot = st & 3
        vwait(('d', st))
        for P in range(7): A(f'ds_read_b64_tr_b16 {v(vFw+4*P+2*(st&1),2)}, v{vWr+P} offset:{slot*16384}')
        A('s_waitcnt lgkmcnt(0)')
        if st == 7:
            for P in range(4, 7): A(f'v_mov_b32 v{vFw+4*P}, 0\nv_mov_b32 v{vFw+4*P+1}, 0')
        for P in range(7):
            if (P < 4 and st & 1) or (P >= 4 and (not st & 1 or st == 7)):
                A(f'v_mfma_f32_16x16x32_bf16 {v(vCS+4*P,4)}, {v(vOne,4)}, {v(vFw+4*P,4)}, {"0" if st <= 1 else v(vCS+4*P,4)}')
    for P in range(4, 7): A(f'v_mov_b32 v{vFw+4*P+2}, 0\nv_mov_b32 v{vFw+4*P+3}, 0')
    ST('pre')
    NREG = cfg.get('nreg', 6)
    WR = 192 - 16 * NREG
    def ldW(i):
        for e in range(4):
            pre = f's_add_u32 m0, s{sLb}, {RING[i % 6]}\ns_lshl_b32 s{b0}, s{sKw}, 15\ns_add_u32 s{b0}, s{sWo}, s{b0}\ns_add_u32 s{sKw}, s{sKw}, 1\ns_cmp_eq_u32 s{sKw}, 14\ns_cselect_b32 s{sKw}, 0, s{sKw}\n' if e == 0 else ''
            A.push(pre + f'buffer_load_dwordx4 v{vW+e}, s[{sW2}:{sW2+3}], s{b0} offen offset:{1024*e} lds', ('w', i))
    def rdW(i, dst):
        base = RING[i % 6]; hi = 4 if base >= 65536 else 0; base &= 65535
        for T in range(4):
            for hh in range(2):
                A(f'ds_read_b64_tr_b16 {v(dst+4*T+2*hh,2)}, v{vR+hi+T} offset:{base+hh*512}')
    nw = [0]
    def ldWn(n):
        for _ in range(n): ldW(nw[0]); nw[0] += 1
    def cert(st):
        vwait(('d', st)); lds_inc(A0, vSy, CERT(st), vI1); ST(f'c{st}')
    def wdone(st): lds_wait(A0, f'L_DN{st}', vSy, DONE(st), 4, t3, sT0, sleep=1); ST(f'w{st}')
    def pop3():
        for _ in range(3):
            if A.q: A.pop()
    def bar(st):
        if st < 8: vwait(('d', st))
        ST(f'b{st}'); A0('s_barrier'); ST(f'B{st}')
    A(f"""s_lshl_b32 s{sT0}, s{sK0}, 5
    s_mul_i32 s{sT1}, s{hw}, {448*1024}
    s_lshl_b32 s{sT2}, s{sCB2}, 7
    s_add_u32 s{sT1}, s{sT1}, s{sT2}""")
    for k in range(2):
        A(f"""v_add_u32 v{t0}, s{sT0}, v1
        v_add_u32 v{t0}, {48*k}, v{t0}
        v_subrev_u32 v{t1}, 448, v{t0}
        v_cmp_gt_u32 vcc, 448, v{t0}
        v_cndmask_b32 v{t0}, v{t1}, v{t0}, vcc
        v_lshl_add_u32 v{45+k}, v{t0}, 10, s{sT1}""")
    sF1 = 16
    A(f"""v_and_b32 v{t0}, 31, v1
    v_lshlrev_b32 v2, 3, v{t0}
    s_lshl_b32 s{sE}, s{sRB}, 10
    s_lshl_b32 s{sT1}, s{hw}, 8
    s_add_u32 s{sE}, s{sE}, s{sT1}
    s_add_u32 s{sE}, s{sE}, {WS_GR}
    s_lshr_b32 s{sF1}, s{sDP}, 6
    s_lshl_b32 s{sF1}, s{sF1}, 10
    s_add_u32 s{sF1}, s{sF1}, s{sT1}
    s_add_u32 s{sF1}, s{sF1}, {WS_F1}
    v_lshlrev_b32 v41, 2, v1""")
    A.flush()
    vwait('par')
    ST('par')
    KT = kgen_tables(kP, PC, PR, YS)
    nk = cfg.get('d1at', 170)
    A('\n'.join(KT[:nk]))
    A.every = 12; dma(1)
    A('\n'.join(KT[nk:]))
    A.flush(); A.every = cfg.get('every', 6)
    ST('kt')
    nd = [2]
    for _ in range(cfg.get('pre', 1)): dma(nd[0], now=True); nd[0] += 1
    AHEAD = cfg.get('ahead', [1, 1, 1, 1, 1])
    O = 192; R = 116; RA = 88
    def pk(d, a, b): return f'v_cvt_pk_f16_f32 v{d}, v{a}, v{b}'
    sCh, sHF, sKb = 18, 19, 20
    def kpack():
        A(f"""s_lshr_b32 s{sCh}, s{hw}, 1
        s_and_b32 s{sHF}, s{hw}, 1
        v_and_b32 v{t0}, 31, v1
        v_lshrrev_b32 v{t1}, 5, v1
        v_and_b32 v{t2}, 15, v1
        v_xor_b32 v{t1}, v{t1}, v{t2}
        v_lshlrev_b32 v{t1}, 4, v{t1}
        v_lshl_add_u32 v{t1}, v{t0}, 8, v{t1}
        s_lshl_b32 s{sT0}, s{sCh}, 16
        s_lshl_b32 s{sT1}, s{sHF}, 13
        s_add_u32 s{sT0}, s{sT0}, s{sT1}
        v_add_u32 v{RA}, s{sT0}, v{t1}
        v_lshl_add_u32 v{WA}, v1, 2, s{sT0}
        v_add_u32 v96, s{sT0}, v13
        v_xor_b32 v97, 0x2000, v96""")
        for x in range(1, 16): A(f'v_xor_b32 v{WA+x}, {x*16}, v{WA}')
        for sg in range(1, 8): A(f'v_xor_b32 v{RA+sg}, {sg*32}, v{RA}')
        A(f"""s_mul_i32 s{sKb}, s{sCh}, {4*KCP}
        s_add_u32 s{sKb}, s{sKb}, {LKC}
        s_lshl_b32 s{sT0}, s{sCh}, 2
        v_add_u32 v{R}, s{sT0}, v{vSy}
        v_mov_b32 v{R+4}, 0
        v_mov_b32 v{R+5}, 0
        v_mov_b32 v{R+6}, 0
        v_mov_b32 v{R+7}, 0
        v_lshrrev_b32 v{R+1}, 2, v1
        v_mul_u32_u24 v{R+1}, {KCP}, v{R+1}
        v_and_b32 v{t2}, 3, v1
        v_lshl_add_u32 v{R+1}, v{t2}, 4, v{R+1}
        v_add_u32 v{R+1}, s{sKb}, v{R+1}
        s_mul_i32 s{sT0}, s{sCh}, {UP}
        s_add_u32 s{sT0}, s{sT0}, {LU}
        v_add_u32 v{R+2}, s{sT0}, v13
        s_add_u32 s{sT0}, s{sKb}, 1008
        v_sub_u32 v{R+3}, s{sT0}, v13
        s_lshl_b32 s{sT0}, s{sHF}, 11
        s_add_u32 s{sT0}, s{sT0}, s{sKb}
        v_add_u32 v{R+8}, s{sT0}, v13
        """)
    def twr(P):
        for i in range(16): A(f'ds_write2st64_b32 v{WA+i}, v{P+i}, v{P+i+16} offset0:{i} offset1:{i+16}')
    def trd(P):
        for sg in range(8): A(f'ds_read_b128 {v(P+4*sg,4)}, v{RA+sg}')
    def kmfma():
        for sg in range(8):
            A(f's_waitcnt lgkmcnt({7-sg})')
            A(f'v_mfma_f32_32x32x16_f16 {v(D,16)}, {v(PR+4*sg,4)}, {v(PC+4*sg,4)}, {"0" if sg == 0 else v(D,16)}')
        for i in range(4): A(f'ds_write_b128 v96, {v(D+4*i,4)} offset:{1024*i}')
        A(f'ds_write_b32 v{R}, v{YS} offset:40')
    def ksum():
        for i in range(4): A(f'ds_read_b128 {v(PC+4*i,4)}, v97 offset:{1024*i}')
        A('s_waitcnt lgkmcnt(0)')
        lds_inc(A0, vSy, SY_XS, vI1)
        for i in range(15): A(f'v_add_f32 v{D+i}, v{D+i}, v{PC+i}')
        A(f'v_and_b32 v{t3}, 1, v1\nv_cmp_eq_u32 s[{sM1}:{sM1+1}], 1, v{t3}')
        Qk = [pk(O, D+7, D+6), pk(O+1, D+5, D+4), pk(O+2, D+3, D+2), pk(O+3, D+1, D+0)]
        Qk += [pk(O+4, D+10, D+10), pk(O+5, D+9, D+9), pk(O+6, D+9, D+8), pk(O+7, D+8, D+8)]
        for c in range(2):
            lo, hi = D + 11 + 2 * c, D + 12 + 2 * c; o = O + 8 + 4 * c
            Qk += [f'v_cndmask_b32 v{t3}, v{lo}, v{hi}, s[{sM1}:{sM1+1}]', pk(o, hi, hi), pk(o+1, hi, t3), pk(o+2, lo, lo), pk(o+3, lo, lo)]
        A('\n'.join(Qk))
    for k in range(6):
        bar(k)
        for _ in range(AHEAD[k] if k < len(AHEAD) else 1):
            if nd[0] < 8:
                assert nd[0] <= k + 3
                dma(nd[0]); nd[0] += 1
        pop3()
        if k == 5 and cfg.get('touch', 1):
            A(f'buffer_load_dword v47, v45, s[{sW2}:{sW2+3}], 0 offen', 'tw')
        if k == 0: A(f'ds_read_b32 v15, v{vSy} offset:32')
        if k == 1: kpack()
        for c in {0: [0], 1: [1], 2: [2, 3], 3: [4], 4: [5], 5: [6, 7]}[k]: colsum(c)
        if k == 0: A(f'v_readfirstlane_b32 s{sNon}, v15')
        A.flush()
        if k == 4: A(f'buffer_load_dwordx2 v[4:5], v2, s[{sWS}:{sWS+3}], s{sE} offen{SC}', 'gl'); A(f'buffer_load_dword v40, v41, s[{sWS}:{sWS+3}], s{sF1} offen{SC}', 'f1')
    for P in range(7): A(f'v_mov_b32 v{vFw+P}, v{vCS+4*P}')
    A(f"""s_lshl_b32 s{sT0}, s{hw}, 9
    s_add_u32 s{sT0}, s{sT0}, {LCSP}
    v_lshl_add_u32 v{t1}, v1, 5, s{sT0}
    s_mov_b64 exec, 0xffff
    ds_write_b128 v{t1}, {v(vFw,4)}
    ds_write_b128 v{t1}, {v(vFw+4,4)} offset:16
    s_mov_b64 exec, -1
    s_waitcnt lgkmcnt(0)""")
    bar(6)
    gpoll(A0, 'L_P1', f'buffer_load_dword v40, v41, s[{sWS}:{sWS+3}], s{sF1} offen{SC}', [40], first=lambda: vwait('f1'))
    ST('p1')
    UG = 16
    A(f"""v_lshrrev_b32 v{t0}, 1, v1
    v_and_b32 v{t1}, 1, v1
    v_lshlrev_b32 v{t2}, 4, v{t1}
    v_lshl_add_u32 v{t2}, v{t0}, 13, v{t2}
    s_lshl_b32 s{sT0}, s{sDP}, 5
    s_lshl_b32 s{sT1}, s{hw}, 19
    s_add_u32 s{sT0}, s{sT0}, s{sT1}
    s_add_u32 s{sT0}, s{sT0}, {WS_XN}
    s_add_u32 s{sT1}, s{sT0}, {32*8192}
    buffer_load_dwordx4 {v(UG,4)}, v{t2}, s[{sWS}:{sWS+3}], s{sT0} offen{SC}
    buffer_load_dwordx4 {v(UG+4,4)}, v{t2}, s[{sWS}:{sWS+3}], s{sT1} offen{SC}
    v_mul_u32_u24 v{t1}, {UP}, v{t1}
    v_lshl_add_u32 v44, v{t0}, 4, v{t1}
    s_lshl_b32 s{sT0}, s{hw}, 10
    s_add_u32 s{sT0}, s{sT0}, {LU+480}
    v_add_u32 v44, s{sT0}, v44
    """, 'u')
    A(f"""v_and_b32 v{t0}, 31, v1
    s_lshl_b32 s{sT0}, s{hw}, 5
    v_add_u32 v{t0}, s{sT0}, v{t0}
    v_lshlrev_b32 v{t1}, 2, v{t0}
    v_add_u32 v{t1}, {LCSP}, v{t1}""")
    for w in range(4): A(f'ds_read_b32 v{vCS+w}, v{t1} offset:{512*w}')
    A(f"""v_and_b32 v{t1}, 7, v{t0}
    v_lshrrev_b32 v{t0}, 3, v{t0}
    v_lshl_add_u32 v{t0}, v{t1}, 4, v{t0}
    v_lshlrev_b32 v{t0}, 2, v{t0}
    v_add_u32 v{t0}, {LCS}, v{t0}""")
    gpoll(A0, 'L_PG', f'buffer_load_dwordx2 v[4:5], v2, s[{sWS}:{sWS+3}], s{sE} offen{SC}', [5], first=lambda: vwait('gl'))
    A(f"""v_and_b32 v{t2}, 0xffff0000, v4
    v_lshlrev_b32 v{t3}, 16, v4
    v_rcp_f32 v{t2}, v{t2}
    s_lshl_b32 s{sT0}, s{hw}, 8
    s_add_u32 s{sT0}, s{sT0}, {LSTAT}
    v_add_u32 v{t1}, s{sT0}, v2
    v_mul_f32 v{t2}, {NLOG2E}, v{t2}
    v_mul_f32_e64 v{t3}, -v{t3}, v{t2}
    ds_write_b64 v{t1}, v[{t2}:{t3}]
    s_waitcnt lgkmcnt(1)
    v_add_f32 v{vCS}, v{vCS}, v{vCS+1}
    v_add_f32 v{vCS+2}, v{vCS+2}, v{vCS+3}
    v_add_f32 v{vCS}, v{vCS}, v{vCS+2}
    ds_write_b32 v{t0}, v{vCS}""")
    A(f'buffer_load_dword v47, v46, s[{sW2}:{sW2+3}], 0 offen', 'tw')
    lds_inc(A0, vSy, CERT(8), vI1)
    ST('B8')
    if cfg.get('klate', 1): lds_wait(A0, 'L_WD7a', vSy, DONE(7), 4, t3, sT0, sleep=1)
    A0(f's_setprio {cfg.get("kprio", 3)}')
    twr(PC); trd(PC)
    twr(PR); trd(PR)
    kmfma()
    lds_inc(A0, R, SY_KG, vI1)
    lds_wait(A0, 'L_WKG', R, SY_KG, 2, t3, sT0)
    ksum()
    lds_wait(A0, 'L_WD7', vSy, DONE(7), 4, t3, sT0)
    lds_wait(A0, 'L_WC8', vSy, CERT(8), 4, t3, sT0)
    A(f"""s_mov_b64 exec, 0xffff
    ds_write_b128 v{R+1}, {v(R+4,4)} offset:4096
    s_mov_b64 exec, 0x3fffffff
    ds_write_b128 v{R+2}, {v(R+4,4)}
    s_mov_b64 exec, -1""")
    for c in range(4): A(f'ds_write_b128 v{R+3}, {v(O+4*c,4)} offset:{1024*(3-c)}')
    for rd in range(2):
        E = 128 + 24 * rd
        A(f'ds_read_b128 {v(E,4)}, v{R+8} offset:{1024*rd}\nds_read_b64 {v(E+4,2)}, v{R+8} offset:{1024*rd+16}')
    for rd in range(2):
        E = 128 + 24 * rd; c1, c2, c3 = E + 8, E + 12, E + 16
        A(f's_waitcnt lgkmcnt({2+rd})')
        for i in range(4):
            A(f'v_alignbit_b32 v{c1+i}, v{E+i+1}, v{E+i}, 16\nv_mov_b32 v{c2+i}, v{E+i+1}\nv_alignbit_b32 v{c3+i}, v{E+i+2}, v{E+i+1}, 16')
        for k, c in enumerate((c1, c2, c3)): A(f'ds_write_b128 v{R+8}, {v(c,4)} offset:{1024*rd+(k+1)*KCP}')
    lds_inc(A0, R, SY_K, vI1)
    vwait('u')
    A(f'ds_write_b128 v44, {v(UG,4)}\nds_write_b128 v44, {v(UG+4,4)} offset:512')
    lds_inc(A0, vSy, SY_U, vI1); ST('u')
    ST('kx')
    A0(f's_setprio {cfg.get("wprio", 0)}')
    lds_wait(A0, 'L_WST', vSy, SY_ST, cfg.get('stn', 4), t3, sT0, sleep=1)
    ST('st')
    A0('s_waitcnt lgkmcnt(0)')
    lds_wait(A0, 'L_WXS', vSy, SY_XS, 4, t3, sT0)
    ldWn(cfg.get('d2', 5)); A.flush()
    D2 = cfg.get('d2', 5)
    NW = NREG + 6
    A(f"""s_lshl_b32 s{sE}, s{sRB2}, 7
    s_lshl_b32 s{sT1}, s{hw}, 5
    s_add_u32 s{sE}, s{sE}, s{sT1}
    s_add_u32 s{sE}, s{sE}, {WS_F2}
    v_and_b32 v{t0}, 7, v1
    v_lshlrev_b32 v{t0}, 2, v{t0}""")
    F2L = f'buffer_load_dword v{t2}, v{t0}, s[{sWS}:{sWS+3}], s{sE} offen{SC}'
    for i in range(NREG + 1):
        if i < NREG:
            vwait(('w', i))
            ST(f'W{i}')
            rdW(i, WR + 16 * i)
        while nw[0] < NW and nw[0] <= i + D2 and nw[0] - 6 <= i - 1:
            if nw[0] >= 6: A0(f's_waitcnt lgkmcnt({8 if i < NREG else 0})')
            if nw[0] == NW - cfg.get('f2early', 1): A(F2L, 'f2')
            ldWn(1); A.flush()
    assert nw[0] == NW
    A.flush()
    load_x_final(A0); vq.add('x')
    ST('wpre')
    gpoll(A0, 'L_P2', F2L, [t2], sleep=cfg.get('p2sleep', 4), first=lambda: vwait('f2'))
    ST('p2')
    if cfg.get('hprio'): A(f's_setprio {cfg["hprio"]}')
    ACC = 192
    free = [16, 32] + list(range(64, WR, 16))
    hbuf = {}
    nh = 0
    def ldH():
        nonlocal nh
        if nh >= 14 or not free: return
        b = free.pop(0); hbuf[nh] = b
        for q in range(4):
            pre = f's_lshl_b32 s{b1}, s{sK}, 10\ns_add_u32 s{b1}, s{sH}, s{b1}\ns_add_u32 s{sK}, s{sK}, 1\ns_cmp_eq_u32 s{sK}, 14\ns_cselect_b32 s{sK}, 0, s{sK}\n' if q == 0 else ''
            A.push(pre + f'buffer_load_dwordx4 {v(b+4*q,4)}, v{vH+q}, s[{sWS}:{sWS+3}], s{b1} offen{SC}', ('h', nh))
        nh += 1
    while free: ldH()
    A.flush()
    A0(f"""v_and_b32 v2, 15, v1
    v_lshrrev_b32 v3, 4, v1
    v_xor_b32 v3, v3, v2
    v_lshlrev_b32 v3, 4, v3
    v_lshl_add_u32 v2, v2, 8, v3
    v_add_u32 v2, s{sLb}, v2
    v_xor_b32 v3, 64, v2
    v_xor_b32 v4, 128, v2
    v_xor_b32 v5, 192, v2""")
    A.every = cfg.get('every2', 6)
    wfrag = {i: WR + 16 * i for i in range(NREG)}
    wtmp = []; pend = []
    for i in range(14):
        if i == cfg.get('trig', 9):
            A0(f'ds_write_b32 v{vSy}, v{vI1} offset:{SY_TRIG}')
        if NREG <= i + 1 < 14:
            vwait(('w', i + 1))
            wfrag[i + 1] = wtmp.pop(0); rdW(i + 1, wfrag[i + 1])
        if i < cfg.get('ramp', 3): A.flush()
        vwait(('h', i))
        ST(f'h{i}')
        if i >= NREG:
            A0(f's_waitcnt lgkmcnt({8 if i + 1 < 14 else 0})')
            if nw[0] < 14: ldWn(1)
        for T in range(4):
            for q in range(4):
                a = ACC + 16 * T + 4 * q
                A(f'v_mfma_f32_16x16x32_bf16 {v(a,4)}, {v(wfrag[i]+4*T,4)}, {v(hbuf[i]+4*q,4)}, {"0" if i == 0 else v(a,4)}')
                if i == 13:
                    pend.append(f'ds_write_b128 v{2+T}, {v(a,4)} offset:{PART[q]}')
                    if len(pend) > 4: A0(pend.pop(0))
        if i == 13: A0('\n'.join(pend))
        A.flush()
        free.append(hbuf[i])
        if i >= NREG - 3: wtmp.append(wfrag[i])
        else: free.append(wfrag[i])
        ldH(); ldH()
    ST('g2')

def gen_final(A, cfg, ST):
    A.label('L_FINAL')
    t0, t1, t2, t3 = 4, 5, 6, 7
    PB = 16; SV = 48; E = 52; XU = 60; SU = 68
    A(f"""v_lshrrev_b32 v{t0}, 3, v0
    v_and_b32 v{t1}, 7, v0
    v_and_b32 v2, 15, v{t0}
    v_lshlrev_b32 v3, 1, v{t1}
    v_xor_b32 v3, v3, v2
    v_lshlrev_b32 v3, 4, v3
    v_lshl_add_u32 v{t2}, v2, 8, v3
    v_lshrrev_b32 v2, 7, v0
    v_lshl_add_u32 v{t2}, v2, 14, v{t2}
    v_xor_b32 v{t3}, 16, v{t2}
    v_bfe_u32 v3, v0, 5, 3
    v_xor_b32 v{t1}, v{t1}, v3
    v_lshlrev_b32 v{t1}, 4, v{t1}
    v_lshl_add_u32 v{t1}, v{t0}, 7, v{t1}
    v_add_u32 v{t1}, {LS}, v{t1}
    s_mov_b32 s{sM0}, {NLOG2E}
    s_mov_b32 s{sM0+1}, {NLOG2E}
    s_waitcnt vmcnt(0) lgkmcnt(0)
    s_barrier""")
    for w in range(4):
        for hh in range(2): A(f'ds_read_b128 {v(PB+8*w+4*hh,4)}, v{t2+hh} offset:{w*4096}')
    A(f'ds_read_b128 {v(SV,4)}, v{t1}')
    for j in range(4): A(f'v_lshlrev_b32 v{XU+2*j}, 16, v{vX+j}\nv_and_b32 v{XU+2*j+1}, 0xffff0000, v{vX+j}')
    A('s_waitcnt lgkmcnt(5)')
    for j in range(4): A(f'v_pk_add_f32 {v(PB+2*j,2)}, {v(PB+2*j,2)}, {v(PB+8+2*j,2)}')
    A('s_waitcnt lgkmcnt(1)')
    for j in range(4): A(f'v_pk_add_f32 {v(PB+16+2*j,2)}, {v(PB+16+2*j,2)}, {v(PB+24+2*j,2)}')
    for j in range(4): A(f'v_pk_add_f32 {v(PB+2*j,2)}, {v(PB+2*j,2)}, {v(PB+16+2*j,2)}')
    for j in range(4): A(f'v_pk_mul_f32 {v(E+2*j,2)}, {v(PB+2*j,2)}, s[{sM0}:{sM0+1}]')
    for j in range(8): A(f'v_exp_f32 v{E+j}, v{E+j}')
    for j in range(4): A(f'v_pk_add_f32 {v(E+2*j,2)}, {v(E+2*j,2)}, 1.0 op_sel_hi:[1,0]')
    for j in range(8): A(f'v_rcp_f32 v{E+j}, v{E+j}')
    A('s_waitcnt lgkmcnt(0)')
    for j in range(4): A(f'v_lshlrev_b32 v{SU+2*j}, 16, v{SV+j}\nv_and_b32 v{SU+2*j+1}, 0xffff0000, v{SV+j}')
    for j in range(4): A(f'v_pk_mul_f32 {v(PB+2*j,2)}, {v(PB+2*j,2)}, {v(E+2*j,2)}')
    for j in range(4): A(f'v_pk_fma_f32 {v(PB+2*j,2)}, {v(PB+2*j,2)}, {v(SU+2*j,2)}, {v(XU+2*j,2)}')
    for j in range(4): A(f'v_cvt_pk_bf16_f32 v{SV+j}, v{PB+2*j}, v{PB+2*j+1}')
    A(f'buffer_store_dwordx4 {v(SV,4)}, v{vXo}, s[{sOUT}:{sOUT+3}], 0 offen')
    ST.dump(sWS, 100, 101)

if __name__ == '__main__':
    out = sys.argv[1]
    cfg = eval(sys.argv[2]) if len(sys.argv) > 2 else {}
    PRESET = {1: dict(H=['par','kt','B0','B4','p1','B8','u','st','wpre','p2','g2','y'], M=['row','xn','kg','B0','B4','g1','epi','cv0','f2','cv1','f3','p3']),
              2: dict(H=['b0','b1','b2','b3','b4','b5','b6','b7','b8','p1','u','wpre'], M=['kg','B0','B1','B2','B3','B4','B5','B6','B7','B8','g1','epi'])}
    PRESET[3] = dict(H=['wpre','p2','g2'], M=['B0','g1','epi','f2','cv1','p3'])
    PRESET[4] = dict(H=['u','st','W0','W3','W6','wpre','p2','h0','h2','h5','h9','g2'], M=['g1','epi','cv0','f2','cv1','f3','p3'])
    if cfg.get('stamps') in PRESET:
        cfg['stamps'] = PRESET[cfg['stamps']]
        print('H:', ' '.join('%6s' % a for a in ['t0'] + cfg['stamps']['H'] + ['end']))
        print('M:', ' '.join('%6s' % a for a in ['t0'] + cfg['stamps']['M'] + ['end']))
    MINSLEEP[0] = cfg.get('minsleep', 0)
    A = Asm()
    head = open('cdna_kernels/%s.s.ref' % NAME).read().split('; Override')[0]
    A.raw('.amdgcn_target "amdgcn-amd-amdhsa--gfx950"\n.text')
    k = gen(A, cfg)
    open(out, 'w').write(head + '; @launch grid=(256,1,1) block=(512,1,1) lds=163840\n' + A.text() + '.section .rodata,"a"\n.p2align 6\n' + k)
```

```python
import sys, math, struct
from asmlib import Asm
from gen import NAME, f32, LOG2E, NLOG2E, INV2PI, v, s, srd, kernel_head, kd, cmul, bf16r, interleave

WS_H = 0
WS_XN = 0x700000
WS_SP = 0x900000
WS_GR = 0xD00000
WS_F1 = WS_GR + 0x4000
WS_F2 = WS_F1 + 0x1000
WS_F3 = WS_F2 + 0x1000
WS_EP = WS_F3 + 0x400
WS_STAMP = 0xD10000
WS_SIZE = 0xE00000
SC = ' sc1'

def Aslot(i): return i * 16384
def Bslot(i): return 65536 + i * 16384
LC = 131072
LDD = LC
LNB = LC + 16384; LNP = 1088
TOP = LC + 28672
LSTAT, LCS, LSY = TOP, TOP + 3072, TOP + 3584
LCSP = LNB
LKC = Bslot(3); KCP = 4160
LEX = LKC
LU = LKC + 8 * KCP; UP = 4608
LS = LU
RING = [Aslot(0), Bslot(0), Aslot(1), Bslot(1), Aslot(2), Bslot(2)]
PART = [Aslot(0), Aslot(1), Aslot(2), Aslot(3)]
SY_U, SY_H, SY_K, SY_CV, SY_EX, SY_S, SY_TRIG = 0, 4, 8, 16, 20, 24, 28
SY_XN, SY_XS, SY_KG, SY_ST = 48, 52, 56, 68
def CERT(st): return 64 + 4 * st
def DONE(st): return 128 + 4 * st

MINSLEEP = [0]
class Q:
    def __init__(s, A, name, mx): s.A, s.name, s.mx, s.q = A, name, mx, []
    def add(s, tag, n=1): s.q += [tag] * n
    def wait(s, tag):
        if tag not in s.q: return
        i = len(s.q) - 1 - s.q[::-1].index(tag)
        n = len(s.q) - 1 - i
        n = min(n, s.mx)
        s.A(f's_waitcnt {s.name}({n})'); s.q = s.q[len(s.q) - n:] if n else []
    def all(s):
        s.A(f's_waitcnt {s.name}(0)'); s.q = []

class BG:
    def __init__(s, A, vq, every): s.A, s.vq, s.every, s.q, s.n, s.hold = A, vq, every, [], 0, 0
    def push(s, text, tag): s.q.append((text, tag))
    def pop(s):
        t, tag = s.q.pop(0); s.A(t); s.vq.add(tag); s.n = 0
    def flush(s, tag=None):
        while s.q and (tag is None or any(t == tag for _, t in s.q)): s.pop()
    def __call__(s, text, tag=None):
        for line in text.strip().split('\n'):
            l = line.strip()
            if not l: continue
            if 'exec' in l.split(',')[0] and '-1' not in l: s.hold = 1
            if l.startswith('s_waitcnt lgkmcnt') and not s.hold:
                for _ in range(2):
                    if s.q: s.pop()
            s.A(l)
            if l.startswith(('buffer_', 'global_')):
                assert tag is not None, l
                s.vq.add(tag)
            if l.startswith('s_mov_b64 exec, -1'): s.hold = 0
            w = 3 if l.startswith('v_mfma') else 1
            s.n += w
            if s.q and not s.hold and s.n >= s.every and not l.startswith(('s_cmp', 's_sub_u32', 's_add_u32', 'v_cmp', 's_or_b64', 's_bitcmp')): s.pop()
    def __getattr__(s, k): return getattr(s.A, k)

class Stamps:
    def __init__(self, A, on): self.A, self.on, self.role = A, on, 'H'
    def start(self):
        if self.on: self.A('s_memrealtime s[70:71]\ns_memtime s[72:73]')
    def __call__(self, name):
        if self.on and name in self.on[self.role]:
            i = 1 + self.on[self.role].index(name)
            self.A(f's_memtime s[{72+2*i}:{73+2*i}]')
    def dump(self, sWS, vt, vo):
        if not self.on: return
        A = self.A
        A('s_waitcnt vmcnt(0)\ns_memtime s[98:99]\ns_memrealtime s[100:101]\ns_waitcnt lgkmcnt(0)')
        for i in range(16): A(f'v_writelane_b32 v{vt}, s{70+2*i}, {i}')
        A(f"""v_lshrrev_b32 v{vo}, 6, v0
        v_lshlrev_b32 v{vo}, 7, v{vo}
        v_and_b32 v{vo+1}, 63, v0
        v_lshl_add_u32 v{vo}, v{vo+1}, 2, v{vo}
        s_lshl_b32 s70, s2, 10
        s_add_u32 s70, s70, {WS_STAMP}
        s_mov_b64 exec, 0xffff
        buffer_store_dword v{vt}, v{vo}, s[{sWS}:{sWS+3}], s70 offen
        s_mov_b64 exec, -1""")

sX, sW1, sWS, sW2, sOUT = 4, 8, 12, 44, 48
pX, pLAR, pAIM, pCRE, pCIM, pLDT, pDSK, pW1, pW2, pOUT, pDBG, pWS = 16, 18, 20, 22, 24, 26, 28, 32, 34, 36, 38, 40
sWave, sRB, sCB, sT0, sT1, sT2, sOdd, sCh0, sDP, sNon, sCap, sRB2, sCB2 = 52, 53, 54, 55, 56, 57, 58, 59, 60, 61, 62, 63, 64
sA, sB, sC, sD, sE = 65, 66, 67, 68, 69
sK0 = 3
sM0 = 30
sM1 = 42

def lds_wait(A, name, vaddr, off, val, vt, st, sleep=0):
    sleep = max(sleep, MINSLEEP[0])
    A(f's_mov_b32 s{sCap}, 0x40000')
    A.label(name)
    if sleep: A(f's_sleep {sleep}')
    A(f'''ds_read_b32 v{vt}, v{vaddr} offset:{off}
    s_waitcnt lgkmcnt(0)
    v_readfirstlane_b32 s{st}, v{vt}
    s_sub_u32 s{sCap}, s{sCap}, 1
    s_cselect_b32 s{st}, {val}, s{st}
    s_cmp_lt_u32 s{st}, {val}''')
    A.back_branch(f's_cbranch_scc1 {name}', name)

def lds_inc(A, vaddr, off, vone, rtn=None):
    A('s_mov_b64 exec, 1')
    if rtn is None: A(f'ds_add_u32 v{vaddr}, v{vone} offset:{off}')
    else: A(f'ds_add_rtn_u32 v{rtn}, v{vaddr}, v{vone} offset:{off}')
    A('s_mov_b64 exec, -1')

def gpoll(A, name, load, checks, sleep=8, first=None):
    A(f's_mov_b32 s{sCap}, 0x8000')
    if first:
        first()
        A.fwd_branch(f's_branch {name}_C')
    A.label(name)
    A(f'{load}\ns_waitcnt vmcnt(0)')
    A.label(name + '_C')
    A(f'v_cmp_ne_u32 vcc, s{sNon}, v{checks[0]}')
    for c in checks[1:]:
        A(f'v_cmp_ne_u32 s[{sM1}:{sM1+1}], s{sNon}, v{c}\ns_or_b64 vcc, vcc, s[{sM1}:{sM1+1}]')
    A(f'''s_cmp_eq_u64 vcc, 0
    s_cbranch_scc1 {name}_D
    s_sub_u32 s{sCap}, s{sCap}, 1
    s_cbranch_scc1 {name}_D
    s_sleep {sleep}''')
    A.back_branch(f's_branch {name}', name)
    A.label(name + '_D')

def x_read_addr(A, vXr, sw, t0, t1, t2):
    A(f"""v_and_b32 v{t0}, 15, v1
    v_lshrrev_b32 v{t1}, 4, v1
    v_lshrrev_b32 v{t2}, 1, v{t0}
    v_xor_b32 v{t2}, v{t2}, v{t1}
    v_lshlrev_b32 v{t2}, 4, v{t2}
    v_lshl_add_u32 v{t2}, v{t0}, 7, v{t2}
    s_lshl_b32 s{sT0}, s{sw}, 12
    v_add_u32 v{vXr}, s{sT0}, v{t2}
    v_xor_b32 v{vXr+1}, 64, v{vXr}""")

def kgen_tables(kP, PC, PR, YS):
    lar, aim, cre, cim, cre2, cim2, ldt = [kP + i for i in range(7)]
    dt, a1, w1, t2, t3 = 72, 73, 74, 78, 79
    C = 80; F1, F2, F4, F8, F256, G8, G16, G128 = 82, 84, 86, 88, 90, 92, 94, 96
    X = [98, 100, 102, 104, 106, 108, 110, 112]
    L = []
    for r in range(7): L.append(f'v_lshlrev_b32 v{kP+r}, 16, v{kP+r}')
    L += [f'v_mul_f32 v{dt}, {LOG2E}, v{ldt}', f'v_mul_f32 v{a1}, {LOG2E}, v{lar}', f'v_exp_f32 v{dt}, v{dt}', f'v_exp_f32 v{a1}, v{a1}',
          f'v_max3_f32 v{t2}, |v{cre}|, |v{cim}|, |v{cre2}|', f'v_max_f32_e64 v{t2}, v{t2}, |v{cim2}|']
    La = bf16r(dt, dt) + bf16r(a1, a1) + [f'v_mul_f32 v{a1}, v{a1}, v{dt}', f'v_mul_f32 v{w1}, v{aim}, v{dt}', f'v_mul_f32 v{a1}, {NLOG2E}, v{a1}', f'v_mul_f32 v{w1}, {INV2PI}, v{w1}']
    def direct(d, pos, ta, tb, neg=False):
        return [f'v_mul_f32 v{ta}, {f32(pos)}, v{a1}', f'v_mul_f32 v{tb}, {f32(-pos if neg else pos)}, v{w1}', f'v_exp_f32 v{ta}, v{ta}', f'v_fract_f32 v{tb}, v{tb}',
                f'v_cos_f32 v{d}, v{tb}', f'v_sin_f32 v{d+1}, v{tb}', f'v_mul_f32 v{d}, v{d}, v{ta}', f'v_mul_f32 v{d+1}, v{d+1}, v{ta}']
    La += interleave(direct(G8, 8.0, X[0], X[0] + 1, True), direct(G128, 128.0, X[1], X[1] + 1, True))
    La += interleave(direct(F1, 1.0, X[2], X[2] + 1), direct(F256, 256.0, X[3], X[3] + 1))
    Lb = []
    for r in (1, 2, 4, 8): Lb += [f'v_max_f32_dpp v{t2}, v{t2}, v{t2} row_ror:{r} row_mask:0xf bank_mask:0xf', None]
    for op in ('v_permlane16_swap_b32', 'v_permlane32_swap_b32'):
        Lb += [f'v_mov_b32 v{t3}, v{t2}', None, f'{op} v{t2}, v{t3}', f'v_max_f32 v{t2}, v{t2}, v{t3}']
    Lb += [f'v_lshrrev_b32 v{t2}, 23, v{t2}', f'v_min_u32 v{t2}, 253, v{t2}', f'v_sub_u32 v{t3}, 254, v{t2}',
           f'v_lshlrev_b32 v{t3}, 23, v{t3}', f'v_lshlrev_b32 v{t2}, 23, v{t2}',
           f'v_mul_f32 v{C}, v{cre}, v{t3}', f'v_mul_f32 v{C+1}, v{cim}, v{t3}',
           f'v_mul_f32 v{YS}, v{t2}, v{dt}', f'v_add_f32 v{YS}, v{YS}, v{YS}']
    L += [x for x in interleave(La, Lb) if x]
    L += cmul(G16, G8, G8) + cmul(F2, F1, F1) + [f'v_mov_b32 v{F8}, v{G8}', f'v_xor_b32 v{F8+1}, 0x80000000, v{G8+1}'] + cmul(F4, F2, F2)
    def cv(P, idx, src): return f'v_cvt_pk_f16_f32 v{P+idx}, v{src}, v{src+1}'
    def colchain(par, xa, xb, xc):
        Qq = []
        if par == 0:
            Qq += [f'v_mov_b32 v{PC}, 0x3c00', cv(PC, 16, G128)]; cur = G16; js = range(2, 16, 2)
        else:
            cur = G8; js = range(1, 16, 2)
        first = True
        for j in js:
            if not first:
                d = xa if cur != xa else xb; Qq += cmul(d, cur, G16); cur = d
            first = False
            Qq += cmul(xc, cur, G128) + [cv(PC, j, cur), cv(PC, j + 16, xc)]
        return Qq
    L += interleave(colchain(0, X[0], X[1], X[2]), colchain(1, X[3], X[4], X[5]))
    def ridx(rho, hf): return 8 * (rho >> 2) + 4 * hf + (rho & 3)
    Qa = [cv(PR, ridx(0, 0), C)]; cur = C
    for e in range(1, 8):
        d = X[0] if cur != X[0] else X[1]; Qa += cmul(d, cur, F1) + [cv(PR, ridx(e, 0), d)]; cur = d
    B1 = X[7]
    Qb = cmul(B1, C, F256) + [cv(PR, ridx(0, 1), B1), cv(PR, ridx(1, 1), B1)]
    Qc = []; cur = B1
    for k, rhos in enumerate([[2], [3, 4, 5], [6], [7]]):
        d = X[2] if cur != X[2] else X[3]; Qc += cmul(d, cur, F2) + [cv(PR, ridx(r, 1), d) for r in rhos]; cur = d
    Bc, Bn = B1, X[4]; alt = X[5]
    for sp in range(6):
        Qb += cmul(Bn, Bc, F256); Bc = Bn; Bn = alt if Bc == X[4] else X[4]
        if sp < 2:
            Qb += [cv(PR, ridx(8, sp), Bc)] + cmul(X[6], Bc, F4) + [cv(PR, ridx(9, sp), X[6])] + cmul(X[6], Bc, F8) + [cv(PR, ridx(10, sp), X[6])]
        else:
            rho = 11 + 2 * ((sp - 2) >> 1); hf = sp & 1
            Qb += [cv(PR, ridx(rho, hf), Bc)] + cmul(X[6], Bc, F8) + [cv(PR, ridx(rho + 1, hf), X[6])]
    L += Qb[:2] + interleave(Qb[2:], Qa + Qc)
    L += [f'v_mov_b32 v{PR+27}, 0', f'v_mov_b32 v{PR+31}, 0']
    return L

KN = NAME + '_kernel'

def gen(A, cfg):
    kernel_head(A, KN)
    A('s_cmp_ge_u32 s2, 256\ns_cbranch_scc1 L_END')
    ST = Stamps(A, cfg.get('stamps')); ST.start()
    A(f"""s_load_dwordx16 s[16:31], s[0:1], 0
    s_load_dwordx8 s[32:39], s[0:1], 64
    s_load_dwordx2 s[40:41], s[0:1], 96
    s_getpc_b64 s[{sM1}:{sM1+1}]""")
    A.raw('L_PC0:')
    if cfg.get('cpfall'):
        A('v_lshlrev_b32 v2, 7, v0\nv_cmp_gt_u32 vcc, L_CODE_END-L_PC0, v2')
    else:
        A(f's_lshr_b32 s{sT0}, s2, 3\ns_lshl_b32 s{sT0}, s{sT0}, 7\nv_lshl_add_u32 v2, v0, 12, s{sT0}\nv_cmp_gt_u32 vcc, L_CODE_END-L_PC0, v2')
    A(f"""s_and_saveexec_b64 s[{sA+1}:{sA+2}], vcc
    s_cbranch_execz L_NOCPF
    global_load_dword v159, v2, s[{sM1}:{sM1+1}]""")
    A.label('L_NOCPF', fence=False)
    A(f"""s_mov_b64 exec, -1
    v_lshrrev_b32 v2, 6, v0
    v_and_b32 v1, 63, v0
    v_readfirstlane_b32 s{sWave}, v2
    s_bfe_u32 s{sT0}, s2, 0x20001
    s_lshl_b32 s{sT0}, s{sT0}, 2
    s_bfe_u32 s{sT1}, s2, 0x20003
    s_add_u32 s{sRB}, s{sT0}, s{sT1}
    s_and_b32 s{sT0}, s2, 1
    s_lshl_b32 s{sT0}, s{sT0}, 3
    s_lshr_b32 s{sCB2}, s2, 5
    s_add_u32 s{sCB}, s{sT0}, s{sCB2}
    s_lshl_b32 s{sT2}, s{sT1}, 1
    s_add_u32 s{sCh0}, s{sT2}, s{sCB2}
    s_and_b32 s{sOdd}, s{sCB}, 1
    s_and_b32 s{sT0}, s2, 7
    s_lshl_b32 s{sRB2}, s{sT0}, 2
    s_add_u32 s{sRB2}, s{sRB2}, s{sT1}
    s_lshl_b32 s{sDP}, s{sT0}, 5
    s_lshr_b32 s{sT0}, s2, 3
    s_add_u32 s{sDP}, s{sDP}, s{sT0}
    s_mul_i32 s{sK0}, s{sCB2}, 14
    s_lshr_b32 s{sK0}, s{sK0}, 3
    s_mul_i32 s{sT0}, s{sT1}, 7
    s_lshr_b32 s{sT0}, s{sT0}, 1
    s_add_u32 s{sK0}, s{sK0}, s{sT0}
    s_sub_u32 s{sT0}, s{sK0}, 14
    s_cmp_ge_u32 s{sK0}, 14
    s_cselect_b32 s{sK0}, s{sT0}, s{sK0}
    v_lshlrev_b32 v2, 2, v1
    v_add_u32 v2, {LSY}, v2
    v_mov_b32 v14, 0
    ds_write_b32 v2, v14
    s_cmp_lt_u32 s{sWave}, 4""")
    A.fwd_branch('s_cbranch_scc0 L_M')
    n0 = len(A.out)
    A.label('L_M')
    gen_M(A, cfg, ST)
    n1 = len(A.out)
    gen_H(A, cfg, ST)
    Mt, Ht = A.out[n0:n1], A.out[n1:]
    k = Ht.index('; @@SPLIT')
    A.out[n0:] = Ht[:k] + ['    s_branch L_H2'] + Mt + ['L_H2:'] + Ht[k+1:]
    gen_final(A, cfg, ST)
    A.label('L_END', fence=False)
    A('s_endpgm')
    A.raw('L_CODE_END:')
    return kd(KN, 256, 102)

vX, vXo = 8, 12

def load_x_final(A):
    A(f"""v_lshrrev_b32 v2, 3, v0
    v_and_b32 v3, 7, v0
    v_lshlrev_b32 v3, 4, v3
    v_lshl_add_u32 v{vXo}, v2, 10, v3
    s_lshl_b32 s{sT0}, s{sRB2}, 16
    s_lshl_b32 s{sT1}, s{sCB2}, 7
    s_add_u32 s{sT0}, s{sT0}, s{sT1}
    v_add_u32 v{vXo}, s{sT0}, v{vXo}
    buffer_load_dwordx4 {v(vX,4)}, v{vXo}, s[{sX}:{sX+3}], 0 offen""")

def gen_M(A, cfg, ST):
    ST.role = 'M'
    mw = sWave
    t0, t1, t2, t3 = 16, 17, 18, 19
    kP = 64; D = 232
    vRow, vTmp, vOne = 160, 168, 184
    PC, PR, YS, WA = 192, 224, 189, 160
    vSyM, vOneM, vFl = 14, 15, 3
    A(f"""s_sub_u32 s{mw}, s{mw}, 4
    v_lshlrev_b32 v{t3}, 21, v1
    v_lshlrev_b32 v187, 4, v1
    v_mov_b32 v188, {WS_EP}
    s_lshl_b32 s{sT0}, s{sDP}, 13
    s_lshl_b32 s{sT1}, s{mw}, 11
    s_add_u32 s{sT0}, s{sT0}, s{sT1}
    v_add_u32 v186, s{sT0}, v187
    s_lshl_b32 s{sT0}, s2, 2
    s_add_u32 s{sT0}, s{sT0}, s{mw}
    s_mul_i32 s{sT0}, s{sT0}, {14*128}
    v_lshl_add_u32 v185, v1, 7, s{sT0}
    s_waitcnt lgkmcnt(0)
    global_load_dword v188, v188, s[{pWS}:{pWS+1}]{SC}
    global_load_dwordx4 {v(vRow,4)}, v186, s[{pX}:{pX+1}]
    global_load_dwordx4 {v(vRow+4,4)}, v186, s[{pX}:{pX+1}] offset:1024""")
    srd(A, sWS, pWS, WS_SIZE); srd(A, sX, pX, 2048 * 1024); srd(A, sOUT, pOUT, 2048 * 1024)
    A(f"""s_mov_b64 exec, 0x7f
    buffer_load_dword v156, v{t3}, s[{sWS}:{sWS+3}], 0 offen
    s_mov_b64 exec, 1
    global_load_dword v157, v{t3}, s[{pOUT}:{pOUT+1}]
    s_mov_b64 exec, {'0x3fff' if cfg.get('mall', 0) else '1'}
    global_load_dword v158, v185, s[{pW2}:{pW2+1}]
    s_mov_b64 exec, -1
    s_barrier
    s_lshl_b32 s{sT0}, s{sDP}, 2
    s_load_dword s{sD}, s[{pDSK}:{pDSK+1}], s{sT0}""")
    if cfg.get('lnprio'): A(f's_setprio {cfg["lnprio"]}')
    ST('ld')
    vXr, vWr = 4, 6
    F = [20, 56]; ACC = 92
    x_read_addr(A, vXr, mw, t0, t1, t2)
    A(f"""v_lshrrev_b32 v{t0}, 4, v1
    v_bfe_u32 v{t1}, v1, 2, 2
    v_and_b32 v{t2}, 1, v{t0}
    v_lshl_or_b32 v{t2}, v{t2}, 2, v{t1}
    v_lshl_add_u32 v{t0}, v{t0}, 3, v{t1}
    v_and_b32 v{t1}, 3, v1
    v_lshlrev_b32 v{t1}, 3, v{t1}
    v_lshl_add_u32 v{t3}, v{t0}, 8, v{t1}
    v_add_u32 v{t3}, {Bslot(0)}, v{t3}""")
    for tau in range(7):
        A(f'v_xor_b32 v{t0}, {tau}, v{t2}\nv_lshl_add_u32 v{vWr+tau}, v{t0}, 5, v{t3}')
    A(f'v_mov_b32 v{vOne}, 0x3f803f80\ns_waitcnt lgkmcnt(0)')
    A('s_waitcnt vmcnt(3)')
    ST('row')
    class Col:
        def __init__(s): s.L = []
        def __call__(s, t): s.L += [x.strip() for x in t.strip().split('\n') if x.strip()]
    A_ = A; A = Col()
    S = [vTmp + i for i in range(4)]
    T = [vTmp + 4 + i for i in range(4)]
    for r in range(2):
        for j in range(4):
            x = vRow + 4 * r + j
            if j == 0:
                A(f'v_dot2_f32_bf16 v{S[r]}, v{x}, v{vOne}, 0\nv_dot2_f32_bf16 v{S[2+r]}, v{x}, v{x}, 0')
            else:
                A(f'v_dot2_f32_bf16 v{S[r]}, v{x}, v{vOne}, v{S[r]}\nv_dot2_f32_bf16 v{S[2+r]}, v{x}, v{x}, v{S[2+r]}')
    for rr in (1, 2, 4, 8):
        for i in range(4): A(f'v_add_f32_dpp v{S[i]}, v{S[i]}, v{S[i]} row_ror:{rr} row_mask:0xf bank_mask:0xf')
    for op in ('v_permlane16_swap_b32', 'v_permlane32_swap_b32'):
        for i in range(4): A(f'v_mov_b32 v{T[i]}, v{S[i]}')
        for i in range(4): A(f'{op} v{S[i]}, v{T[i]}')
        for i in range(4): A(f'v_add_f32 v{S[i]}, v{S[i]}, v{T[i]}')
    Ls = []
    for r in range(2):
        m, e2, a, b = S[r], S[2 + r], T[r], T[2 + r]
        Ls.append([f'v_mul_f32 v{m}, {f32(1/512)}, v{m}', f'v_mul_f32 v{e2}, {f32(1/512)}, v{e2}',
                   f'v_fma_f32 v{e2}, -v{m}, v{m}, v{e2}', f'v_max_f32 v{e2}, 0, v{e2}'] + bf16r(e2, e2) + bf16r(m, m) +
                  [f'v_add_f32 v{e2}, {f32(1e-5)}, v{e2}'] + bf16r(e2, e2) + [f'v_sqrt_f32 v{e2}, v{e2}'] + bf16r(e2, e2) +
                  [f'v_rcp_f32 v{a}, v{e2}', f'v_mul_f32_e64 v{b}, -v{m}, v{a}', f'v_lshrrev_b32 v{m}, 16, v{m}', f'v_or_b32 v{m}, v{m}, v{e2}'])
    A('\n'.join(interleave(*Ls)))
    vSy, vI1 = vSyM, vOneM
    A(f"""v_readfirstlane_b32 s{sNon}, v188
    v_mov_b32 v{vSy}, {LSY}
    v_mov_b32 v{vI1}, 1
    s_mul_i32 s{sNon}, s{sNon}, 0x9e3779b1
    s_add_u32 s{sNon}, s{sNon}, 0x7f4a7c15
    v_cmp_eq_u32 vcc, 1, v1
    v_cndmask_b32 v{vTmp+8}, v{S[0]}, v{S[1]}, vcc
    v_mov_b32 v{vTmp+9}, s{sNon}
    ds_write_b32 v{vSy}, v{vTmp+9} offset:32""")
    for r in range(2):
        for j in range(4):
            x = vRow + 4 * r + j; u = vTmp + 10 + 2 * (j & 1)
            A(f"""v_lshlrev_b32 v{u}, 16, v{x}
            v_and_b32 v{u+1}, 0xffff0000, v{x}
            v_fma_f32 v{u}, v{u}, v{T[r]}, v{T[2+r]}
            v_fma_f32 v{u+1}, v{u+1}, v{T[r]}, v{T[2+r]}
            v_cvt_pk_f16_f32 v{x}, v{u}, v{u+1}""")
    A(f"""s_mul_i32 s{sT0}, s{mw}, {2*LNP}
    s_add_u32 s{sT0}, s{sT0}, {LNB}
    v_add_u32 v{t0}, s{sT0}, v187
    ds_write_b128 v{t0}, {v(vRow,4)}
    ds_write_b128 v{t0}, {v(vRow+4,4)} offset:{LNP}""")
    LNL = A.L; A = A_
    A('\n'.join(LNL))
    lds_inc(A, vSy, SY_XN, vI1)
    A(f"""v_bfe_u32 v{t0}, v1, 2, 2
    v_mul_u32_u24 v{t0}, {LNP}, v{t0}
    v_lshrrev_b32 v{t1}, 4, v1
    v_lshl_add_u32 v{t0}, v{t1}, 5, v{t0}
    v_and_b32 v{t1}, 3, v1
    v_lshl_add_u32 v{t0}, v{t1}, 3, v{t0}
    s_lshl_b32 s{sT0}, s{mw}, 8
    s_add_u32 s{sT0}, s{sT0}, {LNB}
    v_add_u32 v{t0}, s{sT0}, v{t0}""")
    lds_wait(A, 'L_WXN', vSy, SY_XN, 4, t3, sT0)
    for i in range(2):
        for hh in range(2): A(f'ds_read_b64_tr_b16 {v(vRow+4*i+2*hh,2)}, v{t0} offset:{128*i+4*LNP*hh}')
    ST('xn')
    ST('kt')
    lq = Q(A, 'lgkmcnt', 15)
    def reads(st, kap):
        slot = st & 3; f = F[kap]; L = []
        for q in range(2): L.append((f'ds_read_b128 {v(f+28+4*q,4)}, v{vXr+kap} offset:{Aslot(slot)+q*2048}', (st, kap, 0)))
        for tau in range(7):
            for hh in range(2):
                L.append((f'ds_read_b64_tr_b16 {v(f+4*tau+2*hh,2)}, v{vWr+tau} offset:{slot*16384+kap*8192+hh*1024}', (st, kap, tau)))
        return L
    def emit(rd):
        for t, tag in rd: A(t); lq.add(tag)
    vSyM, vOneM, vFl = 14, 15, 3
    def kstep(st, kap, rd, first=False, bar_at=None, bar_fn=None):
        f = F[kap]; k = 0; n = 0
        start = 0 if bar_at is None else bar_at
        slots = 14 - start - 1
        flag = bar_at is not None and st == 7
        if flag: A(f'ds_read_b32 v{vFl}, v{vSyM} offset:{CERT(st+1)}'); lq.add('fl')
        for tau in range(7):
            lq.wait((st, kap, tau))
            for q in range(2):
                if n == bar_at:
                    lq.all()
                    if flag:
                        A(f'v_readfirstlane_b32 s{sT0}, v{vFl}')
                        A(f's_cmp_ge_u32 s{sT0}, {0 if cfg.get("nocheck") else 4}')
                        A(f's_cbranch_scc1 L_CK{st}')
                        lds_wait(A, f'L_CW{st}', vSyM, CERT(st+1), 4, vFl, sT0)
                        A.label(f'L_CK{st}', fence=False)
                    else:
                        A('s_barrier')
                    bar_fn and bar_fn()
                a = ACC + 8 * tau + 4 * q
                A(f'v_mfma_f32_16x16x32_bf16 {v(a,4)}, {v(f+4*tau,4)}, {v(f+28+4*q,4)}, {"0" if first else v(a,4)}')
                if n >= start:
                    want = min(len(rd), -(-len(rd) * (n - start + 1) // slots))
                    emit(rd[k:want]); k = max(k, want)
                n += 1
        emit(rd[k:])
    A(f"""v_lshlrev_b32 v{t0}, 3, v1
    s_lshl_b32 s{sT0}, s{sDP}, 6
    s_lshl_b32 s{sT1}, s{mw}, 4
    s_add_u32 s{sT0}, s{sT0}, s{sT1}
    s_add_u32 s{sT0}, s{sT0}, {WS_GR}
    s_setprio 3
    s_mov_b64 exec, 3
    buffer_store_dwordx2 {v(vTmp+8,2)}, v{t0}, s[{sWS}:{sWS+3}], s{sT0} offen{SC}
    s_mov_b64 exec, -1
    s_lshl_b32 s{sT0}, s{sDP}, 13
    s_lshl_b32 s{sT1}, s{mw}, 11
    s_add_u32 s{sT0}, s{sT0}, s{sT1}
    s_add_u32 s{sT0}, s{sT0}, {WS_XN}
    s_waitcnt lgkmcnt(0)
    buffer_store_dwordx4 {v(vRow,4)}, v187, s[{sWS}:{sWS+3}], s{sT0} offen{SC}
    buffer_store_dwordx4 {v(vRow+4,4)}, v187, s[{sWS}:{sWS+3}], s{sT0} offen offset:1024{SC}
    s_waitcnt lgkmcnt(0)""")
    A(f's_setprio {cfg.get("lprio", 0)}')
    ST('kg')
    A('s_barrier')
    ST('B0')
    emit(reads(0, 0))
    A(f'v_mov_b32 v{vFl}, s{sNon}')
    def twr(P, off): return [(f'ds_write2st64_b32 v{WA+i}, v{P+i}, v{P+i+16} offset0:{off+i} offset1:{off+i+16}', 'tw') for i in range(16)]
    ab = 20; cs = 24
    BA = cfg.get('bar_at', 4)
    for st in range(8):
        if st == cfg.get('f1st', 1):
            A(f"""s_lshl_b32 s{sT1}, s{sDP}, 2
            s_lshl_b32 s{sT0}, s{mw}, 10
            s_add_u32 s{sT1}, s{sT1}, s{sT0}
            s_add_u32 s{sT1}, s{sT1}, {WS_F1}
            v_mov_b32 v{t0}, 0
            s_waitcnt vmcnt(0)
            s_setprio 3
            s_mov_b64 exec, 1
            buffer_store_dword v{vFl}, v{t0}, s[{sWS}:{sWS+3}], s{sT1} offen{SC}
            s_mov_b64 exec, -1
            s_setprio {cfg.get('lprio', 0)}""")
        kstep(st, 0, reads(st, 1), first=(st == 0))
        if st < 7:
            def bf(st=st):
                ST(f'B{st+1}')
            if st == 6: kstep(st, 1, reads(st + 1, 0))
            else: kstep(st, 1, reads(st + 1, 0), bar_at=BA, bar_fn=bf)
        else:
            A(f"""v_and_b32 v{t0}, 15, v1
            s_lshl_b32 s{sT0}, s{mw}, 8
            s_add_u32 s{sT0}, s{sT0}, {LSTAT}
            v_lshl_add_u32 v{t1}, v{t0}, 3, s{sT0}
            v_lshrrev_b32 v{t0}, 4, v1
            v_lshlrev_b32 v{t0}, 4, v{t0}
            v_add_u32 v{t0}, {LCS}, v{t0}""")
            rd = [(f'ds_read_b64 {v(ab,2)}, v{t1}', 'e'), (f'ds_read_b64 {v(ab+2,2)}, v{t1} offset:128', 'e')]
            rd += [(f'ds_read_b128 {v(cs+4*tau,4)}, v{t0} offset:{64*tau}', 'e') for tau in range(7)]
            kstep(st, 1, rd, bar_at=BA, bar_fn=lambda: ST('B8'))
    A('s_waitcnt lgkmcnt(0)')
    lds_inc(A, vSyM, DONE(7), vOneM)
    ST('g1')
    if cfg.get('mprio', 2): A(f's_setprio {cfg.get("mprio", 2)}')
    sHb, sHs = sA, sC
    A(f"""s_lshl_b32 s{sT0}, s{sRB}, 3
    s_lshl_b32 s{sT1}, s{mw}, 1
    s_add_u32 s{sT0}, s{sT0}, s{sT1}
    s_mul_i32 s{sT0}, s{sT0}, 56
    s_lshr_b32 s{sT1}, s{sCB}, 1
    s_mul_i32 s{sT1}, s{sT1}, 7
    s_add_u32 s{sT0}, s{sT0}, s{sT1}
    s_lshl_b32 s{sT0}, s{sT0}, 10
    s_lshl_b32 s{sT1}, s{sOdd}, 12
    s_add_u32 s{sHb}, s{sT0}, s{sT1}
    s_add_u32 s{sHb+1}, s{sHb}, {56*1024}
    s_lshl_b32 s{sT1}, s{sOdd}, 9
    s_add_u32 s{sHs}, s{sT0}, s{sT1}
    s_add_u32 s{sHs}, s{sHs}, 3072
    v_and_b32 v{t0}, 15, v1
    v_lshlrev_b32 v{t0}, 4, v{t0}
    v_lshrrev_b32 v{t2}, 5, v1
    v_lshl_add_u32 v{t0}, v{t2}, 8, v{t0}
    v_bfe_u32 v{t2}, v1, 4, 1
    v_lshl_add_u32 v{t1}, v{t2}, 9, v{t0}
    v_mul_u32_u24 v{t2}, {56*1024}, v{t2}
    v_add_u32 v{t2}, v{t2}, v{t0}
    s_mov_b32 s{sM0}, {NLOG2E}
    s_mov_b32 s{sM0+1}, {NLOG2E}
    v_mov_b32 v2, {NLOG2E}
    v_mov_b32 v3, {NLOG2E}
    s_waitcnt lgkmcnt(0)""")
    Zs = [56, 72]; Es = [64, 80]; O = [148, 152]
    groups = [[(2 * g, q), (2 * g + 1, q)] for q in range(2) for g in range(3)] + [[(6, 0), (6, 1)]]
    def part1(gi):
        Z = Zs[gi & 1]; E = Es[gi & 1]; L = []
        prs = [(tau, q, p) for tau, q in groups[gi] for p in range(2)]
        for n, (tau, q, p) in enumerate(prs):
            c = cs + 4 * tau + 2 * p
            L.append(f'v_pk_mul_f32 {v(Z+2*n,2)}, {v(c,2)}, {v(ab+2*q,2)} op_sel:[0,1] op_sel_hi:[1,1]')
        for n, (tau, q, p) in enumerate(prs):
            a = ACC + 8 * tau + 4 * q + 2 * p
            L.append(f'v_pk_fma_f32 {v(Z+2*n,2)}, {v(a,2)}, {v(ab+2*q,2)}, {v(Z+2*n,2)} op_sel:[0,0,0] op_sel_hi:[1,0,1]')
        for n in range(8): L.append(f'v_exp_f32 v{E+n}, v{Z+n}')
        for n in range(4): L.append(f'v_pk_fma_f32 {v(E+2*n,2)}, {v(E+2*n,2)}, s[{sM0}:{sM0+1}], v[2:3]')
        for n in range(8): L.append(f'v_rcp_f32 v{E+n}, v{E+n}')
        for n in range(4): L.append(f'v_pk_mul_f32 {v(Z+2*n,2)}, {v(Z+2*n,2)}, {v(E+2*n,2)}')
        o = O[gi & 1]
        for n in range(4): L.append(f'v_cvt_pk_bf16_f32 v{o+n}, v{Z+2*n}, v{Z+2*n+1}')
        T = [f'v_permlane16_swap_b32 v{o}, v{o+2}', f'v_permlane16_swap_b32 v{o+1}, v{o+3}']
        if gi < 6: T.append(f'buffer_store_dwordx4 {v(o,4)}, v{t1}, s[{sWS}:{sWS+3}], s{sHb+gi//3} offen offset:{1024*(gi%3)}{SC}')
        else: T.append(f'buffer_store_dwordx4 {v(o,4)}, v{t2}, s[{sWS}:{sWS+3}], s{sHs} offen{SC}')
        return L, T
    pend = []
    for gi in range(7):
        L, T = part1(gi)
        A('\n'.join(L[:2] + pend + L[2:])); pend = T
    A('\n'.join(pend))
    lds_inc(A, vSyM, SY_ST, vOneM)
    ST('epi')
    cw = mw
    sCh, sHF, sUb, sKb = sA, sB, sC, sE
    vK, vU, vSy, vOne, vL16 = 4, 5, 6, 7, 13
    A(f"""s_lshr_b32 s{sCh}, s{cw}, 1
    s_and_b32 s{sHF}, s{cw}, 1
    s_mul_i32 s{sUb}, s{sCh}, {UP}
    s_add_u32 s{sUb}, s{sUb}, {LU}
    s_mul_i32 s{sKb}, s{sCh}, {4*KCP}
    s_add_u32 s{sKb}, s{sKb}, {LKC}
    v_lshlrev_b32 v{vL16}, 4, v1
    v_mov_b32 v{vSy}, {LSY}
    v_mov_b32 v{vOne}, 1
    s_lshl_b32 s{sT0}, s{sCh}, 2
    v_add_u32 v{t0}, s{sT0}, v{vSy}
    v_and_b32 v{t1}, 3, v1
    v_sub_u32 v{t1}, 3, v{t1}
    v_mul_u32_u24 v{t1}, {KCP}, v{t1}
    v_bfe_u32 v{t2}, v1, 2, 2
    v_lshrrev_b32 v{t3}, 4, v1
    v_lshlrev_b32 v{vK}, 1, v{t3}
    v_sub_u32 v{vK}, v{vK}, v{t2}
    v_lshl_add_u32 v{vK}, v{vK}, 3, v{t1}
    s_lshl_b32 s{sT0}, s{sHF}, 8
    s_sub_u32 s{sT1}, s{sKb}, s{sT0}
    s_add_u32 s{sT1}, s{sT1}, {8*507-192-3584}
    v_add_u32 v{vK}, s{sT1}, v{vK}
    v_and_b32 v{t1}, 15, v1
    v_lshlrev_b32 v{t1}, 5, v{t1}
    v_lshl_add_u32 v{vU}, v{t3}, 4, v{t1}
    s_sub_u32 s{sT1}, s{sUb}, s{sT0}
    s_add_u32 s{sT1}, s{sT1}, {448-192}
    v_add_u32 v{vU}, s{sT1}, v{vU}""")
    def flag2():
        A(f"""s_lshl_b32 s{sT1}, s{sRB}, 8
        s_lshr_b32 s{sT0}, s{mw}, 1
        s_lshl_b32 s{sT0}, s{sT0}, 7
        s_add_u32 s{sT1}, s{sT1}, s{sT0}
        s_lshl_b32 s{sT0}, s{sCB}, 3
        s_add_u32 s{sT1}, s{sT1}, s{sT0}
        s_and_b32 s{sT0}, s{mw}, 1
        s_lshl_b32 s{sT0}, s{sT0}, 2
        s_add_u32 s{sT1}, s{sT1}, s{sT0}
        s_add_u32 s{sT1}, s{sT1}, {WS_F2}
        v_mov_b32 v{t1}, 0
        v_mov_b32 v{t2}, s{sNon}
        s_waitcnt vmcnt(0)
        s_setprio 3
        s_mov_b64 exec, 1
        buffer_store_dword v{t2}, v{t1}, s[{sWS}:{sWS+3}], s{sT1} offen{SC}
        s_mov_b64 exec, -1""")
    sF2 = sOdd
    A(f'ds_read_b32 v{t3}, v{vSy} offset:{SY_U}\ns_mov_b32 s{sF2}, 0\ns_waitcnt lgkmcnt(0)\nv_readfirstlane_b32 s{sT0}, v{t3}\ns_cmp_ge_u32 s{sT0}, 4')
    A.fwd_branch('s_cbranch_scc1 L_UR')
    flag2()
    A(f's_mov_b32 s{sF2}, 1')
    lds_wait(A, 'L_WU', vSy, SY_U, 4, t3, sT0, sleep=1)
    A.label('L_UR')
    A(f's_or_b32 s{sT0}, s2, s{mw}\ns_cmp_lg_u32 s{sT0}, 0')
    A.fwd_branch('s_cbranch_scc1 L_NOEP')
    A(f's_mov_b32 s{sT0}, {WS_EP}\nv_mov_b32 v{t1}, 0\nv_mov_b32 v{t2}, s{sNon}\ns_mov_b64 exec, 1\nbuffer_store_dword v{t2}, v{t1}, s[{sWS}:{sWS+3}], s{sT0} offen{SC}\ns_mov_b64 exec, -1')
    A.label('L_NOEP')
    if cfg.get('cvdelay'):
        for _ in range(cfg['cvdelay']): A('s_sleep 100')
    A(f's_setprio {cfg.get("cvprio", 0)}')
    ST('cv0')
    ACC = 20
    FK = [52, 116]; FU = [84, 148]
    def creads(rl):
        b = rl & 1; L = []
        for m in range(8):
            L.append(f'ds_read_b128 {v(FU[b]+4*m,4)}, v{vU} offset:{512*m+64*(3-rl)}')
            for hh in range(2):
                L.append(f'ds_read_b64 {v(FK[b]+4*m+2*hh,2)}, v{vK} offset:{512*(7-m)+64*(3-rl)+8*hh}')
        return L
    A('\n'.join(creads(0)))
    for rl in range(4):
        b = rl & 1
        nxt = creads(rl + 1) if rl < 3 else []
        if rl == cfg.get('f2rl', 1):
            A(f's_cmp_eq_u32 s{sF2}, 1')
            A.fwd_branch('s_cbranch_scc1 L_F2D')
            flag2()
            A.label('L_F2D')
            A('s_setprio 3')
            ST('f2')
            load_x_final(A)
            A(f's_setprio {cfg.get("cvprio", 0)}')
        A('s_waitcnt lgkmcnt(0)')
        if rl == 3: lds_inc(A, vSy, SY_CV, vOne)
        k = 0
        for m in range(8):
            for jj in range(8 - m):
                a = ACC + 4 * (m + jj)
                A(f'v_mfma_f32_16x16x32_f16 {v(a,4)}, {v(FK[b]+4*m,4)}, {v(FU[b]+4*jj,4)}, {"0" if rl == 0 and m == 0 else v(a,4)}')
                if k < len(nxt): A(nxt[k])
                k += 1
    ST('cv1')
    A('s_setprio 2')
    lds_wait(A, 'L_WCV', vSy, SY_CV, 4, t3, sT0)
    A(f"""s_lshl_b32 s{sT0}, s{cw}, 13
    s_add_u32 s{sT0}, s{sT0}, {LEX}
    v_add_u32 v{t1}, s{sT0}, v{vL16}""")
    for i in range(8): A(f'ds_write_b128 v{t1}, {v(ACC+4*i,4)} offset:{1024*i}')
    UU = 116; YS = 124
    A(f"""s_lshl_b32 s{sT0}, s{cw}, 11
    s_add_u32 s{sT1}, s{sT0}, {LEX}
    v_add_u32 v{t0}, s{sT1}, v{vL16}
    v_and_b32 v{vK}, 15, v1
    v_lshrrev_b32 v{vU}, 4, v1
    v_lshlrev_b32 v{vU}, 2, v{vU}
    v_lshl_add_u32 v{vK}, v{vK}, 4, v{vU}
    s_lshl_b32 s{sT1}, s{cw}, 10
    s_add_u32 s{sT1}, s{sT1}, {LU+480}
    v_lshl_add_u32 v{vU}, v{vK}, 1, s{sT1}
    v_lshlrev_b32 v{vK}, 2, v{vK}
    s_lshl_b32 s{sT2}, s{sDP}, 14
    s_add_u32 s{sT2}, s{sT2}, s{sT0}
    s_add_u32 s{sT2}, s{sT2}, s{sT0}
    s_add_u32 s{sT2}, s{sT2}, {WS_SP}
    s_and_b32 s{sE}, s{sD}, 0xffff0000
    s_lshl_b32 s{sD}, s{sD}, 16
    s_waitcnt lgkmcnt(0)""")
    for ti in range(2):
        for c in range(2): A(f'ds_read_b64 {v(UU+4*ti+2*c,2)}, v{vU} offset:{512*ti+UP*c}')
    lds_inc(A, vSy, SY_EX, vOne)
    A(f'ds_read_b64 {v(YS,2)}, v{vSy} offset:40')
    lds_wait(A, 'L_WEX', vSy, SY_EX, 4, t3, sT0)
    PB = 52
    for ti in range(2):
        for w in range(4): A(f'ds_read_b128 {v(PB+16*ti+4*w,4)}, v{t0} offset:{8192*w+1024*ti}')
    for ti in range(2):
        A(f's_waitcnt lgkmcnt({4-4*ti})')
        for c in range(2):
            p0, p1 = PB + 16 * ti + 8 * c, PB + 16 * ti + 8 * c + 4
            for e in range(4): A(f'v_add_f32 v{p0+e}, v{p0+e}, v{p1+e}')
            for e in range(4): A(f'v_mul_f32 v{p0+e}, v{YS+c}, v{p0+e}')
            for e in range(4): A(f'v_fma_mix_f32 v{p0+e}, v{UU+4*ti+2*c+(e>>1)}, s{sD+c}, v{p0+e} op_sel:[{e&1},0,0] op_sel_hi:[1,0,0]')
        o = 128 + 8 * ti
        for e in range(4): A(f'v_cvt_pk_bf16_f32 v{o+2*e}, v{PB+16*ti+e}, v{PB+16*ti+8+e}\nv_mov_b32 v{o+2*e+1}, s{sNon}')
        for hh in range(2): A(f'buffer_store_dwordx4 {v(o+4*hh,4)}, v{vK}, s[{sWS}:{sWS+3}], s{sT2} offen offset:{2048*ti+1024*hh}{SC}')
    ST('f3')
    A(f"""v_lshrrev_b32 v{vK}, 5, v1
    v_bfe_u32 v{vU}, v1, 4, 1
    v_and_b32 v{t3}, 15, v1
    v_lshlrev_b32 v{t2}, 4, v{t3}
    v_lshl_add_u32 v{t2}, v{vU}, 10, v{t2}
    v_lshl_add_u32 v{t2}, v{vK}, 14, v{t2}
    s_lshl_b32 s{sA}, s{sCB2}, 19
    s_lshl_b32 s{sT2}, s{cw}, 17
    s_add_u32 s{sA}, s{sA}, s{sT2}
    s_lshr_b32 s{sT2}, s{sRB2}, 2
    s_lshl_b32 s{sT2}, s{sT2}, 11
    s_add_u32 s{sA}, s{sA}, s{sT2}
    s_and_b32 s{sT2}, s{sRB2}, 3
    s_lshl_b32 s{sT2}, s{sT2}, 8
    s_add_u32 s{sA}, s{sA}, s{sT2}
    s_add_u32 s{sA}, s{sA}, {WS_SP}
    s_add_u32 s{sB}, s{sA}, {32768}
    s_add_u32 s{sC}, s{sA}, {65536}
    s_add_u32 s{sD}, s{sA}, {98304}
    s_lshl_b32 s{sT2}, s{cw}, 3
    v_add_u32 v{vK}, s{sT2}, v{vK}
    v_and_b32 v{t1}, 7, v1
    v_lshlrev_b32 v{t1}, 2, v{t1}
    v_xor_b32 v{vK}, v{vK}, v{t1}
    v_lshlrev_b32 v{vK}, 2, v{vK}
    v_lshl_add_u32 v{vK}, v{t3}, 9, v{vK}
    v_lshl_add_u32 v{vK}, v{vU}, 8, v{vK}
    v_add_u32 v{vK}, {LS}, v{vK}
    v_xor_b32 v{vU}, 16, v{vK}""")
    lds_wait(A, 'L_WT', vSy, SY_TRIG, 1, t3, sT0, sleep=4)
    SG = 44
    gpoll(A, 'L_P3', '\n'.join(f'buffer_load_dwordx4 {v(SG+4*it,4)}, v{t2}, s[{sWS}:{sWS+3}], s{sA+it} offen{SC}' for it in range(4)),
          [SG + 2 * k + 1 for k in range(8)], sleep=cfg.get('p3sleep', 12))
    ST('p3')
    for it in range(4):
        for e in range(2): A(f'ds_write_b32 v{vU if it >= 2 else vK}, v{SG+4*it+2*e} offset:{128*e+8*(it&1)}')
    A.fwd_branch('s_branch L_FINAL')

def gen_H(A, cfg, ST):
    ST.role = 'H'
    A.label('L_H')
    hw = sWave
    vXo_, vWo = 16, 20
    vWr = 24
    vOne = 32
    t0, t1, t2, t3 = 36, 37, 38, 39
    vH, vW, vR = 48, 52, 56
    vRow = 64
    vTmp = 72
    vCS, vFw = 192, 220
    sXb, sWb, sLb, sCk = sA, sB, sC, sD
    sH, sWo, sK, sKw = 30, 31, 38, 39
    vq = Q(A, 'vmcnt', 63)
    A0 = A; A = BG(A0, vq, cfg.get('every', 6))
    b0, b1, b2 = 28, 29, 17
    def vwait(tag): A.flush(tag); vq.wait(tag)
    D = 232; kP = 64; PC, PR, YS, WA = 128, 160, 114, 64
    A(f"""s_lshr_b32 s{sT0}, s{hw}, 1
    s_lshl_b32 s{sT2}, s{sDP}, 1
    s_add_u32 s{sT2}, s{sT2}, s{sT0}
    s_and_b32 s{sT1}, s{hw}, 1
    s_lshl_b32 s{sT1}, s{sT1}, 7
    s_lshl_b32 s{sT0}, s{sT2}, 8
    s_add_u32 s{sT0}, s{sT0}, s{sT1}
    v_lshl_add_u32 v100, v1, 1, s{sT0}
    v_xor_b32 v101, 128, v100
    s_lshl_b32 s{sT0}, s{sT2}, 1
    v_mov_b32 v102, s{sT0}
    """)
    A(f"""v_lshrrev_b32 v{t0}, 3, v1
    v_lshrrev_b32 v{t1}, 4, v1
    v_and_b32 v{t2}, 7, v1
    v_xor_b32 v{t2}, v{t2}, v{t1}
    v_lshlrev_b32 v{t2}, 4, v{t2}
    v_lshl_add_u32 v{vXo_}, v{t0}, 10, v{t2}
    v_xor_b32 v{t3}, 64, v{vXo_}
    v_add_u32 v{vXo_+1}, 7168, v{t3}
    v_add_u32 v{vXo_+2}, 14336, v{vXo_}
    v_add_u32 v{vXo_+3}, 21504, v{t3}""")
    for half in range(2):
        A(f"""v_bfe_u32 v{t0}, v1, 1, 3
        v_xor_b32 v{t0}, v{t0}, v{t1}
        v_xor_b32 v{t0}, {4*half}, v{t0}
        v_and_b32 v{t2}, 1, v1
        v_lshl_add_u32 v{t2}, v{t0}, 1, v{t2}
        s_lshl_b32 s{sT0}, s{sOdd}, 1
        v_add_u32 v{t2}, s{sT0}, v{t2}
        v_subrev_u32 v{t3}, 14, v{t2}
        v_cmp_gt_u32 vcc, 14, v{t2}
        v_cndmask_b32 v{t2}, v{t3}, v{t2}, vcc
        v_lshlrev_b32 v{t2}, 4, v{t2}
        v_mul_u32_u24 v{t3}, 3584, v{t1}
        v_add_u32 v{t2}, v{t2}, v{t3}
        v_mov_b32 v{t3}, 0x7f000000
        v_cmp_eq_u32 vcc, 7, v{t0}
        v_cndmask_b32 v{t2}, v{t2}, v{t3}, vcc
        v_add_u32 v{vWo+2*half}, {(2*half)*13312}, v{t2}
        v_add_u32 v{vWo+2*half+1}, {(2*half+1)*13312}, v{t2}""")
    A(f"""s_lshl_b32 s{sXb}, s{sRB}, 17
    s_lshl_b32 s{sT0}, s{hw}, 15
    s_add_u32 s{sXb}, s{sXb}, s{sT0}
    s_mul_i32 s{sWb}, s{hw}, {16*3584}
    s_mul_i32 s{sT0}, s{sCB}, 224
    s_add_u32 s{sWb}, s{sWb}, s{sT0}
    s_lshl_b32 s{sLb}, s{hw}, 12
    v_lshlrev_b32 v13, 4, v1
    """)
    A(f"""s_waitcnt lgkmcnt(0)
    global_load_ushort v{kP+6}, v102, s[{pLDT}:{pLDT+1}]
    global_load_ushort v{kP+0}, v100, s[{pLAR}:{pLAR+1}]
    global_load_ushort v{kP+1}, v100, s[{pAIM}:{pAIM+1}]
    global_load_ushort v{kP+2}, v100, s[{pCRE}:{pCRE+1}]
    global_load_ushort v{kP+3}, v100, s[{pCIM}:{pCIM+1}]
    global_load_ushort v{kP+4}, v101, s[{pCRE}:{pCRE+1}]
    global_load_ushort v{kP+5}, v101, s[{pCIM}:{pCIM+1}]""", 'par')
    srd(A, sX, pX, 2048 * 1024); srd(A, sW1, pW1, 512 * 3584)
    A0('s_barrier')
    ST('ld')
    def dma(st, now=False):
        slot = st & 3
        for i in range(4):
            pre = ''
            if i == 0:
                pre = f's_add_u32 s{b2}, s{sCh0}, {st}\ns_and_b32 s{b2}, s{b2}, 7\ns_lshl_b32 s{b0}, s{b2}, 7\ns_add_u32 s{b0}, s{b0}, s{sXb}\ns_add_u32 m0, s{sLb}, {Aslot(slot)}\ns_mul_i32 s{b1}, s{b2}, {64*3584}\ns_add_u32 s{b1}, s{b1}, s{sWb}\n'
            A.push(pre + f'buffer_load_dwordx4 v{vXo_+i}, s[{sX}:{sX+3}], s{b0} offen offset:{1024*i} lds', ('d', st))
        for i in range(4):
            pre = f's_add_u32 m0, s{sLb}, {Bslot(slot)}\n' if i == 0 else ''
            A.push(pre + f'buffer_load_dwordx4 v{vWo+i}, s[{sW1}:{sW1+3}], s{b1} offen offset:{1024*i} lds', ('d', st))
        if now: A.flush()
    dma(0, now=True)
    A(f"""v_lshrrev_b32 v{t0}, 2, v1
    v_mul_u32_u24 v{t0}, 3584, v{t0}
    v_and_b32 v{t1}, 3, v1
    v_mul_u32_u24 v{t1}, 72, v{t1}
    v_add_u32 v{t0}, v{t0}, v{t1}
    s_add_u32 s{sT0}, s{sCh0}, 1
    s_and_b32 s{sT0}, s{sT0}, 7
    s_mul_i32 s{sT0}, s{sT0}, {64*3584}
    s_add_u32 s{sT0}, s{sT0}, s{sWb}
    buffer_load_dword v47, v{t0}, s[{sW1}:{sW1+3}], s{sT0} offen""", 't1')
    A0.fence(); A0.raw('; @@SPLIT')
    srd(A, sWS, pWS, WS_SIZE); srd(A, sW2, pW2, 1792 * 1024); srd(A, sOUT, pOUT, 2048 * 1024)
    A(f"""v_bfe_u32 v{t0}, v1, 4, 1
    v_bfe_u32 v{t1}, v1, 2, 2
    v_lshl_or_b32 v{t2}, v{t0}, 2, v{t1}
    v_lshl_add_u32 v{t0}, v{t0}, 3, v{t1}
    v_lshrrev_b32 v{t1}, 5, v1
    v_lshl_add_u32 v{t0}, v{t1}, 2, v{t0}
    v_and_b32 v{t1}, 3, v1
    v_lshlrev_b32 v{t1}, 3, v{t1}
    v_lshl_add_u32 v{t3}, v{t0}, 8, v{t1}
    s_add_u32 s{sT0}, s{sLb}, {Bslot(0)}
    v_add_u32 v{t3}, s{sT0}, v{t3}""")
    for P in range(7): A(f'v_xor_b32 v{t0}, {P}, v{t2}\nv_lshl_add_u32 v{vWr+P}, v{t0}, 5, v{t3}')
    for i in range(4): A(f'v_mov_b32 v{vOne+i}, 0x3f803f80')
    A(f"""v_lshlrev_b32 v{vH}, 4, v1
    v_add_u32 v{vH+1}, {57344}, v{vH}
    v_add_u32 v{vH+2}, {2*57344}, v{vH}
    v_add_u32 v{vH+3}, {3*57344}, v{vH}
    s_mul_i32 s{sH}, s{sRB2}, {4*57344}
    s_mul_i32 s{sT0}, s{hw}, {14*1024}
    s_add_u32 s{sH}, s{sH}, s{sT0}
    v_lshrrev_b32 v{t0}, 3, v1
    v_bfe_u32 v{t1}, v1, 4, 1
    v_lshlrev_b32 v{t1}, 1, v{t1}
    v_and_b32 v{t2}, 7, v1
    v_xor_b32 v{t2}, v{t2}, v{t1}
    v_lshlrev_b32 v{t2}, 4, v{t2}
    v_lshl_add_u32 v{vW}, v{t0}, 10, v{t2}
    v_xor_b32 v{t3}, 64, v{vW}
    v_add_u32 v{vW+1}, 7168, v{t3}
    v_add_u32 v{vW+2}, 14336, v{vW}
    v_add_u32 v{vW+3}, 21504, v{t3}
    s_mul_i32 s{sWo}, s{hw}, {14*32768}
    s_lshl_b32 s{sT0}, s{sCB2}, 7
    s_add_u32 s{sWo}, s{sWo}, s{sT0}
    s_mov_b32 s{sKw}, s{sK0}
    s_mov_b32 s{sK}, s{sK0}
    v_lshrrev_b32 v{t0}, 4, v1
    v_bfe_u32 v{t1}, v1, 2, 2
    v_lshl_add_u32 v{t0}, v{t0}, 3, v{t1}
    v_bfe_u32 v{t1}, v1, 3, 2
    v_and_b32 v{t2}, 3, v1
    v_lshlrev_b32 v{t2}, 3, v{t2}
    v_lshl_add_u32 v{t2}, v{t0}, 7, v{t2}
    v_add_u32 v{t2}, s{sLb}, v{t2}""")
    for T in range(4): A(f'v_xor_b32 v{t3}, {T}, v{t1}\nv_lshl_add_u32 v{vR+T}, v{t3}, 5, v{t2}')
    for T in range(4): A(f'v_add_u32 v{vR+4+T}, 65536, v{vR+T}')
    ST('d01')
    vSy, vI1 = 6, 7
    A(f'v_mov_b32 v{vSy}, {LSY}\nv_mov_b32 v{vI1}, 1')
    def colsum(st):
        slot = st & 3
        vwait(('d', st))
        for P in range(7): A(f'ds_read_b64_tr_b16 {v(vFw+4*P+2*(st&1),2)}, v{vWr+P} offset:{slot*16384}')
        A('s_waitcnt lgkmcnt(0)')
        if st == 7:
            for P in range(4, 7): A(f'v_mov_b32 v{vFw+4*P}, 0\nv_mov_b32 v{vFw+4*P+1}, 0')
        for P in range(7):
            if (P < 4 and st & 1) or (P >= 4 and (not st & 1 or st == 7)):
                A(f'v_mfma_f32_16x16x32_bf16 {v(vCS+4*P,4)}, {v(vOne,4)}, {v(vFw+4*P,4)}, {"0" if st <= 1 else v(vCS+4*P,4)}')
    for P in range(4, 7): A(f'v_mov_b32 v{vFw+4*P+2}, 0\nv_mov_b32 v{vFw+4*P+3}, 0')
    ST('pre')
    NREG = cfg.get('nreg', 7)
    WR = 192 - 16 * NREG
    def ldW(i):
        for e in range(4):
            pre = f's_add_u32 m0, s{sLb}, {RING[i % 6]}\ns_lshl_b32 s{b0}, s{sKw}, 15\ns_add_u32 s{b0}, s{sWo}, s{b0}\ns_add_u32 s{sKw}, s{sKw}, 1\ns_cmp_eq_u32 s{sKw}, 14\ns_cselect_b32 s{sKw}, 0, s{sKw}\n' if e == 0 else ''
            A.push(pre + f'buffer_load_dwordx4 v{vW+e}, s[{sW2}:{sW2+3}], s{b0} offen offset:{1024*e} lds', ('w', i))
    def rdW(i, dst):
        base = RING[i % 6]; hi = 4 if base >= 65536 else 0; base &= 65535
        for T in range(4):
            for hh in range(2):
                A(f'ds_read_b64_tr_b16 {v(dst+4*T+2*hh,2)}, v{vR+hi+T} offset:{base+hh*512}')
    nw = [0]
    def ldWn(n):
        for _ in range(n): ldW(nw[0]); nw[0] += 1
    def cert(st):
        vwait(('d', st)); lds_inc(A0, vSy, CERT(st), vI1); ST(f'c{st}')
    def wdone(st): lds_wait(A0, f'L_DN{st}', vSy, DONE(st), 4, t3, sT0, sleep=1); ST(f'w{st}')
    def pop3():
        for _ in range(3):
            if A.q: A.pop()
    def bar(st):
        if st < 8: vwait(('d', st))
        ST(f'b{st}'); A0('s_barrier'); ST(f'B{st}')
    A(f"""s_lshl_b32 s{sT0}, s{sK0}, 5
    s_add_u32 s{sT0}, s{sT0}, 64
    s_mul_i32 s{sT1}, s{hw}, {448*1024}
    s_lshl_b32 s{sT2}, s{sCB2}, 7
    s_add_u32 s{sT1}, s{sT1}, s{sT2}
    v_min_u32 v{t0}, 47, v1
    v_add_u32 v{t0}, s{sT0}, v{t0}
    v_subrev_u32 v{t1}, 448, v{t0}
    v_cmp_gt_u32 vcc, 448, v{t0}
    v_cndmask_b32 v{t0}, v{t1}, v{t0}, vcc
    v_lshl_add_u32 v46, v{t0}, 10, s{sT1}""")
    sF1 = 16
    A(f"""v_and_b32 v{t0}, 31, v1
    v_lshlrev_b32 v2, 3, v{t0}
    s_lshl_b32 s{sE}, s{sRB}, 10
    s_lshl_b32 s{sT1}, s{hw}, 8
    s_add_u32 s{sE}, s{sE}, s{sT1}
    s_add_u32 s{sE}, s{sE}, {WS_GR}
    s_lshr_b32 s{sF1}, s{sDP}, 6
    s_lshl_b32 s{sF1}, s{sF1}, 10
    s_add_u32 s{sF1}, s{sF1}, s{sT1}
    s_add_u32 s{sF1}, s{sF1}, {WS_F1}
    v_lshlrev_b32 v41, 2, v1""")
    A.flush()
    vwait('par')
    ST('par')
    KT = kgen_tables(kP, PC, PR, YS)
    nk = cfg.get('d1at', 170)
    A('\n'.join(KT[:nk]))
    A.every = 12; dma(1)
    A('\n'.join(KT[nk:]))
    A.flush(); A.every = cfg.get('every', 6)
    ST('kt')
    nd = [2]
    for _ in range(cfg.get('pre', 1)): dma(nd[0], now=True); nd[0] += 1
    AHEAD = cfg.get('ahead', [1, 1, 1, 1, 1])
    O = 164; R = 116; RA = 88
    def pk(d, a, b): return f'v_cvt_pk_f16_f32 v{d}, v{a}, v{b}'
    sCh, sHF, sKb = 18, 19, 20
    def kaddr():
        A(f"""s_lshr_b32 s{sCh}, s{hw}, 1
        s_and_b32 s{sHF}, s{hw}, 1
        s_lshl_b32 s{sT0}, s{sCh}, 16
        s_lshl_b32 s{sT1}, s{sHF}, 13
        s_add_u32 s{sT2}, s{sT0}, s{sT1}
        s_add_u32 s{sT2}, s{sT2}, {Aslot(2)}
        v_lshl_add_u32 v{WA}, v1, 2, s{sT2}""")
        L = []
        L += f"""v_and_b32 v{t0}, 31, v1
        v_lshrrev_b32 v{t1}, 5, v1
        v_and_b32 v{t2}, 15, v1
        v_xor_b32 v{t1}, v{t1}, v{t2}
        v_lshlrev_b32 v{t1}, 4, v{t1}
        v_lshl_add_u32 v{t1}, v{t0}, 8, v{t1}
        v_add_u32 v{RA}, s{sT2}, v{t1}
        v_add_u32 v96, s{sT2}, v13
        v_xor_b32 v97, 0x2000, v96""".split('\n')
        L += [f'v_xor_b32 v{RA+sg}, {sg*32}, v{RA}' for sg in range(1, 8)]
        L += f"""s_mul_i32 s{sKb}, s{sCh}, {4*KCP}
        s_add_u32 s{sKb}, s{sKb}, {LKC}
        s_lshl_b32 s{sT0}, s{sCh}, 2
        v_add_u32 v{R}, s{sT0}, v{vSy}
        v_mov_b32 v{R+4}, 0
        v_mov_b32 v{R+5}, 0
        v_mov_b32 v{R+6}, 0
        v_mov_b32 v{R+7}, 0
        v_lshrrev_b32 v{R+1}, 2, v1
        v_mul_u32_u24 v{R+1}, {KCP}, v{R+1}
        v_and_b32 v{t2}, 3, v1
        v_lshl_add_u32 v{R+1}, v{t2}, 4, v{R+1}
        v_add_u32 v{R+1}, s{sKb}, v{R+1}
        s_mul_i32 s{sT0}, s{sCh}, {UP}
        s_add_u32 s{sT0}, s{sT0}, {LU}
        v_add_u32 v{R+2}, s{sT0}, v13
        s_add_u32 s{sT0}, s{sKb}, 1008
        v_sub_u32 v{R+3}, s{sT0}, v13
        v_and_b32 v{t3}, 1, v1
        v_cmp_eq_u32 s[24:25], 1, v{t3}""".split('\n')
        W = []
        for i in range(16):
            if i: W.append(f'v_xor_b32 v{WA+i}, {i*16}, v{WA}')
            if i < cfg.get('cearly', 0): W.append(wr1(PC, i))
            W += L[:2]; del L[:2]
            if cfg.get('cpace', 0): W.append(f's_sleep {cfg.get("cpace", 1)}')
        A('\n'.join(W + L))
    def wr1(P, i): return f'ds_write2st64_b32 v{WA+i}, v{P+i}, v{P+i+16} offset0:{i} offset1:{i+16}'
    def trd(P):
        for sg in range(8): A(f'ds_read_b128 {v(P+4*sg,4)}, v{RA+sg}')
    def kphase():
        for i in range(cfg.get('cearly', 0), 16): A(wr1(PC, i))
        trd(PC)
        for i in range(16): A(wr1(PR, i))
        trd(PR)
        for sg in range(8):
            A(f's_waitcnt lgkmcnt({7-sg})')
            A(f'v_mfma_f32_32x32x16_f16 {v(D,16)}, {v(PR+4*sg,4)}, {v(PC+4*sg,4)}, {"0" if sg == 0 else v(D,16)}')
        A(f"""ds_write_b32 v{R}, v{YS} offset:40
        s_mov_b64 exec, 0xffff
        ds_write_b128 v{R+1}, {v(R+4,4)} offset:4096
        s_mov_b64 exec, 0x3fffffff
        ds_write_b128 v{R+2}, {v(R+4,4)}
        s_mov_b64 exec, -1""")
        for i in range(4): A(f'ds_write_b128 v96, {v(D+4*i,4)} offset:{1024*i}')
        ST('k1')
        lds_inc(A0, R, SY_KG, vI1)
        UWRITE()
        lds_wait(A0, 'L_WKG', R, SY_KG, 2, t3, sT0)
        for i in range(4): A(f'ds_read_b128 {v(PC+4*i,4)}, v97 offset:{1024*i}')
        A0(f's_cmp_eq_u32 s{sHF}, 1\ns_waitcnt lgkmcnt(0)')
        A.fwd_branch('s_cbranch_scc1 L_KH1')
        def chunk(c, E):
            if c == 0: return [pk(E, D+7, D+6), pk(E+1, D+5, D+4), pk(E+2, D+3, D+2), pk(E+3, D+1, D+0)]
            if c == 1: return [pk(E, D+10, D+10), pk(E+1, D+9, D+9), pk(E+2, D+9, D+8), pk(E+3, D+8, D+8)]
            lo, hi = D + 11 + 2 * (c - 2), D + 12 + 2 * (c - 2)
            return [f'v_cndmask_b32 v{t3}, v{lo}, v{hi}, s[24:25]', pk(E, hi, hi), pk(E+1, hi, t3), pk(E+2, lo, lo), pk(E+3, lo, lo)]
        for hf in range(2):
            if hf: A.label('L_KH1')
            need = range(0, 11) if hf == 0 else range(9, 15)
            for i in need: A0(f'v_add_f32 v{D+i}, v{D+i}, v{PC+i}')
            Es = {c: O + 24 * (c & 1) for c in range(4)}
            PV = 160
            if hf == 0: A0(f'v_mov_b32 v{PV}, 0\nv_mov_b32 v{PV+1}, 0')
            else: A0('\n'.join(chunk(1, PV)[:2]))
            for c in (2 * hf, 2 * hf + 1): A0('\n'.join(chunk(c, Es[c])))
            for c in (2 * hf, 2 * hf + 1):
                E = Es[c]; prev = PV if c == 2 * hf else Es[c - 1]
                A0(f'ds_write_b128 v{R+3}, {v(E,4)} offset:{1024*(3-c)}')
                for j in range(2): A0(f'v_mov_b32_dpp v{E+4+j}, v{prev+j} wave_ror:1 row_mask:0xf bank_mask:0xf')
                for j in range(2): A0(f'v_mov_b32_dpp v{E+4+j}, v{E+j} wave_shr:1 row_mask:0xf bank_mask:0xf')
                c1, c2, c3 = E + 8, E + 12, E + 16
                for i in range(4): A0(f'v_alignbit_b32 v{c1+i}, v{E+i+1}, v{E+i}, 16')
                A0(f'ds_write_b128 v{R+3}, {v(c1,4)} offset:{1024*(3-c)+KCP}')
                for i in range(4): A0(f'v_mov_b32 v{c2+i}, v{E+i+1}')
                A0(f'ds_write_b128 v{R+3}, {v(c2,4)} offset:{1024*(3-c)+2*KCP}')
                for i in range(4): A0(f'v_alignbit_b32 v{c3+i}, v{E+i+2}, v{E+i+1}, 16')
                A0(f'ds_write_b128 v{R+3}, {v(c3,4)} offset:{1024*(3-c)+3*KCP}')
            if hf == 0: A.fwd_branch('s_branch L_KH2')
        A.label('L_KH2')
        lds_inc(A0, vSy, SY_U, vI1)
        ST('u')
    for k in range(6):
        bar(k)
        for _ in range(AHEAD[k] if k < len(AHEAD) else 1):
            if nd[0] < 8:
                assert nd[0] <= k + 3
                dma(nd[0]); nd[0] += 1
        if k == 5: ldWn(2)
        pop3()
        if k == 0: A(f'ds_read_b32 v15, v{vSy} offset:32')
        for c in {0: [0], 1: [1], 2: [2, 3], 3: [4], 4: [5], 5: [6, 7]}[k]: colsum(c)
        if k == 0: A(f'v_readfirstlane_b32 s{sNon}, v15')
        A.flush()
        if k == 4: A(f'buffer_load_dwordx2 v[4:5], v2, s[{sWS}:{sWS+3}], s{sE} offen{SC}', 'gl'); A(f'buffer_load_dword v40, v41, s[{sWS}:{sWS+3}], s{sF1} offen{SC}', 'f1')
    for P in range(7): A(f'v_mov_b32 v{vFw+P}, v{vCS+4*P}')
    A(f"""s_lshl_b32 s{sT0}, s{hw}, 9
    s_add_u32 s{sT0}, s{sT0}, {LCSP}
    v_lshl_add_u32 v{t1}, v1, 5, s{sT0}
    s_mov_b64 exec, 0xffff
    ds_write_b128 v{t1}, {v(vFw,4)}
    ds_write_b128 v{t1}, {v(vFw+4,4)} offset:16
    s_mov_b64 exec, -1
    s_waitcnt lgkmcnt(0)""")
    bar(6)
    A(f"""v_and_b32 v{t0}, 31, v1
    s_lshl_b32 s{sT0}, s{hw}, 5
    v_add_u32 v{t0}, s{sT0}, v{t0}
    v_lshlrev_b32 v{t1}, 2, v{t0}
    v_add_u32 v{t1}, {LCSP}, v{t1}""")
    for w in range(4): A(f'ds_read_b32 v{vCS+w}, v{t1} offset:{512*w}')
    A(f"""v_and_b32 v{t1}, 7, v{t0}
    v_lshrrev_b32 v{t0}, 3, v{t0}
    v_lshl_add_u32 v{t0}, v{t1}, 4, v{t0}
    v_lshlrev_b32 v{t0}, 2, v{t0}
    v_add_u32 v{t0}, {LCS}, v{t0}""")
    gpoll(A0, 'L_PG', f'buffer_load_dwordx2 v[4:5], v2, s[{sWS}:{sWS+3}], s{sE} offen{SC}', [5], first=lambda: vwait('gl'))
    A(f"""v_and_b32 v{t2}, 0xffff0000, v4
    v_lshlrev_b32 v{t3}, 16, v4
    v_rcp_f32 v{t2}, v{t2}
    s_lshl_b32 s{sT0}, s{hw}, 8
    s_add_u32 s{sT0}, s{sT0}, {LSTAT}
    v_add_u32 v{t1}, s{sT0}, v2
    v_mul_f32 v{t2}, {NLOG2E}, v{t2}
    v_mul_f32_e64 v{t3}, -v{t3}, v{t2}
    ds_write_b64 v{t1}, v[{t2}:{t3}]
    s_waitcnt lgkmcnt(1)
    v_add_f32 v{vCS}, v{vCS}, v{vCS+1}
    v_add_f32 v{vCS+2}, v{vCS+2}, v{vCS+3}
    v_add_f32 v{vCS}, v{vCS}, v{vCS+2}
    ds_write_b32 v{t0}, v{vCS}""")
    lds_inc(A0, vSy, CERT(8), vI1)
    ST('B8')
    UG = 16; sU0, sU1, sUok = 21, 22, 23
    A(f"""v_lshrrev_b32 v{t0}, 1, v1
    v_and_b32 v{t1}, 1, v1
    v_lshlrev_b32 v43, 4, v{t1}
    v_lshl_add_u32 v43, v{t0}, 13, v43
    s_lshl_b32 s{sU0}, s{sDP}, 5
    s_lshl_b32 s{sT1}, s{hw}, 19
    s_add_u32 s{sU0}, s{sU0}, s{sT1}
    s_add_u32 s{sU0}, s{sU0}, {WS_XN}
    s_add_u32 s{sU1}, s{sU0}, {32*8192}
    v_mul_u32_u24 v{t1}, {UP}, v{t1}
    v_lshl_add_u32 v44, v{t0}, 4, v{t1}
    s_lshl_b32 s{sT0}, s{hw}, 10
    s_add_u32 s{sT0}, s{sT0}, {LU+480}
    v_add_u32 v44, s{sT0}, v44""")
    UL = f'buffer_load_dwordx4 {v(UG,4)}, v43, s[{sWS}:{sWS+3}], s{sU0} offen{SC}\nbuffer_load_dwordx4 {v(UG+4,4)}, v43, s[{sWS}:{sWS+3}], s{sU1} offen{SC}'
    vwait('f1')
    A0(f'v_cmp_ne_u32 vcc, s{sNon}, v40\ns_mov_b32 s{sUok}, 0\ns_cmp_eq_u64 vcc, 0')
    A.fwd_branch('s_cbranch_scc0 L_NOU')
    A0(UL + f'\ns_mov_b32 s{sUok}, 1')
    A.label('L_NOU')
    vq.add('u', 2)
    ST('p1')
    A(f'buffer_load_dword v47, v46, s[{sW2}:{sW2+3}], 0 offen', 'tw')
    def UWRITE():
        vwait('u')
        A0(f's_cmp_eq_u32 s{sUok}, 1')
        A.fwd_branch('s_cbranch_scc1 L_UOK')
        gpoll(A0, 'L_P1', f'buffer_load_dword v40, v41, s[{sWS}:{sWS+3}], s{sF1} offen{SC}', [40])
        A0(UL + '\ns_waitcnt vmcnt(0)')
        A.label('L_UOK')
        A(f'ds_write_b128 v44, {v(UG,4)}\nds_write_b128 v44, {v(UG+4,4)} offset:512')
    kaddr()
    lds_wait(A0, 'L_WD7a', vSy, DONE(7), 4, t3, sT0, sleep=1)
    A0(f's_setprio {cfg.get("kprio", 3)}')
    ST('k0')
    kphase()
    A0(f's_setprio {cfg.get("wprio", 0)}')
    if cfg.get('stn', 4): lds_wait(A0, 'L_WST', vSy, SY_ST, cfg.get('stn', 4), t3, sT0, sleep=1)
    ST('st')
    ldWn(2); A.flush()
    lds_wait(A0, 'L_WXS', vSy, SY_U, 4, t3, sT0)
    ldWn(2); A.flush()
    D2 = cfg.get('d2', 5)
    NW = NREG + 6
    A(f"""s_lshl_b32 s{sE}, s{sRB2}, 7
    s_lshl_b32 s{sT1}, s{hw}, 5
    s_add_u32 s{sE}, s{sE}, s{sT1}
    s_add_u32 s{sE}, s{sE}, {WS_F2}
    v_and_b32 v{t0}, 7, v1
    v_lshlrev_b32 v{t0}, 2, v{t0}""")
    F2L = f'buffer_load_dword v{t2}, v{t0}, s[{sWS}:{sWS+3}], s{sE} offen{SC}'
    for i in range(NREG + 1):
        if i < NREG:
            vwait(('w', i))
            ST(f'W{i}')
            rdW(i, WR + 16 * i)
        while nw[0] < NW and nw[0] <= i + D2 and nw[0] - 6 <= i - 1:
            if nw[0] >= 6: A0(f's_waitcnt lgkmcnt({8 if i < NREG else 0})')
            if nw[0] == NW - cfg.get('f2early', 1): A(F2L, 'f2')
            ldWn(1); A.flush()
    assert nw[0] == NW
    A.flush()
    load_x_final(A0); vq.add('x')
    ST('wpre')
    gpoll(A0, 'L_P2', F2L, [t2], sleep=cfg.get('p2sleep', 4), first=lambda: vwait('f2'))
    ST('p2')
    if cfg.get('hprio'): A(f's_setprio {cfg["hprio"]}')
    ACC = 192
    free = [16, 32] + list(range(64, WR, 16))
    hbuf = {}
    nh = 0
    def ldH():
        nonlocal nh
        if nh >= 14 or not free: return
        b = free.pop(0); hbuf[nh] = b
        for q in range(4):
            pre = f's_lshl_b32 s{b1}, s{sK}, 10\ns_add_u32 s{b1}, s{sH}, s{b1}\ns_add_u32 s{sK}, s{sK}, 1\ns_cmp_eq_u32 s{sK}, 14\ns_cselect_b32 s{sK}, 0, s{sK}\n' if q == 0 else ''
            A.push(pre + f'buffer_load_dwordx4 {v(b+4*q,4)}, v{vH+q}, s[{sWS}:{sWS+3}], s{b1} offen{SC}', ('h', nh))
        nh += 1
    while free: ldH()
    A.flush()
    A0(f"""v_and_b32 v2, 15, v1
    v_lshrrev_b32 v3, 4, v1
    v_xor_b32 v3, v3, v2
    v_lshlrev_b32 v3, 4, v3
    v_lshl_add_u32 v2, v2, 8, v3
    v_add_u32 v2, s{sLb}, v2
    v_xor_b32 v3, 64, v2
    v_xor_b32 v4, 128, v2
    v_xor_b32 v5, 192, v2""")
    A.every = cfg.get('every2', 6)
    wfrag = {i: WR + 16 * i for i in range(NREG)}
    wtmp = []; pend = []
    def rdWl(i, dst):
        base = RING[i % 6]; hi = 4 if base >= 65536 else 0; base &= 65535
        return [f'ds_read_b64_tr_b16 {v(dst+4*T+2*hh,2)}, v{vR+hi+T} offset:{base+hh*512}' for T in range(4) for hh in range(2)]
    LP = cfg.get('lpos', [1, 5, 9, 13])
    for i in range(14):
        if i == cfg.get('trig', 10):
            A0(f'ds_write_b32 v{vSy}, v{vI1} offset:{SY_TRIG}')
        rd = []
        vwait(('h', i))
        ST(f'h{i}')
        if i >= NREG:
            A0('s_waitcnt lgkmcnt(0)')
            if nw[0] < 14: ldWn(1)
        if NREG <= i + 1 < 14:
            vwait(('w', i + 1))
            wfrag[i + 1] = wtmp.pop(0); rd = rdWl(i + 1, wfrag[i + 1])
        n = 0
        per = -(-len(A.q) // len(LP))
        for T in range(4):
            for q in range(4):
                a = ACC + 16 * T + 4 * q
                A0(f'v_mfma_f32_16x16x32_bf16 {v(a,4)}, {v(wfrag[i]+4*T,4)}, {v(hbuf[i]+4*q,4)}, {"0" if i == 0 else v(a,4)}')
                if n in LP:
                    for _ in range(per):
                        if A.q: A.pop()
                elif rd: A0(rd.pop(0))
                if i == 13:
                    pend.append(f'ds_write_b128 v{2+T}, {v(a,4)} offset:{PART[q]}')
                    if len(pend) > 4: A0(pend.pop(0))
                n += 1
        if i == 13: A0('\n'.join(pend))
        assert not rd
        A.flush()
        free.append(hbuf[i])
        if i >= NREG - 3: wtmp.append(wfrag[i])
        else: free.append(wfrag[i])
        for _ in range(2):
            if nh - (i + 1) < cfg.get('hd', 4): ldH()
    ST('g2')

def gen_final(A, cfg, ST):
    A.label('L_FINAL')
    t0, t1, t2, t3 = 4, 5, 6, 7
    PB = 16; SV = 48; E = 52; XU = 60; SU = 68
    A(f"""v_lshrrev_b32 v{t0}, 3, v0
    v_and_b32 v{t1}, 7, v0
    v_and_b32 v2, 15, v{t0}
    v_lshlrev_b32 v3, 1, v{t1}
    v_xor_b32 v3, v3, v2
    v_lshlrev_b32 v3, 4, v3
    v_lshl_add_u32 v{t2}, v2, 8, v3
    v_lshrrev_b32 v2, 7, v0
    v_lshl_add_u32 v{t2}, v2, 14, v{t2}
    v_xor_b32 v{t3}, 16, v{t2}
    v_bfe_u32 v3, v0, 5, 3
    v_xor_b32 v{t1}, v{t1}, v3
    v_lshlrev_b32 v{t1}, 4, v{t1}
    v_lshl_add_u32 v{t1}, v{t0}, 7, v{t1}
    v_add_u32 v{t1}, {LS}, v{t1}
    s_mov_b32 s{sM0}, {NLOG2E}
    s_mov_b32 s{sM0+1}, {NLOG2E}
    s_waitcnt vmcnt(0) lgkmcnt(0)
    s_barrier""")
    for w in range(4):
        for hh in range(2): A(f'ds_read_b128 {v(PB+8*w+4*hh,4)}, v{t2+hh} offset:{w*4096}')
    A(f'ds_read_b128 {v(SV,4)}, v{t1}')
    for j in range(4): A(f'v_lshlrev_b32 v{XU+2*j}, 16, v{vX+j}\nv_and_b32 v{XU+2*j+1}, 0xffff0000, v{vX+j}')
    A('s_waitcnt lgkmcnt(5)')
    for j in range(4): A(f'v_pk_add_f32 {v(PB+2*j,2)}, {v(PB+2*j,2)}, {v(PB+8+2*j,2)}')
    A('s_waitcnt lgkmcnt(1)')
    for j in range(4): A(f'v_pk_add_f32 {v(PB+16+2*j,2)}, {v(PB+16+2*j,2)}, {v(PB+24+2*j,2)}')
    for j in range(4): A(f'v_pk_add_f32 {v(PB+2*j,2)}, {v(PB+2*j,2)}, {v(PB+16+2*j,2)}')
    for j in range(4): A(f'v_pk_mul_f32 {v(E+2*j,2)}, {v(PB+2*j,2)}, s[{sM0}:{sM0+1}]')
    for j in range(8): A(f'v_exp_f32 v{E+j}, v{E+j}')
    for j in range(4): A(f'v_pk_add_f32 {v(E+2*j,2)}, {v(E+2*j,2)}, 1.0 op_sel_hi:[1,0]')
    for j in range(8): A(f'v_rcp_f32 v{E+j}, v{E+j}')
    A('s_waitcnt lgkmcnt(0)')
    for j in range(4): A(f'v_lshlrev_b32 v{SU+2*j}, 16, v{SV+j}\nv_and_b32 v{SU+2*j+1}, 0xffff0000, v{SV+j}')
    for j in range(4): A(f'v_pk_mul_f32 {v(PB+2*j,2)}, {v(PB+2*j,2)}, {v(E+2*j,2)}')
    for j in range(4): A(f'v_pk_fma_f32 {v(PB+2*j,2)}, {v(PB+2*j,2)}, {v(SU+2*j,2)}, {v(XU+2*j,2)}')
    for j in range(4): A(f'v_cvt_pk_bf16_f32 v{SV+j}, v{PB+2*j}, v{PB+2*j+1}')
    A(f'buffer_store_dwordx4 {v(SV,4)}, v{vXo}, s[{sOUT}:{sOUT+3}], 0 offen')
    ST.dump(sWS, 100, 101)

if __name__ == '__main__':
    out = sys.argv[1]
    cfg = eval(sys.argv[2]) if len(sys.argv) > 2 else {}
    PRESET = {1: dict(H=['ld','par','kt','B0','B4','B8','u','st','wpre','p2','g2','y'], M=['row','xn','kg','B0','B4','g1','epi','cv0','f2','cv1','f3','p3']),
              2: dict(H=['b0','b1','b2','b3','b4','b5','b6','b7','b8','p1','u','wpre'], M=['kg','B0','B1','B2','B3','B4','B5','B6','B7','B8','g1','epi'])}
    PRESET[3] = dict(H=['wpre','p2','g2'], M=['B0','g1','epi','f2','cv1','p3'])
    PRESET[4] = dict(H=['u','st','W0','W3','W6','wpre','p2','h0','h2','h5','h9','g2'], M=['g1','epi','cv0','f2','cv1','f3','p3'])
    PRESET[5] = dict(H=['B8','p1','k0','k1','u','st','W0','W3','wpre','p2','h2','g2'], M=['g1','epi','cv0','f2','cv1','f3','p3'])
    PRESET[6] = dict(H=['p2','h0','h1','h2','h3','h4','h6','h8','h10','h12','h13','g2'], M=['cv1','f3','p3'])
    if cfg.get('stamps') in PRESET:
        cfg['stamps'] = PRESET[cfg['stamps']]
        print('H:', ' '.join('%6s' % a for a in ['t0'] + cfg['stamps']['H'] + ['end']))
        print('M:', ' '.join('%6s' % a for a in ['t0'] + cfg['stamps']['M'] + ['end']))
    MINSLEEP[0] = cfg.get('minsleep', 0)
    A = Asm()
    head = open('cdna_kernels/%s.s.ref' % NAME).read().split('; Override')[0]
    A.raw('.amdgcn_target "amdgcn-amd-amdhsa--gfx950"\n.text')
    k = gen(A, cfg)
    open(out, 'w').write(head + '; @launch grid=(256,1,1) block=(512,1,1) lds=163840\n' + A.text() + '.section .rodata,"a"\n.p2align 6\n' + k)
```

```python
import sys, math, struct
from asmlib import Asm
from gen import NAME, f32, LOG2E, NLOG2E, INV2PI, v, s, srd, kernel_head, kd, cmul, bf16r, interleave

WS_H = 0
WS_XN = 0x700000
WS_SP = 0x900000
WS_GR = 0xD00000
WS_F1 = WS_GR + 0x4000
WS_F2 = WS_F1 + 0x1000
WS_F3 = WS_F2 + 0x1000
WS_EP = WS_F3 + 0x400
WS_STAMP = 0xD10000
WS_SIZE = 0xE00000
SC = ' sc1'

def Aslot(i): return i * 16384
def Bslot(i): return 65536 + i * 16384
LC = 131072
LDD = LC
LNB = LC + 16384; LNP = 1088
TOP = LC + 28672
LSTAT, LCS, LSY = TOP, TOP + 3072, TOP + 3584
LCSP = LNB
LKC = Bslot(3); KCP = 4160
LEX = LKC
LU = LKC + 8 * KCP; UP = 4608
LS = LU
RING = [Aslot(0), Bslot(0), Aslot(1), Bslot(1), Aslot(2), Bslot(2)]
PART = [Aslot(0), Aslot(1), Aslot(2), Aslot(3)]
SY_U, SY_H, SY_K, SY_CV, SY_EX, SY_S, SY_TRIG = 0, 4, 8, 16, 20, 24, 28
SY_XN, SY_XS, SY_KG, SY_ST = 48, 52, 56, 68
def CERT(st): return 64 + 4 * st
def DONE(st): return 128 + 4 * st

MINSLEEP = [0]
class Q:
    def __init__(s, A, name, mx): s.A, s.name, s.mx, s.q = A, name, mx, []
    def add(s, tag, n=1): s.q += [tag] * n
    def wait(s, tag):
        if tag not in s.q: return
        i = len(s.q) - 1 - s.q[::-1].index(tag)
        n = len(s.q) - 1 - i
        n = min(n, s.mx)
        s.A(f's_waitcnt {s.name}({n})'); s.q = s.q[len(s.q) - n:] if n else []
    def all(s):
        s.A(f's_waitcnt {s.name}(0)'); s.q = []

class BG:
    def __init__(s, A, vq, every): s.A, s.vq, s.every, s.q, s.n, s.hold = A, vq, every, [], 0, 0
    def push(s, text, tag): s.q.append((text, tag))
    def pop(s):
        t, tag = s.q.pop(0); s.A(t); s.vq.add(tag); s.n = 0
    def flush(s, tag=None):
        while s.q and (tag is None or any(t == tag for _, t in s.q)): s.pop()
    def __call__(s, text, tag=None):
        for line in text.strip().split('\n'):
            l = line.strip()
            if not l: continue
            if 'exec' in l.split(',')[0] and '-1' not in l: s.hold = 1
            if l.startswith('s_waitcnt lgkmcnt') and not s.hold:
                for _ in range(2):
                    if s.q: s.pop()
            s.A(l)
            if l.startswith(('buffer_', 'global_')):
                assert tag is not None, l
                s.vq.add(tag)
            if l.startswith('s_mov_b64 exec, -1'): s.hold = 0
            w = 3 if l.startswith('v_mfma') else 1
            s.n += w
            if s.q and not s.hold and s.n >= s.every and not l.startswith(('s_cmp', 's_sub_u32', 's_add_u32', 'v_cmp', 's_or_b64', 's_bitcmp')): s.pop()
    def __getattr__(s, k): return getattr(s.A, k)

class Stamps:
    def __init__(self, A, on): self.A, self.on, self.role = A, on, 'H'
    def start(self):
        if self.on: self.A('s_memrealtime s[70:71]\ns_memtime s[72:73]')
    def __call__(self, name):
        if self.on and name in self.on[self.role]:
            i = 1 + self.on[self.role].index(name)
            self.A(f's_memtime s[{72+2*i}:{73+2*i}]')
    def dump(self, sWS, vt, vo):
        if not self.on: return
        A = self.A
        A('s_waitcnt vmcnt(0)\ns_memtime s[98:99]\ns_memrealtime s[100:101]\ns_waitcnt lgkmcnt(0)')
        for i in range(16): A(f'v_writelane_b32 v{vt}, s{70+2*i}, {i}')
        A(f"""v_lshrrev_b32 v{vo}, 6, v0
        v_lshlrev_b32 v{vo}, 7, v{vo}
        v_and_b32 v{vo+1}, 63, v0
        v_lshl_add_u32 v{vo}, v{vo+1}, 2, v{vo}
        s_lshl_b32 s70, s2, 10
        s_add_u32 s70, s70, {WS_STAMP}
        s_mov_b64 exec, 0xffff
        buffer_store_dword v{vt}, v{vo}, s[{sWS}:{sWS+3}], s70 offen
        s_mov_b64 exec, -1""")

sX, sW1, sWS, sW2, sOUT = 4, 8, 12, 44, 48
pX, pLAR, pAIM, pCRE, pCIM, pLDT, pDSK, pW1, pW2, pOUT, pDBG, pWS = 16, 18, 20, 22, 24, 26, 28, 32, 34, 36, 38, 40
sWave, sRB, sCB, sT0, sT1, sT2, sOdd, sCh0, sDP, sNon, sCap, sRB2, sCB2 = 52, 53, 54, 55, 56, 57, 58, 59, 60, 61, 62, 63, 64
sA, sB, sC, sD, sE = 65, 66, 67, 68, 69
sK0 = 3
sM0 = 30
sM1 = 42

def lds_wait(A, name, vaddr, off, val, vt, st, sleep=0):
    sleep = max(sleep, MINSLEEP[0])
    A(f's_mov_b32 s{sCap}, 0x40000')
    A.label(name)
    if sleep: A(f's_sleep {sleep}')
    A(f'''ds_read_b32 v{vt}, v{vaddr} offset:{off}
    s_waitcnt lgkmcnt(0)
    v_readfirstlane_b32 s{st}, v{vt}
    s_sub_u32 s{sCap}, s{sCap}, 1
    s_cselect_b32 s{st}, {val}, s{st}
    s_cmp_lt_u32 s{st}, {val}''')
    A.back_branch(f's_cbranch_scc1 {name}', name)

def lds_inc(A, vaddr, off, vone, rtn=None):
    A('s_mov_b64 exec, 1')
    if rtn is None: A(f'ds_add_u32 v{vaddr}, v{vone} offset:{off}')
    else: A(f'ds_add_rtn_u32 v{rtn}, v{vaddr}, v{vone} offset:{off}')
    A('s_mov_b64 exec, -1')

def gpoll(A, name, load, checks, sleep=8, first=None):
    A(f's_mov_b32 s{sCap}, 0x8000')
    if first:
        first()
        A.fwd_branch(f's_branch {name}_C')
    A.label(name)
    A(f'{load}\ns_waitcnt vmcnt(0)')
    A.label(name + '_C')
    A(f'v_cmp_ne_u32 vcc, s{sNon}, v{checks[0]}')
    for c in checks[1:]:
        A(f'v_cmp_ne_u32 s[{sM1}:{sM1+1}], s{sNon}, v{c}\ns_or_b64 vcc, vcc, s[{sM1}:{sM1+1}]')
    A(f'''s_cmp_eq_u64 vcc, 0
    s_cbranch_scc1 {name}_D
    s_sub_u32 s{sCap}, s{sCap}, 1
    s_cbranch_scc1 {name}_D
    s_sleep {sleep}''')
    A.back_branch(f's_branch {name}', name)
    A.label(name + '_D')

def x_read_addr(A, vXr, sw, t0, t1, t2):
    A(f"""v_and_b32 v{t0}, 15, v1
    v_lshrrev_b32 v{t1}, 4, v1
    v_lshrrev_b32 v{t2}, 1, v{t0}
    v_xor_b32 v{t2}, v{t2}, v{t1}
    v_lshlrev_b32 v{t2}, 4, v{t2}
    v_lshl_add_u32 v{t2}, v{t0}, 7, v{t2}
    s_lshl_b32 s{sT0}, s{sw}, 12
    v_add_u32 v{vXr}, s{sT0}, v{t2}
    v_xor_b32 v{vXr+1}, 64, v{vXr}""")

def kgen_tables(kP, PC, PR, YS):
    lar, aim, cre, cim, cre2, cim2, ldt = [kP + i for i in range(7)]
    dt, a1, w1, t2, t3 = 72, 73, 74, 78, 79
    C = 80; F1, F2, F4, F8, F256, G8, G16, G128 = 82, 84, 86, 88, 90, 92, 94, 96
    X = [98, 100, 102, 104, 106, 108, 110, 112]
    L = []
    for r in range(7): L.append(f'v_lshlrev_b32 v{kP+r}, 16, v{kP+r}')
    L += [f'v_mul_f32 v{dt}, {LOG2E}, v{ldt}', f'v_mul_f32 v{a1}, {LOG2E}, v{lar}', f'v_exp_f32 v{dt}, v{dt}', f'v_exp_f32 v{a1}, v{a1}',
          f'v_max3_f32 v{t2}, |v{cre}|, |v{cim}|, |v{cre2}|', f'v_max_f32_e64 v{t2}, v{t2}, |v{cim2}|']
    La = bf16r(dt, dt) + bf16r(a1, a1) + [f'v_mul_f32 v{a1}, v{a1}, v{dt}', f'v_mul_f32 v{w1}, v{aim}, v{dt}', f'v_mul_f32 v{a1}, {NLOG2E}, v{a1}', f'v_mul_f32 v{w1}, {INV2PI}, v{w1}']
    def direct(d, pos, ta, tb, neg=False):
        return [f'v_mul_f32 v{ta}, {f32(pos)}, v{a1}', f'v_mul_f32 v{tb}, {f32(-pos if neg else pos)}, v{w1}', f'v_exp_f32 v{ta}, v{ta}', f'v_fract_f32 v{tb}, v{tb}',
                f'v_cos_f32 v{d}, v{tb}', f'v_sin_f32 v{d+1}, v{tb}', f'v_mul_f32 v{d}, v{d}, v{ta}', f'v_mul_f32 v{d+1}, v{d+1}, v{ta}']
    La += interleave(direct(G8, 8.0, X[0], X[0] + 1, True), direct(G128, 128.0, X[1], X[1] + 1, True))
    La += interleave(direct(F1, 1.0, X[2], X[2] + 1), direct(F256, 256.0, X[3], X[3] + 1))
    Lb = []
    for r in (1, 2, 4, 8): Lb += [f'v_max_f32_dpp v{t2}, v{t2}, v{t2} row_ror:{r} row_mask:0xf bank_mask:0xf', None]
    for op in ('v_permlane16_swap_b32', 'v_permlane32_swap_b32'):
        Lb += [f'v_mov_b32 v{t3}, v{t2}', None, f'{op} v{t2}, v{t3}', f'v_max_f32 v{t2}, v{t2}, v{t3}']
    Lb += [f'v_lshrrev_b32 v{t2}, 23, v{t2}', f'v_min_u32 v{t2}, 253, v{t2}', f'v_sub_u32 v{t3}, 254, v{t2}',
           f'v_lshlrev_b32 v{t3}, 23, v{t3}', f'v_lshlrev_b32 v{t2}, 23, v{t2}',
           f'v_mul_f32 v{C}, v{cre}, v{t3}', f'v_mul_f32 v{C+1}, v{cim}, v{t3}',
           f'v_mul_f32 v{YS}, v{t2}, v{dt}', f'v_add_f32 v{YS}, v{YS}, v{YS}']
    L += [x for x in interleave(La, Lb) if x]
    L += cmul(G16, G8, G8) + cmul(F2, F1, F1) + [f'v_mov_b32 v{F8}, v{G8}', f'v_xor_b32 v{F8+1}, 0x80000000, v{G8+1}'] + cmul(F4, F2, F2)
    def cv(P, idx, src): return f'v_cvt_pk_f16_f32 v{P+idx}, v{src}, v{src+1}'
    def colchain(par, xa, xb, xc):
        Qq = []
        if par == 0:
            Qq += [f'v_mov_b32 v{PC}, 0x3c00', cv(PC, 16, G128)]; cur = G16; js = range(2, 16, 2)
        else:
            cur = G8; js = range(1, 16, 2)
        first = True
        for j in js:
            if not first:
                d = xa if cur != xa else xb; Qq += cmul(d, cur, G16); cur = d
            first = False
            Qq += cmul(xc, cur, G128) + [cv(PC, j, cur), cv(PC, j + 16, xc)]
        return Qq
    L += interleave(colchain(0, X[0], X[1], X[2]), colchain(1, X[3], X[4], X[5]))
    def ridx(rho, hf): return 8 * (rho >> 2) + 4 * hf + (rho & 3)
    Qa = [cv(PR, ridx(0, 0), C)]; cur = C
    for e in range(1, 8):
        d = X[0] if cur != X[0] else X[1]; Qa += cmul(d, cur, F1) + [cv(PR, ridx(e, 0), d)]; cur = d
    B1 = X[7]
    Qb = cmul(B1, C, F256) + [cv(PR, ridx(0, 1), B1), cv(PR, ridx(1, 1), B1)]
    Qc = []; cur = B1
    for k, rhos in enumerate([[2], [3, 4, 5], [6], [7]]):
        d = X[2] if cur != X[2] else X[3]; Qc += cmul(d, cur, F2) + [cv(PR, ridx(r, 1), d) for r in rhos]; cur = d
    Bc, Bn = B1, X[4]; alt = X[5]
    for sp in range(6):
        Qb += cmul(Bn, Bc, F256); Bc = Bn; Bn = alt if Bc == X[4] else X[4]
        if sp < 2:
            Qb += [cv(PR, ridx(8, sp), Bc)] + cmul(X[6], Bc, F4) + [cv(PR, ridx(9, sp), X[6])] + cmul(X[6], Bc, F8) + [cv(PR, ridx(10, sp), X[6])]
        else:
            rho = 11 + 2 * ((sp - 2) >> 1); hf = sp & 1
            Qb += [cv(PR, ridx(rho, hf), Bc)] + cmul(X[6], Bc, F8) + [cv(PR, ridx(rho + 1, hf), X[6])]
    L += Qb[:2] + interleave(Qb[2:], Qa + Qc)
    L += [f'v_mov_b32 v{PR+27}, 0', f'v_mov_b32 v{PR+31}, 0']
    return L

KN = NAME + '_kernel'

def gen(A, cfg):
    kernel_head(A, KN)
    A('s_cmp_ge_u32 s2, 256\ns_cbranch_scc1 L_END')
    ST = Stamps(A, cfg.get('stamps')); ST.start()
    A(f"""s_load_dwordx16 s[16:31], s[0:1], 0
    s_load_dwordx8 s[32:39], s[0:1], 64
    s_load_dwordx2 s[40:41], s[0:1], 96
    s_getpc_b64 s[{sM1}:{sM1+1}]""")
    A.raw('L_PC0:')
    if cfg.get('cpfall', 1):
        A('v_lshlrev_b32 v2, 7, v0\nv_cmp_gt_u32 vcc, L_CODE_END-L_PC0, v2')
    else:
        A(f's_lshr_b32 s{sT0}, s2, 3\ns_lshl_b32 s{sT0}, s{sT0}, 7\nv_lshl_add_u32 v2, v0, 12, s{sT0}\nv_cmp_gt_u32 vcc, L_CODE_END-L_PC0, v2')
    A(f"""s_and_saveexec_b64 s[{sA+1}:{sA+2}], vcc
    s_cbranch_execz L_NOCPF
    global_load_dword v159, v2, s[{sM1}:{sM1+1}]""")
    A.label('L_NOCPF', fence=False)
    A(f"""s_mov_b64 exec, -1
    v_lshrrev_b32 v2, 6, v0
    v_and_b32 v1, 63, v0
    v_readfirstlane_b32 s{sWave}, v2
    s_bfe_u32 s{sT0}, s2, 0x20001
    s_lshl_b32 s{sT0}, s{sT0}, 2
    s_bfe_u32 s{sT1}, s2, 0x20003
    s_add_u32 s{sRB}, s{sT0}, s{sT1}
    s_and_b32 s{sT0}, s2, 1
    s_lshl_b32 s{sT0}, s{sT0}, 3
    s_lshr_b32 s{sCB2}, s2, 5
    s_add_u32 s{sCB}, s{sT0}, s{sCB2}
    s_lshl_b32 s{sT2}, s{sT1}, 1
    s_add_u32 s{sCh0}, s{sT2}, s{sCB2}
    s_and_b32 s{sOdd}, s{sCB}, 1
    s_and_b32 s{sT0}, s2, 7
    s_lshl_b32 s{sRB2}, s{sT0}, 2
    s_add_u32 s{sRB2}, s{sRB2}, s{sT1}
    s_lshl_b32 s{sDP}, s{sT0}, 5
    s_lshr_b32 s{sT0}, s2, 3
    s_add_u32 s{sDP}, s{sDP}, s{sT0}
    s_mul_i32 s{sK0}, s{sCB2}, 14
    s_lshr_b32 s{sK0}, s{sK0}, 3
    s_mul_i32 s{sT0}, s{sT1}, 7
    s_lshr_b32 s{sT0}, s{sT0}, 1
    s_add_u32 s{sK0}, s{sK0}, s{sT0}
    s_sub_u32 s{sT0}, s{sK0}, 14
    s_cmp_ge_u32 s{sK0}, 14
    s_cselect_b32 s{sK0}, s{sT0}, s{sK0}
    v_lshlrev_b32 v2, 2, v1
    v_add_u32 v2, {LSY}, v2
    v_mov_b32 v14, 0
    ds_write_b32 v2, v14
    s_cmp_lt_u32 s{sWave}, 4""")
    A.fwd_branch('s_cbranch_scc0 L_M')
    n0 = len(A.out)
    A.label('L_M')
    gen_M(A, cfg, ST)
    n1 = len(A.out)
    gen_H(A, cfg, ST)
    Mt, Ht = A.out[n0:n1], A.out[n1:]
    k = Ht.index('; @@SPLIT')
    A.out[n0:] = Ht[:k] + ['    s_branch L_H2'] + Mt + ['L_H2:'] + Ht[k+1:]
    gen_final(A, cfg, ST)
    A.label('L_END', fence=False)
    A('s_endpgm')
    A.raw('L_CODE_END:')
    return kd(KN, 256, 102)

vX, vXo = 8, 12

def load_x_final(A):
    A(f"""v_lshrrev_b32 v2, 3, v0
    v_and_b32 v3, 7, v0
    v_lshlrev_b32 v3, 4, v3
    v_lshl_add_u32 v{vXo}, v2, 10, v3
    s_lshl_b32 s{sT0}, s{sRB2}, 16
    s_lshl_b32 s{sT1}, s{sCB2}, 7
    s_add_u32 s{sT0}, s{sT0}, s{sT1}
    v_add_u32 v{vXo}, s{sT0}, v{vXo}
    buffer_load_dwordx4 {v(vX,4)}, v{vXo}, s[{sX}:{sX+3}], 0 offen""")

def gen_M(A, cfg, ST):
    ST.role = 'M'
    mw = sWave
    t0, t1, t2, t3 = 16, 17, 18, 19
    kP = 64; D = 232
    vRow, vTmp, vOne = 160, 168, 184
    PC, PR, YS, WA = 192, 224, 189, 160
    vSyM, vOneM, vFl = 14, 15, 3
    A(f"""s_sub_u32 s{mw}, s{mw}, 4
    v_lshlrev_b32 v{t3}, 21, v1
    v_lshlrev_b32 v187, 4, v1
    v_mov_b32 v188, {WS_EP}
    s_lshl_b32 s{sT0}, s{sDP}, 13
    s_lshl_b32 s{sT1}, s{mw}, 11
    s_add_u32 s{sT0}, s{sT0}, s{sT1}
    v_add_u32 v186, s{sT0}, v187
    s_lshl_b32 s{sT0}, s2, 2
    s_add_u32 s{sT0}, s{sT0}, s{mw}
    s_mul_i32 s{sT0}, s{sT0}, {14*128}
    v_lshl_add_u32 v185, v1, 7, s{sT0}
    s_waitcnt lgkmcnt(0)
    global_load_dword v188, v188, s[{pWS}:{pWS+1}]{SC}
    global_load_dwordx4 {v(vRow,4)}, v186, s[{pX}:{pX+1}]
    global_load_dwordx4 {v(vRow+4,4)}, v186, s[{pX}:{pX+1}] offset:1024""")
    srd(A, sWS, pWS, WS_SIZE); srd(A, sX, pX, 2048 * 1024); srd(A, sOUT, pOUT, 2048 * 1024)
    A(f"""s_mov_b64 exec, 0x7f
    buffer_load_dword v156, v{t3}, s[{sWS}:{sWS+3}], 0 offen
    s_mov_b64 exec, 1
    global_load_dword v157, v{t3}, s[{pOUT}:{pOUT+1}]
    s_mov_b64 exec, {'0x3fff' if cfg.get('mall', 0) else '1'}
    global_load_dword v158, v185, s[{pW2}:{pW2+1}]
    s_mov_b64 exec, -1
    s_barrier
    s_lshl_b32 s{sT0}, s{sDP}, 2
    s_load_dword s{sD}, s[{pDSK}:{pDSK+1}], s{sT0}""")
    if cfg.get('lnprio'): A(f's_setprio {cfg["lnprio"]}')
    ST('ld')
    vXr, vWr = 4, 6
    F = [20, 56]; ACC = 92
    x_read_addr(A, vXr, mw, t0, t1, t2)
    A(f"""v_lshrrev_b32 v{t0}, 4, v1
    v_bfe_u32 v{t1}, v1, 2, 2
    v_and_b32 v{t2}, 1, v{t0}
    v_lshl_or_b32 v{t2}, v{t2}, 2, v{t1}
    v_lshl_add_u32 v{t0}, v{t0}, 3, v{t1}
    v_and_b32 v{t1}, 3, v1
    v_lshlrev_b32 v{t1}, 3, v{t1}
    v_lshl_add_u32 v{t3}, v{t0}, 8, v{t1}
    v_add_u32 v{t3}, {Bslot(0)}, v{t3}""")
    for tau in range(7):
        A(f'v_xor_b32 v{t0}, {tau}, v{t2}\nv_lshl_add_u32 v{vWr+tau}, v{t0}, 5, v{t3}')
    A(f'v_mov_b32 v{vOne}, 0x3f803f80\ns_waitcnt lgkmcnt(0)')
    A('s_waitcnt vmcnt(3)')
    ST('row')
    class Col:
        def __init__(s): s.L = []
        def __call__(s, t): s.L += [x.strip() for x in t.strip().split('\n') if x.strip()]
    A_ = A; A = Col()
    S = [vTmp + i for i in range(4)]
    T = [vTmp + 4 + i for i in range(4)]
    for r in range(2):
        for j in range(4):
            x = vRow + 4 * r + j
            if j == 0:
                A(f'v_dot2_f32_bf16 v{S[r]}, v{x}, v{vOne}, 0\nv_dot2_f32_bf16 v{S[2+r]}, v{x}, v{x}, 0')
            else:
                A(f'v_dot2_f32_bf16 v{S[r]}, v{x}, v{vOne}, v{S[r]}\nv_dot2_f32_bf16 v{S[2+r]}, v{x}, v{x}, v{S[2+r]}')
    for rr in (1, 2, 4, 8):
        for i in range(4): A(f'v_add_f32_dpp v{S[i]}, v{S[i]}, v{S[i]} row_ror:{rr} row_mask:0xf bank_mask:0xf')
    for op in ('v_permlane16_swap_b32', 'v_permlane32_swap_b32'):
        for i in range(4): A(f'v_mov_b32 v{T[i]}, v{S[i]}')
        for i in range(4): A(f'{op} v{S[i]}, v{T[i]}')
        for i in range(4): A(f'v_add_f32 v{S[i]}, v{S[i]}, v{T[i]}')
    Ls = []
    for r in range(2):
        m, e2, a, b = S[r], S[2 + r], T[r], T[2 + r]
        Ls.append([f'v_mul_f32 v{m}, {f32(1/512)}, v{m}', f'v_mul_f32 v{e2}, {f32(1/512)}, v{e2}',
                   f'v_fma_f32 v{e2}, -v{m}, v{m}, v{e2}', f'v_max_f32 v{e2}, 0, v{e2}'] + bf16r(e2, e2) + bf16r(m, m) +
                  [f'v_add_f32 v{e2}, {f32(1e-5)}, v{e2}'] + bf16r(e2, e2) + [f'v_sqrt_f32 v{e2}, v{e2}'] + bf16r(e2, e2) +
                  [f'v_rcp_f32 v{a}, v{e2}', f'v_mul_f32_e64 v{b}, -v{m}, v{a}', f'v_lshrrev_b32 v{m}, 16, v{m}', f'v_or_b32 v{m}, v{m}, v{e2}'])
    A('\n'.join(interleave(*Ls)))
    vSy, vI1 = vSyM, vOneM
    A(f"""v_readfirstlane_b32 s{sNon}, v188
    v_mov_b32 v{vSy}, {LSY}
    v_mov_b32 v{vI1}, 1
    s_mul_i32 s{sNon}, s{sNon}, 0x9e3779b1
    s_add_u32 s{sNon}, s{sNon}, 0x7f4a7c15
    v_cmp_eq_u32 vcc, 1, v1
    v_cndmask_b32 v{vTmp+8}, v{S[0]}, v{S[1]}, vcc
    v_mov_b32 v{vTmp+9}, s{sNon}
    ds_write_b32 v{vSy}, v{vTmp+9} offset:32""")
    for r in range(2):
        for j in range(4):
            x = vRow + 4 * r + j; u = vTmp + 10 + 2 * (j & 1)
            A(f"""v_lshlrev_b32 v{u}, 16, v{x}
            v_and_b32 v{u+1}, 0xffff0000, v{x}
            v_fma_f32 v{u}, v{u}, v{T[r]}, v{T[2+r]}
            v_fma_f32 v{u+1}, v{u+1}, v{T[r]}, v{T[2+r]}
            v_cvt_pk_f16_f32 v{x}, v{u}, v{u+1}""")
    A(f"""s_mul_i32 s{sT0}, s{mw}, {2*LNP}
    s_add_u32 s{sT0}, s{sT0}, {LNB}
    v_add_u32 v{t0}, s{sT0}, v187
    ds_write_b128 v{t0}, {v(vRow,4)}
    ds_write_b128 v{t0}, {v(vRow+4,4)} offset:{LNP}""")
    LNL = A.L; A = A_
    A('\n'.join(LNL))
    lds_inc(A, vSy, SY_XN, vI1)
    A(f"""v_bfe_u32 v{t0}, v1, 2, 2
    v_mul_u32_u24 v{t0}, {LNP}, v{t0}
    v_lshrrev_b32 v{t1}, 4, v1
    v_lshl_add_u32 v{t0}, v{t1}, 5, v{t0}
    v_and_b32 v{t1}, 3, v1
    v_lshl_add_u32 v{t0}, v{t1}, 3, v{t0}
    s_lshl_b32 s{sT0}, s{mw}, 8
    s_add_u32 s{sT0}, s{sT0}, {LNB}
    v_add_u32 v{t0}, s{sT0}, v{t0}""")
    lds_wait(A, 'L_WXN', vSy, SY_XN, 4, t3, sT0)
    for i in range(2):
        for hh in range(2): A(f'ds_read_b64_tr_b16 {v(vRow+4*i+2*hh,2)}, v{t0} offset:{128*i+4*LNP*hh}')
    ST('xn')
    ST('kt')
    lq = Q(A, 'lgkmcnt', 15)
    def reads(st, kap):
        slot = st & 3; f = F[kap]; L = []
        for q in range(2): L.append((f'ds_read_b128 {v(f+28+4*q,4)}, v{vXr+kap} offset:{Aslot(slot)+q*2048}', (st, kap, 0)))
        for tau in range(7):
            for hh in range(2):
                L.append((f'ds_read_b64_tr_b16 {v(f+4*tau+2*hh,2)}, v{vWr+tau} offset:{slot*16384+kap*8192+hh*1024}', (st, kap, tau)))
        return L
    def emit(rd):
        for t, tag in rd: A(t); lq.add(tag)
    vSyM, vOneM, vFl = 14, 15, 3
    def kstep(st, kap, rd, first=False, bar_at=None, bar_fn=None):
        f = F[kap]; k = 0; n = 0
        start = 0 if bar_at is None else bar_at
        slots = 14 - start - 1
        flag = bar_at is not None and st == 7
        if flag: A(f'ds_read_b32 v{vFl}, v{vSyM} offset:{CERT(st+1)}'); lq.add('fl')
        for tau in range(7):
            lq.wait((st, kap, tau))
            for q in range(2):
                if n == bar_at:
                    lq.all()
                    if flag:
                        A(f'v_readfirstlane_b32 s{sT0}, v{vFl}')
                        A(f's_cmp_ge_u32 s{sT0}, {0 if cfg.get("nocheck") else 4}')
                        A(f's_cbranch_scc1 L_CK{st}')
                        lds_wait(A, f'L_CW{st}', vSyM, CERT(st+1), 4, vFl, sT0)
                        A.label(f'L_CK{st}', fence=False)
                    else:
                        A('s_barrier')
                    bar_fn and bar_fn()
                a = ACC + 8 * tau + 4 * q
                A(f'v_mfma_f32_16x16x32_bf16 {v(a,4)}, {v(f+4*tau,4)}, {v(f+28+4*q,4)}, {"0" if first else v(a,4)}')
                if n >= start:
                    want = min(len(rd), -(-len(rd) * (n - start + 1) // slots))
                    emit(rd[k:want]); k = max(k, want)
                n += 1
        emit(rd[k:])
    A(f"""v_lshlrev_b32 v{t0}, 3, v1
    s_lshl_b32 s{sT0}, s{sDP}, 6
    s_lshl_b32 s{sT1}, s{mw}, 4
    s_add_u32 s{sT0}, s{sT0}, s{sT1}
    s_add_u32 s{sT0}, s{sT0}, {WS_GR}
    s_setprio 3
    s_mov_b64 exec, 3
    buffer_store_dwordx2 {v(vTmp+8,2)}, v{t0}, s[{sWS}:{sWS+3}], s{sT0} offen{SC}
    s_mov_b64 exec, -1
    s_lshl_b32 s{sT0}, s{sDP}, 13
    s_lshl_b32 s{sT1}, s{mw}, 11
    s_add_u32 s{sT0}, s{sT0}, s{sT1}
    s_add_u32 s{sT0}, s{sT0}, {WS_XN}
    s_waitcnt lgkmcnt(0)
    buffer_store_dwordx4 {v(vRow,4)}, v187, s[{sWS}:{sWS+3}], s{sT0} offen{SC}
    buffer_store_dwordx4 {v(vRow+4,4)}, v187, s[{sWS}:{sWS+3}], s{sT0} offen offset:1024{SC}
    s_waitcnt lgkmcnt(0)""")
    A(f's_setprio {cfg.get("lprio", 0)}')
    ST('kg')
    A('s_barrier')
    ST('B0')
    emit(reads(0, 0))
    A(f'v_mov_b32 v{vFl}, s{sNon}')
    def twr(P, off): return [(f'ds_write2st64_b32 v{WA+i}, v{P+i}, v{P+i+16} offset0:{off+i} offset1:{off+i+16}', 'tw') for i in range(16)]
    ab = 20; cs = 24
    BA = cfg.get('bar_at', 4)
    for st in range(8):
        if st == cfg.get('f1st', 1):
            A(f"""s_lshl_b32 s{sT1}, s{sDP}, 2
            s_lshl_b32 s{sT0}, s{mw}, 10
            s_add_u32 s{sT1}, s{sT1}, s{sT0}
            s_add_u32 s{sT1}, s{sT1}, {WS_F1}
            v_mov_b32 v{t0}, 0
            s_waitcnt vmcnt(0)
            s_setprio 3
            s_mov_b64 exec, 1
            buffer_store_dword v{vFl}, v{t0}, s[{sWS}:{sWS+3}], s{sT1} offen{SC}
            s_mov_b64 exec, -1
            s_setprio {cfg.get('lprio', 0)}""")
        kstep(st, 0, reads(st, 1), first=(st == 0))
        if st < 7:
            def bf(st=st):
                ST(f'B{st+1}')
            if st == 6: kstep(st, 1, reads(st + 1, 0))
            else: kstep(st, 1, reads(st + 1, 0), bar_at=BA, bar_fn=bf)
        else:
            A(f"""v_and_b32 v{t0}, 15, v1
            s_lshl_b32 s{sT0}, s{mw}, 8
            s_add_u32 s{sT0}, s{sT0}, {LSTAT}
            v_lshl_add_u32 v{t1}, v{t0}, 3, s{sT0}
            v_lshrrev_b32 v{t0}, 4, v1
            v_lshlrev_b32 v{t0}, 4, v{t0}
            v_add_u32 v{t0}, {LCS}, v{t0}""")
            rd = [(f'ds_read_b64 {v(ab,2)}, v{t1}', 'e'), (f'ds_read_b64 {v(ab+2,2)}, v{t1} offset:128', 'e')]
            rd += [(f'ds_read_b128 {v(cs+4*tau,4)}, v{t0} offset:{64*tau}', 'e') for tau in range(7)]
            kstep(st, 1, rd, bar_at=BA, bar_fn=lambda: ST('B8'))
    A('s_waitcnt lgkmcnt(0)')
    lds_inc(A, vSyM, DONE(7), vOneM)
    ST('g1')
    if cfg.get('mprio', 2): A(f's_setprio {cfg.get("mprio", 2)}')
    sHb, sHs = sA, sC
    A(f"""s_lshl_b32 s{sT0}, s{sRB}, 3
    s_lshl_b32 s{sT1}, s{mw}, 1
    s_add_u32 s{sT0}, s{sT0}, s{sT1}
    s_mul_i32 s{sT0}, s{sT0}, 56
    s_lshr_b32 s{sT1}, s{sCB}, 1
    s_mul_i32 s{sT1}, s{sT1}, 7
    s_add_u32 s{sT0}, s{sT0}, s{sT1}
    s_lshl_b32 s{sT0}, s{sT0}, 10
    s_lshl_b32 s{sT1}, s{sOdd}, 12
    s_add_u32 s{sHb}, s{sT0}, s{sT1}
    s_add_u32 s{sHb+1}, s{sHb}, {56*1024}
    s_lshl_b32 s{sT1}, s{sOdd}, 9
    s_add_u32 s{sHs}, s{sT0}, s{sT1}
    s_add_u32 s{sHs}, s{sHs}, 3072
    v_and_b32 v{t0}, 15, v1
    v_lshlrev_b32 v{t0}, 4, v{t0}
    v_lshrrev_b32 v{t2}, 5, v1
    v_lshl_add_u32 v{t0}, v{t2}, 8, v{t0}
    v_bfe_u32 v{t2}, v1, 4, 1
    v_lshl_add_u32 v{t1}, v{t2}, 9, v{t0}
    v_mul_u32_u24 v{t2}, {56*1024}, v{t2}
    v_add_u32 v{t2}, v{t2}, v{t0}
    s_mov_b32 s{sM0}, {NLOG2E}
    s_mov_b32 s{sM0+1}, {NLOG2E}
    v_mov_b32 v2, {NLOG2E}
    v_mov_b32 v3, {NLOG2E}
    s_waitcnt lgkmcnt(0)""")
    Zs = [56, 72]; Es = [64, 80]; O = [148, 152]
    groups = [[(2 * g, q), (2 * g + 1, q)] for q in range(2) for g in range(3)] + [[(6, 0), (6, 1)]]
    def part1(gi):
        Z = Zs[gi & 1]; E = Es[gi & 1]; L = []
        prs = [(tau, q, p) for tau, q in groups[gi] for p in range(2)]
        for n, (tau, q, p) in enumerate(prs):
            c = cs + 4 * tau + 2 * p
            L.append(f'v_pk_mul_f32 {v(Z+2*n,2)}, {v(c,2)}, {v(ab+2*q,2)} op_sel:[0,1] op_sel_hi:[1,1]')
        for n, (tau, q, p) in enumerate(prs):
            a = ACC + 8 * tau + 4 * q + 2 * p
            L.append(f'v_pk_fma_f32 {v(Z+2*n,2)}, {v(a,2)}, {v(ab+2*q,2)}, {v(Z+2*n,2)} op_sel:[0,0,0] op_sel_hi:[1,0,1]')
        for n in range(8): L.append(f'v_exp_f32 v{E+n}, v{Z+n}')
        for n in range(4): L.append(f'v_pk_fma_f32 {v(E+2*n,2)}, {v(E+2*n,2)}, s[{sM0}:{sM0+1}], v[2:3]')
        for n in range(8): L.append(f'v_rcp_f32 v{E+n}, v{E+n}')
        for n in range(4): L.append(f'v_pk_mul_f32 {v(Z+2*n,2)}, {v(Z+2*n,2)}, {v(E+2*n,2)}')
        o = O[gi & 1]
        for n in range(4): L.append(f'v_cvt_pk_bf16_f32 v{o+n}, v{Z+2*n}, v{Z+2*n+1}')
        T = [f'v_permlane16_swap_b32 v{o}, v{o+2}', f'v_permlane16_swap_b32 v{o+1}, v{o+3}']
        if gi < 6: T.append(f'buffer_store_dwordx4 {v(o,4)}, v{t1}, s[{sWS}:{sWS+3}], s{sHb+gi//3} offen offset:{1024*(gi%3)}{SC}')
        else: T.append(f'buffer_store_dwordx4 {v(o,4)}, v{t2}, s[{sWS}:{sWS+3}], s{sHs} offen{SC}')
        return L, T
    pend = []
    for gi in range(7):
        L, T = part1(gi)
        A('\n'.join(L[:2] + pend + L[2:])); pend = T
    A('\n'.join(pend))
    lds_inc(A, vSyM, SY_ST, vOneM)
    ST('epi')
    cw = mw
    sCh, sHF, sUb, sKb = sA, sB, sC, sE
    vK, vU, vSy, vOne, vL16 = 4, 5, 6, 7, 13
    A(f"""s_lshr_b32 s{sCh}, s{cw}, 1
    s_and_b32 s{sHF}, s{cw}, 1
    s_mul_i32 s{sUb}, s{sCh}, {UP}
    s_add_u32 s{sUb}, s{sUb}, {LU}
    s_mul_i32 s{sKb}, s{sCh}, {4*KCP}
    s_add_u32 s{sKb}, s{sKb}, {LKC}
    v_lshlrev_b32 v{vL16}, 4, v1
    v_mov_b32 v{vSy}, {LSY}
    v_mov_b32 v{vOne}, 1
    s_lshl_b32 s{sT0}, s{sCh}, 2
    v_add_u32 v{t0}, s{sT0}, v{vSy}
    v_and_b32 v{t1}, 3, v1
    v_sub_u32 v{t1}, 3, v{t1}
    v_mul_u32_u24 v{t1}, {KCP}, v{t1}
    v_bfe_u32 v{t2}, v1, 2, 2
    v_lshrrev_b32 v{t3}, 4, v1
    v_lshlrev_b32 v{vK}, 1, v{t3}
    v_sub_u32 v{vK}, v{vK}, v{t2}
    v_lshl_add_u32 v{vK}, v{vK}, 3, v{t1}
    s_lshl_b32 s{sT0}, s{sHF}, 8
    s_sub_u32 s{sT1}, s{sKb}, s{sT0}
    s_add_u32 s{sT1}, s{sT1}, {8*507-192-3584}
    v_add_u32 v{vK}, s{sT1}, v{vK}
    v_and_b32 v{t1}, 15, v1
    v_lshlrev_b32 v{t1}, 5, v{t1}
    v_lshl_add_u32 v{vU}, v{t3}, 4, v{t1}
    s_sub_u32 s{sT1}, s{sUb}, s{sT0}
    s_add_u32 s{sT1}, s{sT1}, {448-192}
    v_add_u32 v{vU}, s{sT1}, v{vU}""")
    def flag2():
        A(f"""s_lshl_b32 s{sT1}, s{sRB}, 8
        s_lshr_b32 s{sT0}, s{mw}, 1
        s_lshl_b32 s{sT0}, s{sT0}, 7
        s_add_u32 s{sT1}, s{sT1}, s{sT0}
        s_lshl_b32 s{sT0}, s{sCB}, 3
        s_add_u32 s{sT1}, s{sT1}, s{sT0}
        s_and_b32 s{sT0}, s{mw}, 1
        s_lshl_b32 s{sT0}, s{sT0}, 2
        s_add_u32 s{sT1}, s{sT1}, s{sT0}
        s_add_u32 s{sT1}, s{sT1}, {WS_F2}
        v_mov_b32 v{t1}, 0
        v_mov_b32 v{t2}, s{sNon}
        s_waitcnt vmcnt(0)
        s_setprio 3
        s_mov_b64 exec, 1
        buffer_store_dword v{t2}, v{t1}, s[{sWS}:{sWS+3}], s{sT1} offen{SC}
        s_mov_b64 exec, -1""")
    sF2 = sOdd
    A(f'ds_read_b32 v{t3}, v{vSy} offset:{SY_U}\ns_mov_b32 s{sF2}, 0\ns_waitcnt lgkmcnt(0)\nv_readfirstlane_b32 s{sT0}, v{t3}\ns_cmp_ge_u32 s{sT0}, 4')
    A.fwd_branch('s_cbranch_scc1 L_UR')
    flag2()
    A(f's_mov_b32 s{sF2}, 1')
    lds_wait(A, 'L_WU', vSy, SY_U, 4, t3, sT0, sleep=1)
    A.label('L_UR')
    A(f's_or_b32 s{sT0}, s2, s{mw}\ns_cmp_lg_u32 s{sT0}, 0')
    A.fwd_branch('s_cbranch_scc1 L_NOEP')
    A(f's_mov_b32 s{sT0}, {WS_EP}\nv_mov_b32 v{t1}, 0\nv_mov_b32 v{t2}, s{sNon}\ns_mov_b64 exec, 1\nbuffer_store_dword v{t2}, v{t1}, s[{sWS}:{sWS+3}], s{sT0} offen{SC}\ns_mov_b64 exec, -1')
    A.label('L_NOEP')
    if cfg.get('cvdelay'):
        for _ in range(cfg['cvdelay']): A('s_sleep 100')
    A(f's_setprio {cfg.get("cvprio", 0)}')
    ST('cv0')
    ACC = 20
    FK = [52, 116]; FU = [84, 148]
    def creads(rl):
        b = rl & 1; L = []
        for m in range(8):
            L.append(f'ds_read_b128 {v(FU[b]+4*m,4)}, v{vU} offset:{512*m+64*(3-rl)}')
            for hh in range(2):
                L.append(f'ds_read_b64 {v(FK[b]+4*m+2*hh,2)}, v{vK} offset:{512*(7-m)+64*(3-rl)+8*hh}')
        return L
    A('\n'.join(creads(0)))
    for rl in range(4):
        b = rl & 1
        nxt = creads(rl + 1) if rl < 3 else []
        if rl == cfg.get('f2rl', 1):
            A(f's_cmp_eq_u32 s{sF2}, 1')
            A.fwd_branch('s_cbranch_scc1 L_F2D')
            flag2()
            A.label('L_F2D')
            A('s_setprio 3')
            ST('f2')
            load_x_final(A)
            A(f's_setprio {cfg.get("cvprio", 0)}')
        A('s_waitcnt lgkmcnt(0)')
        if rl == 3: lds_inc(A, vSy, SY_CV, vOne)
        k = 0
        for m in range(8):
            for jj in range(8 - m):
                a = ACC + 4 * (m + jj)
                A(f'v_mfma_f32_16x16x32_f16 {v(a,4)}, {v(FK[b]+4*m,4)}, {v(FU[b]+4*jj,4)}, {"0" if rl == 0 and m == 0 else v(a,4)}')
                if k < len(nxt): A(nxt[k])
                k += 1
    ST('cv1')
    A('s_setprio 2')
    lds_wait(A, 'L_WCV', vSy, SY_CV, 4, t3, sT0)
    A(f"""s_lshl_b32 s{sT0}, s{cw}, 13
    s_add_u32 s{sT0}, s{sT0}, {LEX}
    v_add_u32 v{t1}, s{sT0}, v{vL16}""")
    for i in range(8): A(f'ds_write_b128 v{t1}, {v(ACC+4*i,4)} offset:{1024*i}')
    UU = 116; YS = 124
    A(f"""s_lshl_b32 s{sT0}, s{cw}, 11
    s_add_u32 s{sT1}, s{sT0}, {LEX}
    v_add_u32 v{t0}, s{sT1}, v{vL16}
    v_and_b32 v{vK}, 15, v1
    v_lshrrev_b32 v{vU}, 4, v1
    v_lshlrev_b32 v{vU}, 2, v{vU}
    v_lshl_add_u32 v{vK}, v{vK}, 4, v{vU}
    s_lshl_b32 s{sT1}, s{cw}, 10
    s_add_u32 s{sT1}, s{sT1}, {LU+480}
    v_lshl_add_u32 v{vU}, v{vK}, 1, s{sT1}
    v_lshlrev_b32 v{vK}, 2, v{vK}
    s_lshl_b32 s{sT2}, s{sDP}, 14
    s_add_u32 s{sT2}, s{sT2}, s{sT0}
    s_add_u32 s{sT2}, s{sT2}, s{sT0}
    s_add_u32 s{sT2}, s{sT2}, {WS_SP}
    s_and_b32 s{sE}, s{sD}, 0xffff0000
    s_lshl_b32 s{sD}, s{sD}, 16
    s_waitcnt lgkmcnt(0)""")
    for ti in range(2):
        for c in range(2): A(f'ds_read_b64 {v(UU+4*ti+2*c,2)}, v{vU} offset:{512*ti+UP*c}')
    lds_inc(A, vSy, SY_EX, vOne)
    A(f'ds_read_b64 {v(YS,2)}, v{vSy} offset:40')
    lds_wait(A, 'L_WEX', vSy, SY_EX, 4, t3, sT0)
    PB = 52
    for ti in range(2):
        for w in range(4): A(f'ds_read_b128 {v(PB+16*ti+4*w,4)}, v{t0} offset:{8192*w+1024*ti}')
    for ti in range(2):
        A(f's_waitcnt lgkmcnt({4-4*ti})')
        for c in range(2):
            p0, p1 = PB + 16 * ti + 8 * c, PB + 16 * ti + 8 * c + 4
            for e in range(4): A(f'v_add_f32 v{p0+e}, v{p0+e}, v{p1+e}')
            for e in range(4): A(f'v_mul_f32 v{p0+e}, v{YS+c}, v{p0+e}')
            for e in range(4): A(f'v_fma_mix_f32 v{p0+e}, v{UU+4*ti+2*c+(e>>1)}, s{sD+c}, v{p0+e} op_sel:[{e&1},0,0] op_sel_hi:[1,0,0]')
        o = 128 + 8 * ti
        for e in range(4): A(f'v_cvt_pk_bf16_f32 v{o+2*e}, v{PB+16*ti+e}, v{PB+16*ti+8+e}\nv_mov_b32 v{o+2*e+1}, s{sNon}')
        for hh in range(2): A(f'buffer_store_dwordx4 {v(o+4*hh,4)}, v{vK}, s[{sWS}:{sWS+3}], s{sT2} offen offset:{2048*ti+1024*hh}{SC}')
    ST('f3')
    A(f"""v_lshrrev_b32 v{vK}, 5, v1
    v_bfe_u32 v{vU}, v1, 4, 1
    v_and_b32 v{t3}, 15, v1
    v_lshlrev_b32 v{t2}, 4, v{t3}
    v_lshl_add_u32 v{t2}, v{vU}, 10, v{t2}
    v_lshl_add_u32 v{t2}, v{vK}, 14, v{t2}
    s_lshl_b32 s{sA}, s{sCB2}, 19
    s_lshl_b32 s{sT2}, s{cw}, 17
    s_add_u32 s{sA}, s{sA}, s{sT2}
    s_lshr_b32 s{sT2}, s{sRB2}, 2
    s_lshl_b32 s{sT2}, s{sT2}, 11
    s_add_u32 s{sA}, s{sA}, s{sT2}
    s_and_b32 s{sT2}, s{sRB2}, 3
    s_lshl_b32 s{sT2}, s{sT2}, 8
    s_add_u32 s{sA}, s{sA}, s{sT2}
    s_add_u32 s{sA}, s{sA}, {WS_SP}
    s_add_u32 s{sB}, s{sA}, {32768}
    s_add_u32 s{sC}, s{sA}, {65536}
    s_add_u32 s{sD}, s{sA}, {98304}
    s_lshl_b32 s{sT2}, s{cw}, 3
    v_add_u32 v{vK}, s{sT2}, v{vK}
    v_and_b32 v{t1}, 7, v1
    v_lshlrev_b32 v{t1}, 2, v{t1}
    v_xor_b32 v{vK}, v{vK}, v{t1}
    v_lshlrev_b32 v{vK}, 2, v{vK}
    v_lshl_add_u32 v{vK}, v{t3}, 9, v{vK}
    v_lshl_add_u32 v{vK}, v{vU}, 8, v{vK}
    v_add_u32 v{vK}, {LS}, v{vK}
    v_xor_b32 v{vU}, 16, v{vK}""")
    lds_wait(A, 'L_WT', vSy, SY_TRIG, 1, t3, sT0, sleep=4)
    SG = 44
    gpoll(A, 'L_P3', '\n'.join(f'buffer_load_dwordx4 {v(SG+4*it,4)}, v{t2}, s[{sWS}:{sWS+3}], s{sA+it} offen{SC}' for it in range(4)),
          [SG + 2 * k + 1 for k in range(8)], sleep=cfg.get('p3sleep', 12))
    ST('p3')
    for it in range(4):
        for e in range(2): A(f'ds_write_b32 v{vU if it >= 2 else vK}, v{SG+4*it+2*e} offset:{128*e+8*(it&1)}')
    A.fwd_branch('s_branch L_FINAL')

def gen_H(A, cfg, ST):
    ST.role = 'H'
    A.label('L_H')
    hw = sWave
    vXo_, vWo = 16, 20
    vWr = 24
    vOne = 32
    t0, t1, t2, t3 = 36, 37, 38, 39
    vH, vW, vR = 48, 52, 56
    vRow = 64
    vTmp = 72
    vCS, vFw = 192, 220
    sXb, sWb, sLb, sCk = sA, sB, sC, sD
    sH, sWo, sK, sKw = 30, 31, 38, 39
    vq = Q(A, 'vmcnt', 63)
    A0 = A; A = BG(A0, vq, cfg.get('every', 6))
    b0, b1, b2 = 28, 29, 17
    def vwait(tag): A.flush(tag); vq.wait(tag)
    D = 232; kP = 64; PC, PR, YS, WA = 128, 160, 114, 64
    A(f"""s_lshr_b32 s{sT0}, s{hw}, 1
    s_lshl_b32 s{sT2}, s{sDP}, 1
    s_add_u32 s{sT2}, s{sT2}, s{sT0}
    s_and_b32 s{sT1}, s{hw}, 1
    s_lshl_b32 s{sT1}, s{sT1}, 7
    s_lshl_b32 s{sT0}, s{sT2}, 8
    s_add_u32 s{sT0}, s{sT0}, s{sT1}
    v_lshl_add_u32 v100, v1, 1, s{sT0}
    v_xor_b32 v101, 128, v100
    s_lshl_b32 s{sT0}, s{sT2}, 1
    v_mov_b32 v102, s{sT0}
    """)
    A(f"""v_lshrrev_b32 v{t0}, 3, v1
    v_lshrrev_b32 v{t1}, 4, v1
    v_and_b32 v{t2}, 7, v1
    v_xor_b32 v{t2}, v{t2}, v{t1}
    v_lshlrev_b32 v{t2}, 4, v{t2}
    v_lshl_add_u32 v{vXo_}, v{t0}, 10, v{t2}
    v_xor_b32 v{t3}, 64, v{vXo_}
    v_add_u32 v{vXo_+1}, 7168, v{t3}
    v_add_u32 v{vXo_+2}, 14336, v{vXo_}
    v_add_u32 v{vXo_+3}, 21504, v{t3}""")
    for half in range(2):
        A(f"""v_bfe_u32 v{t0}, v1, 1, 3
        v_xor_b32 v{t0}, v{t0}, v{t1}
        v_xor_b32 v{t0}, {4*half}, v{t0}
        v_and_b32 v{t2}, 1, v1
        v_lshl_add_u32 v{t2}, v{t0}, 1, v{t2}
        s_lshl_b32 s{sT0}, s{sOdd}, 1
        v_add_u32 v{t2}, s{sT0}, v{t2}
        v_subrev_u32 v{t3}, 14, v{t2}
        v_cmp_gt_u32 vcc, 14, v{t2}
        v_cndmask_b32 v{t2}, v{t3}, v{t2}, vcc
        v_lshlrev_b32 v{t2}, 4, v{t2}
        v_mul_u32_u24 v{t3}, 3584, v{t1}
        v_add_u32 v{t2}, v{t2}, v{t3}
        v_mov_b32 v{t3}, 0x7f000000
        v_cmp_eq_u32 vcc, 7, v{t0}
        v_cndmask_b32 v{t2}, v{t2}, v{t3}, vcc
        v_add_u32 v{vWo+2*half}, {(2*half)*13312}, v{t2}
        v_add_u32 v{vWo+2*half+1}, {(2*half+1)*13312}, v{t2}""")
    A(f"""s_lshl_b32 s{sXb}, s{sRB}, 17
    s_lshl_b32 s{sT0}, s{hw}, 15
    s_add_u32 s{sXb}, s{sXb}, s{sT0}
    s_mul_i32 s{sWb}, s{hw}, {16*3584}
    s_mul_i32 s{sT0}, s{sCB}, 224
    s_add_u32 s{sWb}, s{sWb}, s{sT0}
    s_lshl_b32 s{sLb}, s{hw}, 12
    v_lshlrev_b32 v13, 4, v1
    """)
    A(f"""s_waitcnt lgkmcnt(0)
    global_load_ushort v{kP+6}, v102, s[{pLDT}:{pLDT+1}]
    global_load_ushort v{kP+0}, v100, s[{pLAR}:{pLAR+1}]
    global_load_ushort v{kP+1}, v100, s[{pAIM}:{pAIM+1}]
    global_load_ushort v{kP+2}, v100, s[{pCRE}:{pCRE+1}]
    global_load_ushort v{kP+3}, v100, s[{pCIM}:{pCIM+1}]
    global_load_ushort v{kP+4}, v101, s[{pCRE}:{pCRE+1}]
    global_load_ushort v{kP+5}, v101, s[{pCIM}:{pCIM+1}]""", 'par')
    srd(A, sX, pX, 2048 * 1024); srd(A, sW1, pW1, 512 * 3584)
    A0('s_barrier')
    ST('ld')
    def dma(st, now=False):
        slot = st & 3
        for i in range(4):
            pre = ''
            if i == 0:
                pre = f's_add_u32 s{b2}, s{sCh0}, {st}\ns_and_b32 s{b2}, s{b2}, 7\ns_lshl_b32 s{b0}, s{b2}, 7\ns_add_u32 s{b0}, s{b0}, s{sXb}\ns_add_u32 m0, s{sLb}, {Aslot(slot)}\ns_mul_i32 s{b1}, s{b2}, {64*3584}\ns_add_u32 s{b1}, s{b1}, s{sWb}\n'
            A.push(pre + f'buffer_load_dwordx4 v{vXo_+i}, s[{sX}:{sX+3}], s{b0} offen offset:{1024*i} lds', ('d', st))
        for i in range(4):
            pre = f's_add_u32 m0, s{sLb}, {Bslot(slot)}\n' if i == 0 else ''
            A.push(pre + f'buffer_load_dwordx4 v{vWo+i}, s[{sW1}:{sW1+3}], s{b1} offen offset:{1024*i} lds', ('d', st))
        if now: A.flush()
    dma(0, now=True)
    A(f"""v_lshrrev_b32 v{t0}, 2, v1
    v_mul_u32_u24 v{t0}, 3584, v{t0}
    v_and_b32 v{t1}, 3, v1
    v_mul_u32_u24 v{t1}, 72, v{t1}
    v_add_u32 v{t0}, v{t0}, v{t1}
    s_add_u32 s{sT0}, s{sCh0}, 1
    s_and_b32 s{sT0}, s{sT0}, 7
    s_mul_i32 s{sT0}, s{sT0}, {64*3584}
    s_add_u32 s{sT0}, s{sT0}, s{sWb}
    buffer_load_dword v47, v{t0}, s[{sW1}:{sW1+3}], s{sT0} offen""", 't1')
    A0.fence(); A0.raw('; @@SPLIT')
    srd(A, sWS, pWS, WS_SIZE); srd(A, sW2, pW2, 1792 * 1024); srd(A, sOUT, pOUT, 2048 * 1024)
    A(f"""v_bfe_u32 v{t0}, v1, 4, 1
    v_bfe_u32 v{t1}, v1, 2, 2
    v_lshl_or_b32 v{t2}, v{t0}, 2, v{t1}
    v_lshl_add_u32 v{t0}, v{t0}, 3, v{t1}
    v_lshrrev_b32 v{t1}, 5, v1
    v_lshl_add_u32 v{t0}, v{t1}, 2, v{t0}
    v_and_b32 v{t1}, 3, v1
    v_lshlrev_b32 v{t1}, 3, v{t1}
    v_lshl_add_u32 v{t3}, v{t0}, 8, v{t1}
    s_add_u32 s{sT0}, s{sLb}, {Bslot(0)}
    v_add_u32 v{t3}, s{sT0}, v{t3}""")
    for P in range(7): A(f'v_xor_b32 v{t0}, {P}, v{t2}\nv_lshl_add_u32 v{vWr+P}, v{t0}, 5, v{t3}')
    for i in range(4): A(f'v_mov_b32 v{vOne+i}, 0x3f803f80')
    A(f"""v_lshlrev_b32 v{vH}, 4, v1
    v_add_u32 v{vH+1}, {57344}, v{vH}
    v_add_u32 v{vH+2}, {2*57344}, v{vH}
    v_add_u32 v{vH+3}, {3*57344}, v{vH}
    s_mul_i32 s{sH}, s{sRB2}, {4*57344}
    s_mul_i32 s{sT0}, s{hw}, {14*1024}
    s_add_u32 s{sH}, s{sH}, s{sT0}
    v_lshrrev_b32 v{t0}, 3, v1
    v_bfe_u32 v{t1}, v1, 4, 1
    v_lshlrev_b32 v{t1}, 1, v{t1}
    v_and_b32 v{t2}, 7, v1
    v_xor_b32 v{t2}, v{t2}, v{t1}
    v_lshlrev_b32 v{t2}, 4, v{t2}
    v_lshl_add_u32 v{vW}, v{t0}, 10, v{t2}
    v_xor_b32 v{t3}, 64, v{vW}
    v_add_u32 v{vW+1}, 7168, v{t3}
    v_add_u32 v{vW+2}, 14336, v{vW}
    v_add_u32 v{vW+3}, 21504, v{t3}
    s_mul_i32 s{sWo}, s{hw}, {14*32768}
    s_lshl_b32 s{sT0}, s{sCB2}, 7
    s_add_u32 s{sWo}, s{sWo}, s{sT0}
    s_mov_b32 s{sKw}, s{sK0}
    s_mov_b32 s{sK}, s{sK0}
    v_lshrrev_b32 v{t0}, 4, v1
    v_bfe_u32 v{t1}, v1, 2, 2
    v_lshl_add_u32 v{t0}, v{t0}, 3, v{t1}
    v_bfe_u32 v{t1}, v1, 3, 2
    v_and_b32 v{t2}, 3, v1
    v_lshlrev_b32 v{t2}, 3, v{t2}
    v_lshl_add_u32 v{t2}, v{t0}, 7, v{t2}
    v_add_u32 v{t2}, s{sLb}, v{t2}""")
    for T in range(4): A(f'v_xor_b32 v{t3}, {T}, v{t1}\nv_lshl_add_u32 v{vR+T}, v{t3}, 5, v{t2}')
    for T in range(4): A(f'v_add_u32 v{vR+4+T}, 65536, v{vR+T}')
    ST('d01')
    vSy, vI1 = 6, 7
    A(f'v_mov_b32 v{vSy}, {LSY}\nv_mov_b32 v{vI1}, 1')
    def colsum(st):
        slot = st & 3
        vwait(('d', st))
        for P in range(7): A(f'ds_read_b64_tr_b16 {v(vFw+4*P+2*(st&1),2)}, v{vWr+P} offset:{slot*16384}')
        A('s_waitcnt lgkmcnt(0)')
        if st == 7:
            for P in range(4, 7): A(f'v_mov_b32 v{vFw+4*P}, 0\nv_mov_b32 v{vFw+4*P+1}, 0')
        for P in range(7):
            if (P < 4 and st & 1) or (P >= 4 and (not st & 1 or st == 7)):
                A(f'v_mfma_f32_16x16x32_bf16 {v(vCS+4*P,4)}, {v(vOne,4)}, {v(vFw+4*P,4)}, {"0" if st <= 1 else v(vCS+4*P,4)}')
    for P in range(4, 7): A(f'v_mov_b32 v{vFw+4*P+2}, 0\nv_mov_b32 v{vFw+4*P+3}, 0')
    ST('pre')
    NREG = cfg.get('nreg', 7)
    WR = 192 - 16 * NREG
    def ldW(i):
        for e in range(4):
            pre = f's_add_u32 m0, s{sLb}, {RING[i % 6]}\ns_lshl_b32 s{b0}, s{sKw}, 15\ns_add_u32 s{b0}, s{sWo}, s{b0}\ns_add_u32 s{sKw}, s{sKw}, 1\ns_cmp_eq_u32 s{sKw}, 14\ns_cselect_b32 s{sKw}, 0, s{sKw}\n' if e == 0 else ''
            A.push(pre + f'buffer_load_dwordx4 v{vW+e}, s[{sW2}:{sW2+3}], s{b0} offen offset:{1024*e} lds', ('w', i))
    def rdW(i, dst):
        base = RING[i % 6]; hi = 4 if base >= 65536 else 0; base &= 65535
        for T in range(4):
            for hh in range(2):
                A(f'ds_read_b64_tr_b16 {v(dst+4*T+2*hh,2)}, v{vR+hi+T} offset:{base+hh*512}')
    nw = [0]
    def ldWn(n):
        for _ in range(n): ldW(nw[0]); nw[0] += 1
    def cert(st):
        vwait(('d', st)); lds_inc(A0, vSy, CERT(st), vI1); ST(f'c{st}')
    def wdone(st): lds_wait(A0, f'L_DN{st}', vSy, DONE(st), 4, t3, sT0, sleep=1); ST(f'w{st}')
    def pop3():
        for _ in range(3):
            if A.q: A.pop()
    def bar(st):
        if st < 8: vwait(('d', st))
        ST(f'b{st}'); A0('s_barrier'); ST(f'B{st}')
    A(f"""s_lshl_b32 s{sT0}, s{sK0}, 5
    s_add_u32 s{sT0}, s{sT0}, 64
    s_mul_i32 s{sT1}, s{hw}, {448*1024}
    s_lshl_b32 s{sT2}, s{sCB2}, 7
    s_add_u32 s{sT1}, s{sT1}, s{sT2}
    v_min_u32 v{t0}, 47, v1
    v_add_u32 v{t0}, s{sT0}, v{t0}
    v_subrev_u32 v{t1}, 448, v{t0}
    v_cmp_gt_u32 vcc, 448, v{t0}
    v_cndmask_b32 v{t0}, v{t1}, v{t0}, vcc
    v_lshl_add_u32 v46, v{t0}, 10, s{sT1}""")
    sF1 = 16
    A(f"""v_and_b32 v{t0}, 31, v1
    v_lshlrev_b32 v2, 3, v{t0}
    s_lshl_b32 s{sE}, s{sRB}, 10
    s_lshl_b32 s{sT1}, s{hw}, 8
    s_add_u32 s{sE}, s{sE}, s{sT1}
    s_add_u32 s{sE}, s{sE}, {WS_GR}
    s_lshr_b32 s{sF1}, s{sDP}, 6
    s_lshl_b32 s{sF1}, s{sF1}, 10
    s_add_u32 s{sF1}, s{sF1}, s{sT1}
    s_add_u32 s{sF1}, s{sF1}, {WS_F1}
    v_lshlrev_b32 v41, 2, v1""")
    A.flush()
    vwait('par')
    ST('par')
    KT = kgen_tables(kP, PC, PR, YS)
    nk = cfg.get('d1at', 170)
    A('\n'.join(KT[:nk]))
    A.every = 12; dma(1)
    A('\n'.join(KT[nk:]))
    A.flush(); A.every = cfg.get('every', 6)
    ST('kt')
    nd = [2]
    for _ in range(cfg.get('pre', 1)): dma(nd[0], now=True); nd[0] += 1
    AHEAD = cfg.get('ahead', [1, 1, 1, 1, 1])
    O = 164; R = 116; RA = 88
    def pk(d, a, b): return f'v_cvt_pk_f16_f32 v{d}, v{a}, v{b}'
    sCh, sHF, sKb = 18, 19, 20
    def kaddr():
        A(f"""s_lshr_b32 s{sCh}, s{hw}, 1
        s_and_b32 s{sHF}, s{hw}, 1
        s_lshl_b32 s{sT0}, s{sCh}, 16
        s_lshl_b32 s{sT1}, s{sHF}, 13
        s_add_u32 s{sT2}, s{sT0}, s{sT1}
        s_add_u32 s{sT2}, s{sT2}, {Aslot(2)}
        v_lshl_add_u32 v{WA}, v1, 2, s{sT2}""")
        L = []
        L += f"""v_and_b32 v{t0}, 31, v1
        v_lshrrev_b32 v{t1}, 5, v1
        v_and_b32 v{t2}, 15, v1
        v_xor_b32 v{t1}, v{t1}, v{t2}
        v_lshlrev_b32 v{t1}, 4, v{t1}
        v_lshl_add_u32 v{t1}, v{t0}, 8, v{t1}
        v_add_u32 v{RA}, s{sT2}, v{t1}
        v_add_u32 v96, s{sT2}, v13
        v_xor_b32 v97, 0x2000, v96""".split('\n')
        L += [f'v_xor_b32 v{RA+sg}, {sg*32}, v{RA}' for sg in range(1, 8)]
        L += f"""s_mul_i32 s{sKb}, s{sCh}, {4*KCP}
        s_add_u32 s{sKb}, s{sKb}, {LKC}
        s_lshl_b32 s{sT0}, s{sCh}, 2
        v_add_u32 v{R}, s{sT0}, v{vSy}
        v_mov_b32 v{R+4}, 0
        v_mov_b32 v{R+5}, 0
        v_mov_b32 v{R+6}, 0
        v_mov_b32 v{R+7}, 0
        v_lshrrev_b32 v{R+1}, 2, v1
        v_mul_u32_u24 v{R+1}, {KCP}, v{R+1}
        v_and_b32 v{t2}, 3, v1
        v_lshl_add_u32 v{R+1}, v{t2}, 4, v{R+1}
        v_add_u32 v{R+1}, s{sKb}, v{R+1}
        s_mul_i32 s{sT0}, s{sCh}, {UP}
        s_add_u32 s{sT0}, s{sT0}, {LU}
        v_add_u32 v{R+2}, s{sT0}, v13
        s_add_u32 s{sT0}, s{sKb}, 1008
        v_sub_u32 v{R+3}, s{sT0}, v13
        v_and_b32 v{t3}, 1, v1
        v_cmp_eq_u32 s[24:25], 1, v{t3}""".split('\n')
        W = []
        for i in range(16):
            if i: W.append(f'v_xor_b32 v{WA+i}, {i*16}, v{WA}')
            if i < cfg.get('cearly', 0): W.append(wr1(PC, i))
            W += L[:2]; del L[:2]
            if cfg.get('cpace', 0): W.append(f's_sleep {cfg.get("cpace", 1)}')
        A('\n'.join(W + L))
    def wr1(P, i): return f'ds_write2st64_b32 v{WA+i}, v{P+i}, v{P+i+16} offset0:{i} offset1:{i+16}'
    def trd(P):
        for sg in range(8): A(f'ds_read_b128 {v(P+4*sg,4)}, v{RA+sg}')
    def kphase():
        for i in range(cfg.get('cearly', 0), 16): A(wr1(PC, i))
        trd(PC)
        for i in range(16): A(wr1(PR, i))
        trd(PR)
        for sg in range(8):
            A(f's_waitcnt lgkmcnt({7-sg})')
            A(f'v_mfma_f32_32x32x16_f16 {v(D,16)}, {v(PR+4*sg,4)}, {v(PC+4*sg,4)}, {"0" if sg == 0 else v(D,16)}')
        A(f"""ds_write_b32 v{R}, v{YS} offset:40
        s_mov_b64 exec, 0xffff
        ds_write_b128 v{R+1}, {v(R+4,4)} offset:4096
        s_mov_b64 exec, 0x3fffffff
        ds_write_b128 v{R+2}, {v(R+4,4)}
        s_mov_b64 exec, -1""")
        for i in range(4): A(f'ds_write_b128 v96, {v(D+4*i,4)} offset:{1024*i}')
        ST('k1')
        lds_inc(A0, R, SY_KG, vI1)
        UWRITE()
        lds_wait(A0, 'L_WKG', R, SY_KG, 2, t3, sT0)
        for i in range(4): A(f'ds_read_b128 {v(PC+4*i,4)}, v97 offset:{1024*i}')
        A0(f's_cmp_eq_u32 s{sHF}, 1\ns_waitcnt lgkmcnt(0)')
        A.fwd_branch('s_cbranch_scc1 L_KH1')
        def chunk(c, E):
            if c == 0: return [pk(E, D+7, D+6), pk(E+1, D+5, D+4), pk(E+2, D+3, D+2), pk(E+3, D+1, D+0)]
            if c == 1: return [pk(E, D+10, D+10), pk(E+1, D+9, D+9), pk(E+2, D+9, D+8), pk(E+3, D+8, D+8)]
            lo, hi = D + 11 + 2 * (c - 2), D + 12 + 2 * (c - 2)
            return [f'v_cndmask_b32 v{t3}, v{lo}, v{hi}, s[24:25]', pk(E, hi, hi), pk(E+1, hi, t3), pk(E+2, lo, lo), pk(E+3, lo, lo)]
        for hf in range(2):
            if hf: A.label('L_KH1')
            need = range(0, 11) if hf == 0 else range(9, 15)
            for i in need: A0(f'v_add_f32 v{D+i}, v{D+i}, v{PC+i}')
            Es = {c: O + 24 * (c & 1) for c in range(4)}
            PV = 160
            if hf == 0: A0(f'v_mov_b32 v{PV}, 0\nv_mov_b32 v{PV+1}, 0')
            else: A0('\n'.join(chunk(1, PV)[:2]))
            for c in (2 * hf, 2 * hf + 1): A0('\n'.join(chunk(c, Es[c])))
            for c in (2 * hf, 2 * hf + 1):
                E = Es[c]; prev = PV if c == 2 * hf else Es[c - 1]
                A0(f'ds_write_b128 v{R+3}, {v(E,4)} offset:{1024*(3-c)}')
                for j in range(2): A0(f'v_mov_b32_dpp v{E+4+j}, v{prev+j} wave_ror:1 row_mask:0xf bank_mask:0xf')
                for j in range(2): A0(f'v_mov_b32_dpp v{E+4+j}, v{E+j} wave_shr:1 row_mask:0xf bank_mask:0xf')
                c1, c2, c3 = E + 8, E + 12, E + 16
                for i in range(4): A0(f'v_alignbit_b32 v{c1+i}, v{E+i+1}, v{E+i}, 16')
                A0(f'ds_write_b128 v{R+3}, {v(c1,4)} offset:{1024*(3-c)+KCP}')
                for i in range(4): A0(f'v_mov_b32 v{c2+i}, v{E+i+1}')
                A0(f'ds_write_b128 v{R+3}, {v(c2,4)} offset:{1024*(3-c)+2*KCP}')
                for i in range(4): A0(f'v_alignbit_b32 v{c3+i}, v{E+i+2}, v{E+i+1}, 16')
                A0(f'ds_write_b128 v{R+3}, {v(c3,4)} offset:{1024*(3-c)+3*KCP}')
            if hf == 0: A.fwd_branch('s_branch L_KH2')
        A.label('L_KH2')
        lds_inc(A0, vSy, SY_U, vI1)
        ST('u')
    for k in range(6):
        bar(k)
        for _ in range(AHEAD[k] if k < len(AHEAD) else 1):
            if nd[0] < 8:
                assert nd[0] <= k + 3
                dma(nd[0]); nd[0] += 1
        if k == 5: ldWn(2)
        pop3()
        if k == 0: A(f'ds_read_b32 v15, v{vSy} offset:32')
        for c in {0: [0], 1: [1], 2: [2, 3], 3: [4], 4: [5], 5: [6, 7]}[k]: colsum(c)
        if k == 0: A(f'v_readfirstlane_b32 s{sNon}, v15')
        A.flush()
        if k == 4: A(f'buffer_load_dwordx2 v[4:5], v2, s[{sWS}:{sWS+3}], s{sE} offen{SC}', 'gl'); A(f'buffer_load_dword v40, v41, s[{sWS}:{sWS+3}], s{sF1} offen{SC}', 'f1')
    for P in range(7): A(f'v_mov_b32 v{vFw+P}, v{vCS+4*P}')
    A(f"""s_lshl_b32 s{sT0}, s{hw}, 9
    s_add_u32 s{sT0}, s{sT0}, {LCSP}
    v_lshl_add_u32 v{t1}, v1, 5, s{sT0}
    s_mov_b64 exec, 0xffff
    ds_write_b128 v{t1}, {v(vFw,4)}
    ds_write_b128 v{t1}, {v(vFw+4,4)} offset:16
    s_mov_b64 exec, -1
    s_waitcnt lgkmcnt(0)""")
    bar(6)
    A(f"""v_and_b32 v{t0}, 31, v1
    s_lshl_b32 s{sT0}, s{hw}, 5
    v_add_u32 v{t0}, s{sT0}, v{t0}
    v_lshlrev_b32 v{t1}, 2, v{t0}
    v_add_u32 v{t1}, {LCSP}, v{t1}""")
    for w in range(4): A(f'ds_read_b32 v{vCS+w}, v{t1} offset:{512*w}')
    A(f"""v_and_b32 v{t1}, 7, v{t0}
    v_lshrrev_b32 v{t0}, 3, v{t0}
    v_lshl_add_u32 v{t0}, v{t1}, 4, v{t0}
    v_lshlrev_b32 v{t0}, 2, v{t0}
    v_add_u32 v{t0}, {LCS}, v{t0}""")
    gpoll(A0, 'L_PG', f'buffer_load_dwordx2 v[4:5], v2, s[{sWS}:{sWS+3}], s{sE} offen{SC}', [5], first=lambda: vwait('gl'))
    A(f"""v_and_b32 v{t2}, 0xffff0000, v4
    v_lshlrev_b32 v{t3}, 16, v4
    v_rcp_f32 v{t2}, v{t2}
    s_lshl_b32 s{sT0}, s{hw}, 8
    s_add_u32 s{sT0}, s{sT0}, {LSTAT}
    v_add_u32 v{t1}, s{sT0}, v2
    v_mul_f32 v{t2}, {NLOG2E}, v{t2}
    v_mul_f32_e64 v{t3}, -v{t3}, v{t2}
    ds_write_b64 v{t1}, v[{t2}:{t3}]
    s_waitcnt lgkmcnt(1)
    v_add_f32 v{vCS}, v{vCS}, v{vCS+1}
    v_add_f32 v{vCS+2}, v{vCS+2}, v{vCS+3}
    v_add_f32 v{vCS}, v{vCS}, v{vCS+2}
    ds_write_b32 v{t0}, v{vCS}""")
    lds_inc(A0, vSy, CERT(8), vI1)
    ST('B8')
    UG = 16; sU0, sU1, sUok = 21, 22, 23
    A(f"""v_lshrrev_b32 v{t0}, 1, v1
    v_and_b32 v{t1}, 1, v1
    v_lshlrev_b32 v43, 4, v{t1}
    v_lshl_add_u32 v43, v{t0}, 13, v43
    s_lshl_b32 s{sU0}, s{sDP}, 5
    s_lshl_b32 s{sT1}, s{hw}, 19
    s_add_u32 s{sU0}, s{sU0}, s{sT1}
    s_add_u32 s{sU0}, s{sU0}, {WS_XN}
    s_add_u32 s{sU1}, s{sU0}, {32*8192}
    v_mul_u32_u24 v{t1}, {UP}, v{t1}
    v_lshl_add_u32 v44, v{t0}, 4, v{t1}
    s_lshl_b32 s{sT0}, s{hw}, 10
    s_add_u32 s{sT0}, s{sT0}, {LU+480}
    v_add_u32 v44, s{sT0}, v44""")
    UL = f'buffer_load_dwordx4 {v(UG,4)}, v43, s[{sWS}:{sWS+3}], s{sU0} offen{SC}\nbuffer_load_dwordx4 {v(UG+4,4)}, v43, s[{sWS}:{sWS+3}], s{sU1} offen{SC}'
    vwait('f1')
    A0(f'v_cmp_ne_u32 vcc, s{sNon}, v40\ns_mov_b32 s{sUok}, 0\ns_cmp_eq_u64 vcc, 0')
    A.fwd_branch('s_cbranch_scc0 L_NOU')
    A0(UL + f'\ns_mov_b32 s{sUok}, 1')
    A.label('L_NOU')
    vq.add('u', 2)
    ST('p1')
    A(f'buffer_load_dword v47, v46, s[{sW2}:{sW2+3}], 0 offen', 'tw')
    def UWRITE():
        vwait('u')
        A0(f's_cmp_eq_u32 s{sUok}, 1')
        A.fwd_branch('s_cbranch_scc1 L_UOK')
        gpoll(A0, 'L_P1', f'buffer_load_dword v40, v41, s[{sWS}:{sWS+3}], s{sF1} offen{SC}', [40])
        A0(UL + '\ns_waitcnt vmcnt(0)')
        A.label('L_UOK')
        A(f'ds_write_b128 v44, {v(UG,4)}\nds_write_b128 v44, {v(UG+4,4)} offset:512')
    if cfg.get('dbgw'):
        vwait(('w', 1)); ST('dw1'); vwait('u'); ST('du'); vwait('tw'); ST('dtw')
    kaddr()
    lds_wait(A0, 'L_WD7a', vSy, DONE(7), 4, t3, sT0, sleep=1)
    A0(f's_setprio {cfg.get("kprio", 3)}')
    ST('k0')
    kphase()
    A0(f's_setprio {cfg.get("wprio", 0)}')
    if cfg.get('stn', 4): lds_wait(A0, 'L_WST', vSy, SY_ST, cfg.get('stn', 4), t3, sT0, sleep=1)
    ST('st')
    ldWn(2); A.flush()
    lds_wait(A0, 'L_WXS', vSy, SY_U, 4, t3, sT0)
    ldWn(2); A.flush()
    D2 = cfg.get('d2', 5)
    NW = NREG + 6
    A(f"""s_lshl_b32 s{sE}, s{sRB2}, 7
    s_lshl_b32 s{sT1}, s{hw}, 5
    s_add_u32 s{sE}, s{sE}, s{sT1}
    s_add_u32 s{sE}, s{sE}, {WS_F2}
    v_and_b32 v{t0}, 7, v1
    v_lshlrev_b32 v{t0}, 2, v{t0}""")
    F2L = f'buffer_load_dword v{t2}, v{t0}, s[{sWS}:{sWS+3}], s{sE} offen{SC}'
    for i in range(NREG + 1):
        if i < NREG:
            vwait(('w', i))
            ST(f'W{i}')
            rdW(i, WR + 16 * i)
        while nw[0] < NW and nw[0] <= i + D2 and nw[0] - 6 <= i - 1:
            if nw[0] >= 6: A0(f's_waitcnt lgkmcnt({8 if i < NREG else 0})')
            if nw[0] == NW - cfg.get('f2early', 1): A(F2L, 'f2')
            ldWn(1); A.flush()
    assert nw[0] == NW
    A.flush()
    load_x_final(A0); vq.add('x')
    ST('wpre')
    gpoll(A0, 'L_P2', F2L, [t2], sleep=cfg.get('p2sleep', 4), first=lambda: vwait('f2'))
    ST('p2')
    if cfg.get('hprio'): A(f's_setprio {cfg["hprio"]}')
    ACC = 192
    free = [16, 32] + list(range(64, WR, 16))
    hbuf = {}
    nh = 0
    def ldH():
        nonlocal nh
        if nh >= 14 or not free: return
        b = free.pop(0); hbuf[nh] = b
        for q in range(4):
            pre = f's_lshl_b32 s{b1}, s{sK}, 10\ns_add_u32 s{b1}, s{sH}, s{b1}\ns_add_u32 s{sK}, s{sK}, 1\ns_cmp_eq_u32 s{sK}, 14\ns_cselect_b32 s{sK}, 0, s{sK}\n' if q == 0 else ''
            A.push(pre + f'buffer_load_dwordx4 {v(b+4*q,4)}, v{vH+q}, s[{sWS}:{sWS+3}], s{b1} offen{SC}', ('h', nh))
        nh += 1
    while free: ldH()
    A.flush()
    A0(f"""v_and_b32 v2, 15, v1
    v_lshrrev_b32 v3, 4, v1
    v_xor_b32 v3, v3, v2
    v_lshlrev_b32 v3, 4, v3
    v_lshl_add_u32 v2, v2, 8, v3
    v_add_u32 v2, s{sLb}, v2
    v_xor_b32 v3, 64, v2
    v_xor_b32 v4, 128, v2
    v_xor_b32 v5, 192, v2""")
    A.every = cfg.get('every2', 6)
    wfrag = {i: WR + 16 * i for i in range(NREG)}
    wtmp = []; pend = []
    def rdWl(i, dst):
        base = RING[i % 6]; hi = 4 if base >= 65536 else 0; base &= 65535
        return [f'ds_read_b64_tr_b16 {v(dst+4*T+2*hh,2)}, v{vR+hi+T} offset:{base+hh*512}' for T in range(4) for hh in range(2)]
    LP = cfg.get('lpos', [0, 8])
    for i in range(14):
        if i == cfg.get('trig', 10):
            A0(f'ds_write_b32 v{vSy}, v{vI1} offset:{SY_TRIG}')
        rd = []
        vwait(('h', i))
        ST(f'h{i}')
        if i >= NREG:
            A0('s_waitcnt lgkmcnt(0)')
            if nw[0] < 14: ldWn(1)
        if NREG <= i + 1 < 14:
            vwait(('w', i + 1))
            wfrag[i + 1] = wtmp.pop(0); rd = rdWl(i + 1, wfrag[i + 1])
        n = 0
        per = -(-len(A.q) // len(LP))
        for T in range(4):
            for q in range(4):
                a = ACC + 16 * T + 4 * q
                A0(f'v_mfma_f32_16x16x32_bf16 {v(a,4)}, {v(wfrag[i]+4*T,4)}, {v(hbuf[i]+4*q,4)}, {"0" if i == 0 else v(a,4)}')
                if n in LP:
                    for _ in range(per):
                        if A.q: A.pop()
                elif rd: A0(rd.pop(0))
                if i == 13:
                    pend.append(f'ds_write_b128 v{2+T}, {v(a,4)} offset:{PART[q]}')
                    if len(pend) > 4: A0(pend.pop(0))
                n += 1
        if i == 13: A0('\n'.join(pend))
        assert not rd
        A.flush()
        free.append(hbuf[i])
        if i >= NREG - 3: wtmp.append(wfrag[i])
        else: free.append(wfrag[i])
        for _ in range(2):
            if nh - (i + 1) < cfg.get('hd', 5): ldH()
    ST('g2')

def gen_final(A, cfg, ST):
    A.label('L_FINAL')
    t0, t1, t2, t3 = 4, 5, 6, 7
    PB = 16; SV = 48; E = 52; XU = 60; SU = 68
    A(f"""v_lshrrev_b32 v{t0}, 3, v0
    v_and_b32 v{t1}, 7, v0
    v_and_b32 v2, 15, v{t0}
    v_lshlrev_b32 v3, 1, v{t1}
    v_xor_b32 v3, v3, v2
    v_lshlrev_b32 v3, 4, v3
    v_lshl_add_u32 v{t2}, v2, 8, v3
    v_lshrrev_b32 v2, 7, v0
    v_lshl_add_u32 v{t2}, v2, 14, v{t2}
    v_xor_b32 v{t3}, 16, v{t2}
    v_bfe_u32 v3, v0, 5, 3
    v_xor_b32 v{t1}, v{t1}, v3
    v_lshlrev_b32 v{t1}, 4, v{t1}
    v_lshl_add_u32 v{t1}, v{t0}, 7, v{t1}
    v_add_u32 v{t1}, {LS}, v{t1}
    s_mov_b32 s{sM0}, {NLOG2E}
    s_mov_b32 s{sM0+1}, {NLOG2E}
    s_waitcnt vmcnt(0) lgkmcnt(0)
    s_barrier""")
    for w in range(4):
        for hh in range(2): A(f'ds_read_b128 {v(PB+8*w+4*hh,4)}, v{t2+hh} offset:{w*4096}')
    A(f'ds_read_b128 {v(SV,4)}, v{t1}')
    for j in range(4): A(f'v_lshlrev_b32 v{XU+2*j}, 16, v{vX+j}\nv_and_b32 v{XU+2*j+1}, 0xffff0000, v{vX+j}')
    A('s_waitcnt lgkmcnt(5)')
    for j in range(4): A(f'v_pk_add_f32 {v(PB+2*j,2)}, {v(PB+2*j,2)}, {v(PB+8+2*j,2)}')
    A('s_waitcnt lgkmcnt(1)')
    for j in range(4): A(f'v_pk_add_f32 {v(PB+16+2*j,2)}, {v(PB+16+2*j,2)}, {v(PB+24+2*j,2)}')
    for j in range(4): A(f'v_pk_add_f32 {v(PB+2*j,2)}, {v(PB+2*j,2)}, {v(PB+16+2*j,2)}')
    for j in range(4): A(f'v_pk_mul_f32 {v(E+2*j,2)}, {v(PB+2*j,2)}, s[{sM0}:{sM0+1}]')
    for j in range(8): A(f'v_exp_f32 v{E+j}, v{E+j}')
    for j in range(4): A(f'v_pk_add_f32 {v(E+2*j,2)}, {v(E+2*j,2)}, 1.0 op_sel_hi:[1,0]')
    for j in range(8): A(f'v_rcp_f32 v{E+j}, v{E+j}')
    A('s_waitcnt lgkmcnt(0)')
    for j in range(4): A(f'v_lshlrev_b32 v{SU+2*j}, 16, v{SV+j}\nv_and_b32 v{SU+2*j+1}, 0xffff0000, v{SV+j}')
    for j in range(4): A(f'v_pk_mul_f32 {v(PB+2*j,2)}, {v(PB+2*j,2)}, {v(E+2*j,2)}')
    for j in range(4): A(f'v_pk_fma_f32 {v(PB+2*j,2)}, {v(PB+2*j,2)}, {v(SU+2*j,2)}, {v(XU+2*j,2)}')
    for j in range(4): A(f'v_cvt_pk_bf16_f32 v{SV+j}, v{PB+2*j}, v{PB+2*j+1}')
    A(f'buffer_store_dwordx4 {v(SV,4)}, v{vXo}, s[{sOUT}:{sOUT+3}], 0 offen{cfg.get("outf", "")}')
    ST.dump(sWS, 100, 101)

if __name__ == '__main__':
    out = sys.argv[1]
    cfg = eval(sys.argv[2]) if len(sys.argv) > 2 else {}
    PRESET = {1: dict(H=['ld','par','kt','B0','B4','B8','u','st','wpre','p2','g2','y'], M=['row','xn','kg','B0','B4','g1','epi','cv0','f2','cv1','f3','p3']),
              2: dict(H=['b0','b1','b2','b3','b4','b5','b6','b7','b8','p1','u','wpre'], M=['kg','B0','B1','B2','B3','B4','B5','B6','B7','B8','g1','epi'])}
    PRESET[3] = dict(H=['wpre','p2','g2'], M=['B0','g1','epi','f2','cv1','p3'])
    PRESET[4] = dict(H=['u','st','W0','W3','W6','wpre','p2','h0','h2','h5','h9','g2'], M=['g1','epi','cv0','f2','cv1','f3','p3'])
    PRESET[5] = dict(H=['B8','p1','k0','k1','u','st','W0','W3','wpre','p2','h2','g2'], M=['g1','epi','cv0','f2','cv1','f3','p3'])
    PRESET[6] = dict(H=['p2','h0','h1','h2','h3','h4','h6','h8','h10','h12','h13','g2'], M=['cv1','f3','p3'])
    PRESET[7] = dict(H=['B5','B6','B8','p1','dw1','du','dtw','k0','u','wpre','p2','g2'], M=['g1','epi'])
    if cfg.get('stamps') in PRESET:
        cfg['stamps'] = PRESET[cfg['stamps']]
        print('H:', ' '.join('%6s' % a for a in ['t0'] + cfg['stamps']['H'] + ['end']))
        print('M:', ' '.join('%6s' % a for a in ['t0'] + cfg['stamps']['M'] + ['end']))
    MINSLEEP[0] = cfg.get('minsleep', 0)
    A = Asm()
    head = open('cdna_kernels/%s.s.ref' % NAME).read().split('; Override')[0]
    A.raw('.amdgcn_target "amdgcn-amd-amdhsa--gfx950"\n.text')
    k = gen(A, cfg)
    open(out, 'w').write(head + '; @launch grid=(256,1,1) block=(512,1,1) lds=163840\n' + A.text() + '.section .rodata,"a"\n.p2align 6\n' + k)
```

```python
import sys, math, struct
from asmlib import Asm
from gen import NAME, f32, LOG2E, NLOG2E, INV2PI, v, s, srd, kernel_head, kd, cmul, bf16r, interleave

WS_H = 0
WS_XN = 0x700000
WS_SP = 0x900000
WS_GR = 0xD00000
WS_F1 = WS_GR + 0x4000
WS_F2 = WS_F1 + 0x1000
WS_F3 = WS_F2 + 0x1000
WS_EP = WS_F3 + 0x400
WS_STAMP = 0xD10000
WS_SIZE = 0xE00000
SC = ' sc1'

def Aslot(i): return i * 16384
def Bslot(i): return 65536 + i * 16384
LC = 131072
LDD = LC
LNB = LC + 16384; LNP = 1088
TOP = LC + 28672
LSTAT, LCS, LSY = TOP, TOP + 3072, TOP + 3584
LCSP = LNB
LKC = Bslot(3); KCP = 4160
LEX = LKC
LU = LKC + 8 * KCP; UP = 4608
LS = LU
RING = [Aslot(0), Bslot(0), Aslot(1), Bslot(1), Aslot(2), Bslot(2)]
PART = [Aslot(0), Aslot(1), Aslot(2), Aslot(3)]
SY_U, SY_H, SY_K, SY_CV, SY_EX, SY_S, SY_TRIG = 0, 4, 8, 16, 20, 24, 28
SY_XN, SY_XS, SY_KG, SY_ST = 48, 52, 56, 68
def CERT(st): return 64 + 4 * st
def DONE(st): return 128 + 4 * st

MINSLEEP = [0]
class Q:
    def __init__(s, A, name, mx): s.A, s.name, s.mx, s.q = A, name, mx, []
    def add(s, tag, n=1): s.q += [tag] * n
    def wait(s, tag):
        if tag not in s.q: return
        i = len(s.q) - 1 - s.q[::-1].index(tag)
        n = len(s.q) - 1 - i
        n = min(n, s.mx)
        s.A(f's_waitcnt {s.name}({n})'); s.q = s.q[len(s.q) - n:] if n else []
    def all(s):
        s.A(f's_waitcnt {s.name}(0)'); s.q = []

class BG:
    def __init__(s, A, vq, every): s.A, s.vq, s.every, s.q, s.n, s.hold = A, vq, every, [], 0, 0
    def push(s, text, tag): s.q.append((text, tag))
    def pop(s):
        t, tag = s.q.pop(0); s.A(t); s.vq.add(tag); s.n = 0
    def flush(s, tag=None):
        while s.q and (tag is None or any(t == tag for _, t in s.q)): s.pop()
    def __call__(s, text, tag=None):
        for line in text.strip().split('\n'):
            l = line.strip()
            if not l: continue
            if 'exec' in l.split(',')[0] and '-1' not in l: s.hold = 1
            if l.startswith('s_waitcnt lgkmcnt') and not s.hold:
                for _ in range(2):
                    if s.q: s.pop()
            s.A(l)
            if l.startswith(('buffer_', 'global_')):
                assert tag is not None, l
                s.vq.add(tag)
            if l.startswith('s_mov_b64 exec, -1'): s.hold = 0
            w = 3 if l.startswith('v_mfma') else 1
            s.n += w
            if s.q and not s.hold and s.n >= s.every and not l.startswith(('s_cmp', 's_sub_u32', 's_add_u32', 'v_cmp', 's_or_b64', 's_bitcmp')): s.pop()
    def __getattr__(s, k): return getattr(s.A, k)

class Stamps:
    def __init__(self, A, on): self.A, self.on, self.role = A, on, 'H'
    def start(self):
        if self.on: self.A('s_memrealtime s[70:71]\ns_memtime s[72:73]')
    def __call__(self, name):
        if self.on and name in self.on[self.role]:
            i = 1 + self.on[self.role].index(name)
            self.A(f's_memtime s[{72+2*i}:{73+2*i}]')
    def dump(self, sWS, vt, vo):
        if not self.on: return
        A = self.A
        A('s_waitcnt vmcnt(0)\ns_memtime s[98:99]\ns_memrealtime s[100:101]\ns_waitcnt lgkmcnt(0)')
        for i in range(16): A(f'v_writelane_b32 v{vt}, s{70+2*i}, {i}')
        A(f"""v_lshrrev_b32 v{vo}, 6, v0
        v_lshlrev_b32 v{vo}, 7, v{vo}
        v_and_b32 v{vo+1}, 63, v0
        v_lshl_add_u32 v{vo}, v{vo+1}, 2, v{vo}
        s_lshl_b32 s70, s2, 10
        s_add_u32 s70, s70, {WS_STAMP}
        s_mov_b64 exec, 0xffff
        buffer_store_dword v{vt}, v{vo}, s[{sWS}:{sWS+3}], s70 offen
        s_mov_b64 exec, -1""")

sX, sW1, sWS, sW2, sOUT = 4, 8, 12, 44, 48
pX, pLAR, pAIM, pCRE, pCIM, pLDT, pDSK, pW1, pW2, pOUT, pDBG, pWS = 16, 18, 20, 22, 24, 26, 28, 32, 34, 36, 38, 40
sWave, sRB, sCB, sT0, sT1, sT2, sOdd, sCh0, sDP, sNon, sCap, sRB2, sCB2 = 52, 53, 54, 55, 56, 57, 58, 59, 60, 61, 62, 63, 64
sA, sB, sC, sD, sE = 65, 66, 67, 68, 69
sK0 = 3
sM0 = 30
sM1 = 42

def lds_wait(A, name, vaddr, off, val, vt, st, sleep=0):
    A(f's_mov_b32 s{sCap}, 0x1000000')
    if sleep:
        A.fwd_branch(f's_branch {name}_R')
        A.label(name)
        A(f's_sleep {sleep}')
        A.label(name + '_R')
    else:
        A.label(name)
    A(f'''ds_read_b32 v{vt}, v{vaddr} offset:{off}
    s_waitcnt lgkmcnt(0)
    v_readfirstlane_b32 s{st}, v{vt}
    s_sub_u32 s{sCap}, s{sCap}, 1
    s_cselect_b32 s{st}, {val}, s{st}
    s_cmp_lt_u32 s{st}, {val}''')
    A.back_branch(f's_cbranch_scc1 {name}', name)

def lds_inc(A, vaddr, off, vone, rtn=None):
    A('s_mov_b64 exec, 1')
    if rtn is None: A(f'ds_add_u32 v{vaddr}, v{vone} offset:{off}')
    else: A(f'ds_add_rtn_u32 v{rtn}, v{vaddr}, v{vone} offset:{off}')
    A('s_mov_b64 exec, -1')

def gpoll(A, name, load, checks, sleep=8, first=None):
    A(f's_mov_b32 s{sCap}, 0x80000')
    if first:
        first()
        A.fwd_branch(f's_branch {name}_C')
    A.label(name)
    A(f'{load}\ns_waitcnt vmcnt(0)')
    A.label(name + '_C')
    A(f'v_cmp_ne_u32 vcc, s{sNon}, v{checks[0]}')
    for c in checks[1:]:
        A(f'v_cmp_ne_u32 s[{sM1}:{sM1+1}], s{sNon}, v{c}\ns_or_b64 vcc, vcc, s[{sM1}:{sM1+1}]')
    A(f'''s_cmp_eq_u64 vcc, 0
    s_cbranch_scc1 {name}_D
    s_sub_u32 s{sCap}, s{sCap}, 1
    s_cbranch_scc1 {name}_D
    s_sleep {sleep}''')
    A.back_branch(f's_branch {name}', name)
    A.label(name + '_D')

def x_read_addr(A, vXr, sw, t0, t1, t2):
    A(f"""v_and_b32 v{t0}, 15, v1
    v_lshrrev_b32 v{t1}, 4, v1
    v_lshrrev_b32 v{t2}, 1, v{t0}
    v_xor_b32 v{t2}, v{t2}, v{t1}
    v_lshlrev_b32 v{t2}, 4, v{t2}
    v_lshl_add_u32 v{t2}, v{t0}, 7, v{t2}
    s_lshl_b32 s{sT0}, s{sw}, 12
    v_add_u32 v{vXr}, s{sT0}, v{t2}
    v_xor_b32 v{vXr+1}, 64, v{vXr}""")

def kgen_tables(kP, PC, PR, YS):
    lar, aim, cre, cim, cre2, cim2, ldt = [kP + i for i in range(7)]
    dt, a1, w1, t2, t3 = 72, 73, 74, 78, 79
    C = 80; F1, F2, F4, F8, F256, G8, G16, G128 = 82, 84, 86, 88, 90, 92, 94, 96
    X = [98, 100, 102, 104, 106, 108, 110, 112]
    L = []
    for r in range(7): L.append(f'v_lshlrev_b32 v{kP+r}, 16, v{kP+r}')
    L += [f'v_mul_f32 v{dt}, {LOG2E}, v{ldt}', f'v_mul_f32 v{a1}, {LOG2E}, v{lar}', f'v_exp_f32 v{dt}, v{dt}', f'v_exp_f32 v{a1}, v{a1}',
          f'v_max3_f32 v{t2}, |v{cre}|, |v{cim}|, |v{cre2}|', f'v_max_f32_e64 v{t2}, v{t2}, |v{cim2}|']
    La = bf16r(dt, dt) + bf16r(a1, a1) + [f'v_mul_f32 v{a1}, v{a1}, v{dt}', f'v_mul_f32 v{w1}, v{aim}, v{dt}', f'v_mul_f32 v{a1}, {NLOG2E}, v{a1}', f'v_mul_f32 v{w1}, {INV2PI}, v{w1}']
    def direct(d, pos, ta, tb, neg=False):
        return [f'v_mul_f32 v{ta}, {f32(pos)}, v{a1}', f'v_mul_f32 v{tb}, {f32(-pos if neg else pos)}, v{w1}', f'v_exp_f32 v{ta}, v{ta}', f'v_fract_f32 v{tb}, v{tb}',
                f'v_cos_f32 v{d}, v{tb}', f'v_sin_f32 v{d+1}, v{tb}', f'v_mul_f32 v{d}, v{d}, v{ta}', f'v_mul_f32 v{d+1}, v{d+1}, v{ta}']
    La += interleave(direct(G8, 8.0, X[0], X[0] + 1, True), direct(G128, 128.0, X[1], X[1] + 1, True))
    La += interleave(direct(F1, 1.0, X[2], X[2] + 1), direct(F256, 256.0, X[3], X[3] + 1))
    Lb = []
    for r in (1, 2, 4, 8): Lb += [f'v_max_f32_dpp v{t2}, v{t2}, v{t2} row_ror:{r} row_mask:0xf bank_mask:0xf', None]
    for op in ('v_permlane16_swap_b32', 'v_permlane32_swap_b32'):
        Lb += [f'v_mov_b32 v{t3}, v{t2}', None, f'{op} v{t2}, v{t3}', f'v_max_f32 v{t2}, v{t2}, v{t3}']
    Lb += [f'v_lshrrev_b32 v{t2}, 23, v{t2}', f'v_min_u32 v{t2}, 253, v{t2}', f'v_sub_u32 v{t3}, 254, v{t2}',
           f'v_lshlrev_b32 v{t3}, 23, v{t3}', f'v_lshlrev_b32 v{t2}, 23, v{t2}',
           f'v_mul_f32 v{C}, v{cre}, v{t3}', f'v_mul_f32 v{C+1}, v{cim}, v{t3}',
           f'v_mul_f32 v{YS}, v{t2}, v{dt}', f'v_add_f32 v{YS}, v{YS}, v{YS}']
    L += [x for x in interleave(La, Lb) if x]
    L += cmul(G16, G8, G8) + cmul(F2, F1, F1) + [f'v_mov_b32 v{F8}, v{G8}', f'v_xor_b32 v{F8+1}, 0x80000000, v{G8+1}'] + cmul(F4, F2, F2)
    def cv(P, idx, src): return f'v_cvt_pk_f16_f32 v{P+idx}, v{src}, v{src+1}'
    def colchain(par, xa, xb, xc):
        Qq = []
        if par == 0:
            Qq += [f'v_mov_b32 v{PC}, 0x3c00', cv(PC, 16, G128)]; cur = G16; js = range(2, 16, 2)
        else:
            cur = G8; js = range(1, 16, 2)
        first = True
        for j in js:
            if not first:
                d = xa if cur != xa else xb; Qq += cmul(d, cur, G16); cur = d
            first = False
            Qq += cmul(xc, cur, G128) + [cv(PC, j, cur), cv(PC, j + 16, xc)]
        return Qq
    L += interleave(colchain(0, X[0], X[1], X[2]), colchain(1, X[3], X[4], X[5]))
    def ridx(rho, hf): return 8 * (rho >> 2) + 4 * hf + (rho & 3)
    Qa = [cv(PR, ridx(0, 0), C)]; cur = C
    for e in range(1, 8):
        d = X[0] if cur != X[0] else X[1]; Qa += cmul(d, cur, F1) + [cv(PR, ridx(e, 0), d)]; cur = d
    B1 = X[7]
    Qb = cmul(B1, C, F256) + [cv(PR, ridx(0, 1), B1), cv(PR, ridx(1, 1), B1)]
    Qc = []; cur = B1
    for k, rhos in enumerate([[2], [3, 4, 5], [6], [7]]):
        d = X[2] if cur != X[2] else X[3]; Qc += cmul(d, cur, F2) + [cv(PR, ridx(r, 1), d) for r in rhos]; cur = d
    Bc, Bn = B1, X[4]; alt = X[5]
    for sp in range(6):
        Qb += cmul(Bn, Bc, F256); Bc = Bn; Bn = alt if Bc == X[4] else X[4]
        if sp < 2:
            Qb += [cv(PR, ridx(8, sp), Bc)] + cmul(X[6], Bc, F4) + [cv(PR, ridx(9, sp), X[6])] + cmul(X[6], Bc, F8) + [cv(PR, ridx(10, sp), X[6])]
        else:
            rho = 11 + 2 * ((sp - 2) >> 1); hf = sp & 1
            Qb += [cv(PR, ridx(rho, hf), Bc)] + cmul(X[6], Bc, F8) + [cv(PR, ridx(rho + 1, hf), X[6])]
    L += Qb[:2] + interleave(Qb[2:], Qa + Qc)
    L += [f'v_mov_b32 v{PR+27}, 0', f'v_mov_b32 v{PR+31}, 0']
    return L

KN = NAME + '_kernel'

def gen(A, cfg):
    kernel_head(A, KN)
    A('s_cmp_ge_u32 s2, 256\ns_cbranch_scc1 L_END')
    ST = Stamps(A, cfg.get('stamps')); ST.start()
    A(f"""s_load_dwordx16 s[16:31], s[0:1], 0
    s_load_dwordx8 s[32:39], s[0:1], 64
    s_load_dwordx2 s[40:41], s[0:1], 96
    s_getpc_b64 s[{sM1}:{sM1+1}]""")
    A.raw('L_PC0:')
    if cfg.get('cpfall', 1):
        A('v_lshlrev_b32 v2, 7, v0\nv_cmp_gt_u32 vcc, L_CODE_END-L_PC0, v2')
    else:
        A(f's_lshr_b32 s{sT0}, s2, 3\ns_lshl_b32 s{sT0}, s{sT0}, 7\nv_lshl_add_u32 v2, v0, 12, s{sT0}\nv_cmp_gt_u32 vcc, L_CODE_END-L_PC0, v2')
    A(f"""s_and_saveexec_b64 s[{sA+1}:{sA+2}], vcc
    s_cbranch_execz L_NOCPF
    global_load_dword v159, v2, s[{sM1}:{sM1+1}]""")
    A.label('L_NOCPF', fence=False)
    A(f"""s_mov_b64 exec, -1
    v_lshrrev_b32 v2, 6, v0
    v_and_b32 v1, 63, v0
    v_readfirstlane_b32 s{sWave}, v2
    s_bfe_u32 s{sT0}, s2, 0x20001
    s_lshl_b32 s{sT0}, s{sT0}, 2
    s_bfe_u32 s{sT1}, s2, 0x20003
    s_add_u32 s{sRB}, s{sT0}, s{sT1}
    s_and_b32 s{sT0}, s2, 1
    s_lshl_b32 s{sT0}, s{sT0}, 3
    s_lshr_b32 s{sCB2}, s2, 5
    s_add_u32 s{sCB}, s{sT0}, s{sCB2}
    s_lshl_b32 s{sT2}, s{sT1}, 1
    s_add_u32 s{sCh0}, s{sT2}, s{sCB2}
    s_and_b32 s{sOdd}, s{sCB}, 1
    s_and_b32 s{sT0}, s2, 7
    s_lshl_b32 s{sRB2}, s{sT0}, 2
    s_add_u32 s{sRB2}, s{sRB2}, s{sT1}
    s_lshl_b32 s{sDP}, s{sT0}, 5
    s_lshr_b32 s{sT0}, s2, 3
    s_add_u32 s{sDP}, s{sDP}, s{sT0}
    s_mul_i32 s{sK0}, s{sCB2}, 14
    s_lshr_b32 s{sK0}, s{sK0}, 3
    s_mul_i32 s{sT0}, s{sT1}, 7
    s_lshr_b32 s{sT0}, s{sT0}, 1
    s_add_u32 s{sK0}, s{sK0}, s{sT0}
    s_sub_u32 s{sT0}, s{sK0}, 14
    s_cmp_ge_u32 s{sK0}, 14
    s_cselect_b32 s{sK0}, s{sT0}, s{sK0}
    v_lshlrev_b32 v2, 2, v1
    v_add_u32 v2, {LSY}, v2
    v_mov_b32 v14, 0
    ds_write_b32 v2, v14
    s_cmp_lt_u32 s{sWave}, 4""")
    A.fwd_branch('s_cbranch_scc0 L_M')
    n0 = len(A.out)
    A.label('L_M')
    gen_M(A, cfg, ST)
    n1 = len(A.out)
    gen_H(A, cfg, ST)
    Mt, Ht = A.out[n0:n1], A.out[n1:]
    k = Ht.index('; @@SPLIT')
    A.out[n0:] = Ht[:k] + ['    s_branch L_H2'] + Mt + ['L_H2:'] + Ht[k+1:]
    gen_final(A, cfg, ST)
    A.label('L_END', fence=False)
    A('s_endpgm')
    A.raw('L_CODE_END:')
    return kd(KN, 256, 102)

vX, vXo = 8, 12

def load_x_final(A):
    A(f"""v_lshrrev_b32 v2, 3, v0
    v_and_b32 v3, 7, v0
    v_lshlrev_b32 v3, 4, v3
    v_lshl_add_u32 v{vXo}, v2, 10, v3
    s_lshl_b32 s{sT0}, s{sRB2}, 16
    s_lshl_b32 s{sT1}, s{sCB2}, 7
    s_add_u32 s{sT0}, s{sT0}, s{sT1}
    v_add_u32 v{vXo}, s{sT0}, v{vXo}
    buffer_load_dwordx4 {v(vX,4)}, v{vXo}, s[{sX}:{sX+3}], 0 offen""")

def gen_M(A, cfg, ST):
    ST.role = 'M'
    mw = sWave
    t0, t1, t2, t3 = 16, 17, 18, 19
    kP = 64; D = 232
    vRow, vTmp, vOne = 160, 168, 184
    PC, PR, YS, WA = 192, 224, 189, 160
    vSyM, vOneM, vFl = 14, 15, 3
    A(f"""s_sub_u32 s{mw}, s{mw}, 4
    v_lshlrev_b32 v{t3}, 21, v1
    v_lshlrev_b32 v187, 4, v1
    v_mov_b32 v188, {WS_EP}
    s_lshl_b32 s{sT0}, s{sDP}, 13
    s_lshl_b32 s{sT1}, s{mw}, 11
    s_add_u32 s{sT0}, s{sT0}, s{sT1}
    v_add_u32 v186, s{sT0}, v187
    s_lshl_b32 s{sT0}, s2, 2
    s_add_u32 s{sT0}, s{sT0}, s{mw}
    s_mul_i32 s{sT0}, s{sT0}, {14*128}
    v_lshl_add_u32 v185, v1, 7, s{sT0}
    s_waitcnt lgkmcnt(0)
    global_load_dword v188, v188, s[{pWS}:{pWS+1}]{SC}
    global_load_dwordx4 {v(vRow,4)}, v186, s[{pX}:{pX+1}]
    global_load_dwordx4 {v(vRow+4,4)}, v186, s[{pX}:{pX+1}] offset:1024""")
    srd(A, sWS, pWS, WS_SIZE); srd(A, sX, pX, 2048 * 1024); srd(A, sOUT, pOUT, 2048 * 1024)
    A(f"""s_mov_b64 exec, 0x7f
    buffer_load_dword v156, v{t3}, s[{sWS}:{sWS+3}], 0 offen
    s_mov_b64 exec, 1
    global_load_dword v157, v{t3}, s[{pOUT}:{pOUT+1}]
    s_mov_b64 exec, {'0x3fff' if cfg.get('mall', 0) else '1'}
    global_load_dword v158, v185, s[{pW2}:{pW2+1}]
    s_mov_b64 exec, -1
    s_barrier
    s_lshl_b32 s{sT0}, s{sDP}, 2
    s_load_dword s{sD}, s[{pDSK}:{pDSK+1}], s{sT0}""")
    if cfg.get('lnprio'): A(f's_setprio {cfg["lnprio"]}')
    ST('ld')
    vXr, vWr = 4, 6
    F = [20, 56]; ACC = 92
    x_read_addr(A, vXr, mw, t0, t1, t2)
    A(f"""v_lshrrev_b32 v{t0}, 4, v1
    v_bfe_u32 v{t1}, v1, 2, 2
    v_and_b32 v{t2}, 1, v{t0}
    v_lshl_or_b32 v{t2}, v{t2}, 2, v{t1}
    v_lshl_add_u32 v{t0}, v{t0}, 3, v{t1}
    v_and_b32 v{t1}, 3, v1
    v_lshlrev_b32 v{t1}, 3, v{t1}
    v_lshl_add_u32 v{t3}, v{t0}, 8, v{t1}
    v_add_u32 v{t3}, {Bslot(0)}, v{t3}""")
    for tau in range(7):
        A(f'v_xor_b32 v{t0}, {tau}, v{t2}\nv_lshl_add_u32 v{vWr+tau}, v{t0}, 5, v{t3}')
    A(f'v_mov_b32 v{vOne}, 0x3f803f80\ns_waitcnt lgkmcnt(0)')
    A('s_waitcnt vmcnt(3)')
    ST('row')
    class Col:
        def __init__(s): s.L = []
        def __call__(s, t): s.L += [x.strip() for x in t.strip().split('\n') if x.strip()]
    A_ = A; A = Col()
    S = [vTmp + i for i in range(4)]
    T = [vTmp + 4 + i for i in range(4)]
    for r in range(2):
        for j in range(4):
            x = vRow + 4 * r + j
            if j == 0:
                A(f'v_dot2_f32_bf16 v{S[r]}, v{x}, v{vOne}, 0\nv_dot2_f32_bf16 v{S[2+r]}, v{x}, v{x}, 0')
            else:
                A(f'v_dot2_f32_bf16 v{S[r]}, v{x}, v{vOne}, v{S[r]}\nv_dot2_f32_bf16 v{S[2+r]}, v{x}, v{x}, v{S[2+r]}')
    for rr in (1, 2, 4, 8):
        for i in range(4): A(f'v_add_f32_dpp v{S[i]}, v{S[i]}, v{S[i]} row_ror:{rr} row_mask:0xf bank_mask:0xf')
    for op in ('v_permlane16_swap_b32', 'v_permlane32_swap_b32'):
        for i in range(4): A(f'v_mov_b32 v{T[i]}, v{S[i]}')
        for i in range(4): A(f'{op} v{S[i]}, v{T[i]}')
        for i in range(4): A(f'v_add_f32 v{S[i]}, v{S[i]}, v{T[i]}')
    Ls = []
    for r in range(2):
        m, e2, a, b = S[r], S[2 + r], T[r], T[2 + r]
        Ls.append([f'v_mul_f32 v{m}, {f32(1/512)}, v{m}', f'v_mul_f32 v{e2}, {f32(1/512)}, v{e2}',
                   f'v_fma_f32 v{e2}, -v{m}, v{m}, v{e2}', f'v_max_f32 v{e2}, 0, v{e2}'] + bf16r(e2, e2) + bf16r(m, m) +
                  [f'v_add_f32 v{e2}, {f32(1e-5)}, v{e2}'] + bf16r(e2, e2) + [f'v_sqrt_f32 v{e2}, v{e2}'] + bf16r(e2, e2) +
                  [f'v_rcp_f32 v{a}, v{e2}', f'v_mul_f32_e64 v{b}, -v{m}, v{a}', f'v_lshrrev_b32 v{m}, 16, v{m}', f'v_or_b32 v{m}, v{m}, v{e2}'])
    A('\n'.join(interleave(*Ls)))
    vSy, vI1 = vSyM, vOneM
    A(f"""v_readfirstlane_b32 s{sNon}, v188
    v_mov_b32 v{vSy}, {LSY}
    v_mov_b32 v{vI1}, 1
    s_mul_i32 s{sNon}, s{sNon}, 0x9e3779b1
    s_add_u32 s{sNon}, s{sNon}, 0x7f4a7c15
    v_cmp_eq_u32 vcc, 1, v1
    v_cndmask_b32 v{vTmp+8}, v{S[0]}, v{S[1]}, vcc
    v_mov_b32 v{vTmp+9}, s{sNon}
    ds_write_b32 v{vSy}, v{vTmp+9} offset:32""")
    for r in range(2):
        for j in range(4):
            x = vRow + 4 * r + j; u = vTmp + 10 + 2 * (j & 1)
            A(f"""v_lshlrev_b32 v{u}, 16, v{x}
            v_and_b32 v{u+1}, 0xffff0000, v{x}
            v_fma_f32 v{u}, v{u}, v{T[r]}, v{T[2+r]}
            v_fma_f32 v{u+1}, v{u+1}, v{T[r]}, v{T[2+r]}
            v_cvt_pk_f16_f32 v{x}, v{u}, v{u+1}""")
    A(f"""s_mul_i32 s{sT0}, s{mw}, {2*LNP}
    s_add_u32 s{sT0}, s{sT0}, {LNB}
    v_add_u32 v{t0}, s{sT0}, v187
    ds_write_b128 v{t0}, {v(vRow,4)}
    ds_write_b128 v{t0}, {v(vRow+4,4)} offset:{LNP}""")
    LNL = A.L; A = A_
    A('\n'.join(LNL))
    lds_inc(A, vSy, SY_XN, vI1)
    A(f"""v_bfe_u32 v{t0}, v1, 2, 2
    v_mul_u32_u24 v{t0}, {LNP}, v{t0}
    v_lshrrev_b32 v{t1}, 4, v1
    v_lshl_add_u32 v{t0}, v{t1}, 5, v{t0}
    v_and_b32 v{t1}, 3, v1
    v_lshl_add_u32 v{t0}, v{t1}, 3, v{t0}
    s_lshl_b32 s{sT0}, s{mw}, 8
    s_add_u32 s{sT0}, s{sT0}, {LNB}
    v_add_u32 v{t0}, s{sT0}, v{t0}""")
    lds_wait(A, 'L_WXN', vSy, SY_XN, 4, t3, sT0)
    for i in range(2):
        for hh in range(2): A(f'ds_read_b64_tr_b16 {v(vRow+4*i+2*hh,2)}, v{t0} offset:{128*i+4*LNP*hh}')
    ST('xn')
    ST('kt')
    lq = Q(A, 'lgkmcnt', 15)
    def reads(st, kap):
        slot = st & 3; f = F[kap]; L = []
        for q in range(2): L.append((f'ds_read_b128 {v(f+28+4*q,4)}, v{vXr+kap} offset:{Aslot(slot)+q*2048}', (st, kap, 0)))
        for tau in range(7):
            for hh in range(2):
                L.append((f'ds_read_b64_tr_b16 {v(f+4*tau+2*hh,2)}, v{vWr+tau} offset:{slot*16384+kap*8192+hh*1024}', (st, kap, tau)))
        return L
    def emit(rd):
        for t, tag in rd: A(t); lq.add(tag)
    vSyM, vOneM, vFl = 14, 15, 3
    def kstep(st, kap, rd, first=False, bar_at=None, bar_fn=None):
        f = F[kap]; k = 0; n = 0
        start = 0 if bar_at is None else bar_at
        slots = 14 - start - 1
        if bar_at is None: slots = cfg.get('r0', 13)
        flag = bar_at is not None and st == 7
        if flag: A(f'ds_read_b32 v{vFl}, v{vSyM} offset:{CERT(st+1)}'); lq.add('fl')
        for tau in range(7):
            lq.wait((st, kap, tau))
            for q in range(2):
                if n == bar_at:
                    lq.all()
                    if flag:
                        A(f'v_readfirstlane_b32 s{sT0}, v{vFl}')
                        A(f's_cmp_ge_u32 s{sT0}, {0 if cfg.get("nocheck") else 4}')
                        A(f's_cbranch_scc1 L_CK{st}')
                        lds_wait(A, f'L_CW{st}', vSyM, CERT(st+1), 4, vFl, sT0)
                        A.label(f'L_CK{st}', fence=False)
                    else:
                        A('s_barrier')
                    bar_fn and bar_fn()
                a = ACC + 8 * tau + 4 * q
                A(f'v_mfma_f32_16x16x32_bf16 {v(a,4)}, {v(f+4*tau,4)}, {v(f+28+4*q,4)}, {"0" if first else v(a,4)}')
                if n >= start:
                    want = min(len(rd), -(-len(rd) * (n - start + 1) // slots))
                    emit(rd[k:want]); k = max(k, want)
                n += 1
        emit(rd[k:])
    A(f"""v_lshlrev_b32 v{t0}, 3, v1
    s_lshl_b32 s{sT0}, s{sDP}, 6
    s_lshl_b32 s{sT1}, s{mw}, 4
    s_add_u32 s{sT0}, s{sT0}, s{sT1}
    s_add_u32 s{sT0}, s{sT0}, {WS_GR}
    s_setprio 3
    s_mov_b64 exec, 3
    buffer_store_dwordx2 {v(vTmp+8,2)}, v{t0}, s[{sWS}:{sWS+3}], s{sT0} offen{SC}
    s_mov_b64 exec, -1
    s_lshl_b32 s{sT0}, s{sDP}, 13
    s_lshl_b32 s{sT1}, s{mw}, 11
    s_add_u32 s{sT0}, s{sT0}, s{sT1}
    s_add_u32 s{sT0}, s{sT0}, {WS_XN}
    s_waitcnt lgkmcnt(0)
    buffer_store_dwordx4 {v(vRow,4)}, v187, s[{sWS}:{sWS+3}], s{sT0} offen{SC}
    buffer_store_dwordx4 {v(vRow+4,4)}, v187, s[{sWS}:{sWS+3}], s{sT0} offen offset:1024{SC}
    s_waitcnt lgkmcnt(0)""")
    A(f's_setprio {cfg.get("lprio", 0)}')
    ST('kg')
    A('s_barrier')
    ST('B0')
    emit(reads(0, 0))
    A(f'v_mov_b32 v{vFl}, s{sNon}')
    def twr(P, off): return [(f'ds_write2st64_b32 v{WA+i}, v{P+i}, v{P+i+16} offset0:{off+i} offset1:{off+i+16}', 'tw') for i in range(16)]
    ab = 20; cs = 24
    BA = cfg.get('bar_at', 4)
    for st in range(8):
        if st == cfg.get('f1st', 1):
            A(f"""s_lshl_b32 s{sT1}, s{sDP}, 2
            s_lshl_b32 s{sT0}, s{mw}, 10
            s_add_u32 s{sT1}, s{sT1}, s{sT0}
            s_add_u32 s{sT1}, s{sT1}, {WS_F1}
            v_mov_b32 v{t0}, 0
            s_waitcnt vmcnt(0)
            s_setprio 3
            s_mov_b64 exec, 1
            buffer_store_dword v{vFl}, v{t0}, s[{sWS}:{sWS+3}], s{sT1} offen{SC}
            s_mov_b64 exec, -1
            s_setprio {cfg.get('lprio', 0)}""")
        kstep(st, 0, reads(st, 1), first=(st == 0))
        if st < 7:
            def bf(st=st):
                ST(f'B{st+1}')
            if st == 6: kstep(st, 1, reads(st + 1, 0))
            else: kstep(st, 1, reads(st + 1, 0), bar_at=BA, bar_fn=bf)
        else:
            A(f"""v_and_b32 v{t0}, 15, v1
            s_lshl_b32 s{sT0}, s{mw}, 8
            s_add_u32 s{sT0}, s{sT0}, {LSTAT}
            v_lshl_add_u32 v{t1}, v{t0}, 3, s{sT0}
            v_lshrrev_b32 v{t0}, 4, v1
            v_lshlrev_b32 v{t0}, 4, v{t0}
            v_add_u32 v{t0}, {LCS}, v{t0}""")
            rd = [(f'ds_read_b64 {v(ab,2)}, v{t1}', 'e'), (f'ds_read_b64 {v(ab+2,2)}, v{t1} offset:128', 'e')]
            rd += [(f'ds_read_b128 {v(cs+4*tau,4)}, v{t0} offset:{64*tau}', 'e') for tau in range(7)]
            kstep(st, 1, rd, bar_at=BA, bar_fn=lambda: ST('B8'))
    A('s_waitcnt lgkmcnt(0)')
    lds_inc(A, vSyM, DONE(7), vOneM)
    ST('g1')
    if cfg.get('mprio', 2): A(f's_setprio {cfg.get("mprio", 2)}')
    sHb, sHs = sA, sC
    A(f"""s_lshl_b32 s{sT0}, s{sRB}, 3
    s_lshl_b32 s{sT1}, s{mw}, 1
    s_add_u32 s{sT0}, s{sT0}, s{sT1}
    s_mul_i32 s{sT0}, s{sT0}, 56
    s_lshr_b32 s{sT1}, s{sCB}, 1
    s_mul_i32 s{sT1}, s{sT1}, 7
    s_add_u32 s{sT0}, s{sT0}, s{sT1}
    s_lshl_b32 s{sT0}, s{sT0}, 10
    s_lshl_b32 s{sT1}, s{sOdd}, 12
    s_add_u32 s{sHb}, s{sT0}, s{sT1}
    s_add_u32 s{sHb+1}, s{sHb}, {56*1024}
    s_lshl_b32 s{sT1}, s{sOdd}, 9
    s_add_u32 s{sHs}, s{sT0}, s{sT1}
    s_add_u32 s{sHs}, s{sHs}, 3072
    v_and_b32 v{t0}, 15, v1
    v_lshlrev_b32 v{t0}, 4, v{t0}
    v_lshrrev_b32 v{t2}, 5, v1
    v_lshl_add_u32 v{t0}, v{t2}, 8, v{t0}
    v_bfe_u32 v{t2}, v1, 4, 1
    v_lshl_add_u32 v{t1}, v{t2}, 9, v{t0}
    v_mul_u32_u24 v{t2}, {56*1024}, v{t2}
    v_add_u32 v{t2}, v{t2}, v{t0}
    s_mov_b32 s{sM0}, {NLOG2E}
    s_mov_b32 s{sM0+1}, {NLOG2E}
    v_mov_b32 v2, {NLOG2E}
    v_mov_b32 v3, {NLOG2E}
    s_waitcnt lgkmcnt(0)""")
    Zs = [56, 72]; Es = [64, 80]; O = [148, 152]
    groups = [[(2 * g, q), (2 * g + 1, q)] for q in range(2) for g in range(3)] + [[(6, 0), (6, 1)]]
    def part1(gi):
        Z = Zs[gi & 1]; E = Es[gi & 1]; L = []
        prs = [(tau, q, p) for tau, q in groups[gi] for p in range(2)]
        for n, (tau, q, p) in enumerate(prs):
            c = cs + 4 * tau + 2 * p
            L.append(f'v_pk_mul_f32 {v(Z+2*n,2)}, {v(c,2)}, {v(ab+2*q,2)} op_sel:[0,1] op_sel_hi:[1,1]')
        for n, (tau, q, p) in enumerate(prs):
            a = ACC + 8 * tau + 4 * q + 2 * p
            L.append(f'v_pk_fma_f32 {v(Z+2*n,2)}, {v(a,2)}, {v(ab+2*q,2)}, {v(Z+2*n,2)} op_sel:[0,0,0] op_sel_hi:[1,0,1]')
        for n in range(8): L.append(f'v_exp_f32 v{E+n}, v{Z+n}')
        for n in range(4): L.append(f'v_pk_fma_f32 {v(E+2*n,2)}, {v(E+2*n,2)}, s[{sM0}:{sM0+1}], v[2:3]')
        for n in range(8): L.append(f'v_rcp_f32 v{E+n}, v{E+n}')
        for n in range(4): L.append(f'v_pk_mul_f32 {v(Z+2*n,2)}, {v(Z+2*n,2)}, {v(E+2*n,2)}')
        o = O[gi & 1]
        for n in range(4): L.append(f'v_cvt_pk_bf16_f32 v{o+n}, v{Z+2*n}, v{Z+2*n+1}')
        T = [f'v_permlane16_swap_b32 v{o}, v{o+2}', f'v_permlane16_swap_b32 v{o+1}, v{o+3}']
        if gi < 6: T.append(f'buffer_store_dwordx4 {v(o,4)}, v{t1}, s[{sWS}:{sWS+3}], s{sHb+gi//3} offen offset:{1024*(gi%3)}{SC}')
        else: T.append(f'buffer_store_dwordx4 {v(o,4)}, v{t2}, s[{sWS}:{sWS+3}], s{sHs} offen{SC}')
        return L, T
    pend = []
    for gi in range(7):
        L, T = part1(gi)
        A('\n'.join(L[:2] + pend + L[2:])); pend = T
    A('\n'.join(pend))
    lds_inc(A, vSyM, SY_ST, vOneM)
    ST('epi')
    cw = mw
    sCh, sHF, sUb, sKb = sA, sB, sC, sE
    vK, vU, vSy, vOne, vL16 = 4, 5, 6, 7, 13
    A(f"""s_lshr_b32 s{sCh}, s{cw}, 1
    s_and_b32 s{sHF}, s{cw}, 1
    s_mul_i32 s{sUb}, s{sCh}, {UP}
    s_add_u32 s{sUb}, s{sUb}, {LU}
    s_mul_i32 s{sKb}, s{sCh}, {4*KCP}
    s_add_u32 s{sKb}, s{sKb}, {LKC}
    v_lshlrev_b32 v{vL16}, 4, v1
    v_mov_b32 v{vSy}, {LSY}
    v_mov_b32 v{vOne}, 1
    s_lshl_b32 s{sT0}, s{sCh}, 2
    v_add_u32 v{t0}, s{sT0}, v{vSy}
    v_and_b32 v{t1}, 3, v1
    v_sub_u32 v{t1}, 3, v{t1}
    v_mul_u32_u24 v{t1}, {KCP}, v{t1}
    v_bfe_u32 v{t2}, v1, 2, 2
    v_lshrrev_b32 v{t3}, 4, v1
    v_lshlrev_b32 v{vK}, 1, v{t3}
    v_sub_u32 v{vK}, v{vK}, v{t2}
    v_lshl_add_u32 v{vK}, v{vK}, 3, v{t1}
    s_lshl_b32 s{sT0}, s{sHF}, 8
    s_sub_u32 s{sT1}, s{sKb}, s{sT0}
    s_add_u32 s{sT1}, s{sT1}, {8*507-192-3584}
    v_add_u32 v{vK}, s{sT1}, v{vK}
    v_and_b32 v{t1}, 15, v1
    v_lshlrev_b32 v{t1}, 5, v{t1}
    v_lshl_add_u32 v{vU}, v{t3}, 4, v{t1}
    s_sub_u32 s{sT1}, s{sUb}, s{sT0}
    s_add_u32 s{sT1}, s{sT1}, {448-192}
    v_add_u32 v{vU}, s{sT1}, v{vU}""")
    def flag2():
        A(f"""s_lshl_b32 s{sT1}, s{sRB}, 8
        s_lshr_b32 s{sT0}, s{mw}, 1
        s_lshl_b32 s{sT0}, s{sT0}, 7
        s_add_u32 s{sT1}, s{sT1}, s{sT0}
        s_lshl_b32 s{sT0}, s{sCB}, 3
        s_add_u32 s{sT1}, s{sT1}, s{sT0}
        s_and_b32 s{sT0}, s{mw}, 1
        s_lshl_b32 s{sT0}, s{sT0}, 2
        s_add_u32 s{sT1}, s{sT1}, s{sT0}
        s_add_u32 s{sT1}, s{sT1}, {WS_F2}
        v_mov_b32 v{t1}, 0
        v_mov_b32 v{t2}, s{sNon}
        s_waitcnt vmcnt(0)
        s_setprio 3
        s_mov_b64 exec, 1
        buffer_store_dword v{t2}, v{t1}, s[{sWS}:{sWS+3}], s{sT1} offen{SC}
        s_mov_b64 exec, -1""")
    sF2 = sOdd
    A(f'ds_read_b32 v{t3}, v{vSy} offset:{SY_U}\ns_mov_b32 s{sF2}, 0\ns_waitcnt lgkmcnt(0)\nv_readfirstlane_b32 s{sT0}, v{t3}\ns_cmp_ge_u32 s{sT0}, {99 if cfg.get("f2first") else 4}')
    A.fwd_branch('s_cbranch_scc1 L_UR')
    flag2()
    ST('f2a')
    A(f's_mov_b32 s{sF2}, 1')
    lds_wait(A, 'L_WU', vSy, SY_U, 4, t3, sT0, sleep=1)
    A.label('L_UR')
    A(f's_or_b32 s{sT0}, s2, s{mw}\ns_cmp_lg_u32 s{sT0}, 0')
    A.fwd_branch('s_cbranch_scc1 L_NOEP')
    A(f's_mov_b32 s{sT0}, {WS_EP}\nv_mov_b32 v{t1}, 0\nv_mov_b32 v{t2}, s{sNon}\ns_mov_b64 exec, 1\nbuffer_store_dword v{t2}, v{t1}, s[{sWS}:{sWS+3}], s{sT0} offen{SC}\ns_mov_b64 exec, -1')
    A.label('L_NOEP')
    if cfg.get('cvdelay'):
        for _ in range(cfg['cvdelay']): A('s_sleep 100')
    A(f's_setprio {cfg.get("cvprio", 0)}')
    ST('cv0')
    ACC = 20
    FK = [52, 116]; FU = [84, 148]
    def creads(rl):
        b = rl & 1; L = []
        for m in range(8):
            L.append(f'ds_read_b128 {v(FU[b]+4*m,4)}, v{vU} offset:{512*m+64*(3-rl)}')
            for hh in range(2):
                L.append(f'ds_read_b64 {v(FK[b]+4*m+2*hh,2)}, v{vK} offset:{512*(7-m)+64*(3-rl)+8*hh}')
        return L
    A('\n'.join(creads(0)))
    for rl in range(4):
        b = rl & 1
        nxt = creads(rl + 1) if rl < 3 else []
        if rl == cfg.get('f2rl', 1):
            A(f's_cmp_eq_u32 s{sF2}, 1')
            A.fwd_branch('s_cbranch_scc1 L_F2D')
            flag2()
            A.label('L_F2D')
            A('s_setprio 3')
            ST('f2')
            load_x_final(A)
            A(f's_setprio {cfg.get("cvprio", 0)}')
        A('s_waitcnt lgkmcnt(0)')
        if rl == 3: lds_inc(A, vSy, SY_CV, vOne)
        k = 0
        for m in range(8):
            for jj in range(8 - m):
                a = ACC + 4 * (m + jj)
                A(f'v_mfma_f32_16x16x32_f16 {v(a,4)}, {v(FK[b]+4*m,4)}, {v(FU[b]+4*jj,4)}, {"0" if rl == 0 and m == 0 else v(a,4)}')
                if k < len(nxt): A(nxt[k])
                k += 1
    ST('cv1')
    A('s_setprio 2')
    lds_wait(A, 'L_WCV', vSy, SY_CV, 4, t3, sT0)
    A(f"""s_lshl_b32 s{sT0}, s{cw}, 13
    s_add_u32 s{sT0}, s{sT0}, {LEX}
    v_add_u32 v{t1}, s{sT0}, v{vL16}""")
    for i in range(8): A(f'ds_write_b128 v{t1}, {v(ACC+4*i,4)} offset:{1024*i}')
    UU = 116; YS = 124
    A(f"""s_lshl_b32 s{sT0}, s{cw}, 11
    s_add_u32 s{sT1}, s{sT0}, {LEX}
    v_add_u32 v{t0}, s{sT1}, v{vL16}
    v_and_b32 v{vK}, 15, v1
    v_lshrrev_b32 v{vU}, 4, v1
    v_lshlrev_b32 v{vU}, 2, v{vU}
    v_lshl_add_u32 v{vK}, v{vK}, 4, v{vU}
    s_lshl_b32 s{sT1}, s{cw}, 10
    s_add_u32 s{sT1}, s{sT1}, {LU+480}
    v_lshl_add_u32 v{vU}, v{vK}, 1, s{sT1}
    v_lshlrev_b32 v{vK}, 2, v{vK}
    s_lshl_b32 s{sT2}, s{sDP}, 14
    s_add_u32 s{sT2}, s{sT2}, s{sT0}
    s_add_u32 s{sT2}, s{sT2}, s{sT0}
    s_add_u32 s{sT2}, s{sT2}, {WS_SP}
    s_and_b32 s{sE}, s{sD}, 0xffff0000
    s_lshl_b32 s{sD}, s{sD}, 16
    s_waitcnt lgkmcnt(0)""")
    for ti in range(2):
        for c in range(2): A(f'ds_read_b64 {v(UU+4*ti+2*c,2)}, v{vU} offset:{512*ti+UP*c}')
    lds_inc(A, vSy, SY_EX, vOne)
    A(f'ds_read_b64 {v(YS,2)}, v{vSy} offset:40')
    lds_wait(A, 'L_WEX', vSy, SY_EX, 4, t3, sT0)
    PB = 52
    for ti in range(2):
        for w in range(4): A(f'ds_read_b128 {v(PB+16*ti+4*w,4)}, v{t0} offset:{8192*w+1024*ti}')
    for ti in range(2):
        A(f's_waitcnt lgkmcnt({4-4*ti})')
        for c in range(2):
            p0, p1 = PB + 16 * ti + 8 * c, PB + 16 * ti + 8 * c + 4
            for e in range(4): A(f'v_add_f32 v{p0+e}, v{p0+e}, v{p1+e}')
            for e in range(4): A(f'v_mul_f32 v{p0+e}, v{YS+c}, v{p0+e}')
            for e in range(4): A(f'v_fma_mix_f32 v{p0+e}, v{UU+4*ti+2*c+(e>>1)}, s{sD+c}, v{p0+e} op_sel:[{e&1},0,0] op_sel_hi:[1,0,0]')
        o = 128 + 8 * ti
        for e in range(4): A(f'v_cvt_pk_bf16_f32 v{o+2*e}, v{PB+16*ti+e}, v{PB+16*ti+8+e}\nv_mov_b32 v{o+2*e+1}, s{sNon}')
        for hh in range(2): A(f'buffer_store_dwordx4 {v(o+4*hh,4)}, v{vK}, s[{sWS}:{sWS+3}], s{sT2} offen offset:{2048*ti+1024*hh}{SC}')
    ST('f3')
    A(f"""v_lshrrev_b32 v{vK}, 5, v1
    v_bfe_u32 v{vU}, v1, 4, 1
    v_and_b32 v{t3}, 15, v1
    v_lshlrev_b32 v{t2}, 4, v{t3}
    v_lshl_add_u32 v{t2}, v{vU}, 10, v{t2}
    v_lshl_add_u32 v{t2}, v{vK}, 14, v{t2}
    s_lshl_b32 s{sA}, s{sCB2}, 19
    s_lshl_b32 s{sT2}, s{cw}, 17
    s_add_u32 s{sA}, s{sA}, s{sT2}
    s_lshr_b32 s{sT2}, s{sRB2}, 2
    s_lshl_b32 s{sT2}, s{sT2}, 11
    s_add_u32 s{sA}, s{sA}, s{sT2}
    s_and_b32 s{sT2}, s{sRB2}, 3
    s_lshl_b32 s{sT2}, s{sT2}, 8
    s_add_u32 s{sA}, s{sA}, s{sT2}
    s_add_u32 s{sA}, s{sA}, {WS_SP}
    s_add_u32 s{sB}, s{sA}, {32768}
    s_add_u32 s{sC}, s{sA}, {65536}
    s_add_u32 s{sD}, s{sA}, {98304}
    s_lshl_b32 s{sT2}, s{cw}, 3
    v_add_u32 v{vK}, s{sT2}, v{vK}
    v_and_b32 v{t1}, 7, v1
    v_lshlrev_b32 v{t1}, 2, v{t1}
    v_xor_b32 v{vK}, v{vK}, v{t1}
    v_lshlrev_b32 v{vK}, 2, v{vK}
    v_lshl_add_u32 v{vK}, v{t3}, 9, v{vK}
    v_lshl_add_u32 v{vK}, v{vU}, 8, v{vK}
    v_add_u32 v{vK}, {LS}, v{vK}
    v_xor_b32 v{vU}, 16, v{vK}""")
    lds_wait(A, 'L_WT', vSy, SY_TRIG, 1, t3, sT0, sleep=4)
    SG = 44
    gpoll(A, 'L_P3', '\n'.join(f'buffer_load_dwordx4 {v(SG+4*it,4)}, v{t2}, s[{sWS}:{sWS+3}], s{sA+it} offen{SC}' for it in range(4)),
          [SG + 2 * k + 1 for k in range(8)], sleep=cfg.get('p3sleep', 12))
    ST('p3')
    for it in range(4):
        for e in range(2): A(f'ds_write_b32 v{vU if it >= 2 else vK}, v{SG+4*it+2*e} offset:{128*e+8*(it&1)}')
    A.fwd_branch('s_branch L_FINAL')

def gen_H(A, cfg, ST):
    ST.role = 'H'
    A.label('L_H')
    hw = sWave
    vXo_, vWo = 16, 20
    vWr = 24
    vOne = 32
    t0, t1, t2, t3 = 36, 37, 38, 39
    vH, vW, vR = 48, 52, 56
    vRow = 64
    vTmp = 72
    vCS, vFw = 192, 220
    sXb, sWb, sLb, sCk = sA, sB, sC, sD
    sH, sWo, sK, sKw = 30, 31, 38, 39
    vq = Q(A, 'vmcnt', 63)
    A0 = A; A = BG(A0, vq, cfg.get('every', 6))
    b0, b1, b2 = 28, 29, 17
    def vwait(tag): A.flush(tag); vq.wait(tag)
    D = 232; kP = 64; PC, PR, YS, WA = 128, 160, 114, 64
    A(f"""s_lshr_b32 s{sT0}, s{hw}, 1
    s_lshl_b32 s{sT2}, s{sDP}, 1
    s_add_u32 s{sT2}, s{sT2}, s{sT0}
    s_and_b32 s{sT1}, s{hw}, 1
    s_lshl_b32 s{sT1}, s{sT1}, 7
    s_lshl_b32 s{sT0}, s{sT2}, 8
    s_add_u32 s{sT0}, s{sT0}, s{sT1}
    v_lshl_add_u32 v100, v1, 1, s{sT0}
    v_xor_b32 v101, 128, v100
    s_lshl_b32 s{sT0}, s{sT2}, 1
    v_mov_b32 v102, s{sT0}
    """)
    A(f"""v_lshrrev_b32 v{t0}, 3, v1
    v_lshrrev_b32 v{t1}, 4, v1
    v_and_b32 v{t2}, 7, v1
    v_xor_b32 v{t2}, v{t2}, v{t1}
    v_lshlrev_b32 v{t2}, 4, v{t2}
    v_lshl_add_u32 v{vXo_}, v{t0}, 10, v{t2}
    v_xor_b32 v{t3}, 64, v{vXo_}
    v_add_u32 v{vXo_+1}, 7168, v{t3}
    v_add_u32 v{vXo_+2}, 14336, v{vXo_}
    v_add_u32 v{vXo_+3}, 21504, v{t3}""")
    for half in range(2):
        A(f"""v_bfe_u32 v{t0}, v1, 1, 3
        v_xor_b32 v{t0}, v{t0}, v{t1}
        v_xor_b32 v{t0}, {4*half}, v{t0}
        v_and_b32 v{t2}, 1, v1
        v_lshl_add_u32 v{t2}, v{t0}, 1, v{t2}
        s_lshl_b32 s{sT0}, s{sOdd}, 1
        v_add_u32 v{t2}, s{sT0}, v{t2}
        v_subrev_u32 v{t3}, 14, v{t2}
        v_cmp_gt_u32 vcc, 14, v{t2}
        v_cndmask_b32 v{t2}, v{t3}, v{t2}, vcc
        v_lshlrev_b32 v{t2}, 4, v{t2}
        v_mul_u32_u24 v{t3}, 3584, v{t1}
        v_add_u32 v{t2}, v{t2}, v{t3}
        v_mov_b32 v{t3}, 0x7f000000
        v_cmp_eq_u32 vcc, 7, v{t0}
        v_cndmask_b32 v{t2}, v{t2}, v{t3}, vcc
        v_add_u32 v{vWo+2*half}, {(2*half)*13312}, v{t2}
        v_add_u32 v{vWo+2*half+1}, {(2*half+1)*13312}, v{t2}""")
    A(f"""s_lshl_b32 s{sXb}, s{sRB}, 17
    s_lshl_b32 s{sT0}, s{hw}, 15
    s_add_u32 s{sXb}, s{sXb}, s{sT0}
    s_mul_i32 s{sWb}, s{hw}, {16*3584}
    s_mul_i32 s{sT0}, s{sCB}, 224
    s_add_u32 s{sWb}, s{sWb}, s{sT0}
    s_lshl_b32 s{sLb}, s{hw}, 12
    v_lshlrev_b32 v13, 4, v1
    """)
    A(f"""s_waitcnt lgkmcnt(0)
    global_load_ushort v{kP+6}, v102, s[{pLDT}:{pLDT+1}]
    global_load_ushort v{kP+0}, v100, s[{pLAR}:{pLAR+1}]
    global_load_ushort v{kP+1}, v100, s[{pAIM}:{pAIM+1}]
    global_load_ushort v{kP+2}, v100, s[{pCRE}:{pCRE+1}]
    global_load_ushort v{kP+3}, v100, s[{pCIM}:{pCIM+1}]
    global_load_ushort v{kP+4}, v101, s[{pCRE}:{pCRE+1}]
    global_load_ushort v{kP+5}, v101, s[{pCIM}:{pCIM+1}]""", 'par')
    srd(A, sX, pX, 2048 * 1024); srd(A, sW1, pW1, 512 * 3584)
    A0('s_barrier')
    ST('ld')
    def dma(st, now=False):
        slot = st & 3
        for i in range(4):
            pre = ''
            if i == 0:
                pre = f's_add_u32 s{b2}, s{sCh0}, {st}\ns_and_b32 s{b2}, s{b2}, 7\ns_lshl_b32 s{b0}, s{b2}, 7\ns_add_u32 s{b0}, s{b0}, s{sXb}\ns_add_u32 m0, s{sLb}, {Aslot(slot)}\ns_mul_i32 s{b1}, s{b2}, {64*3584}\ns_add_u32 s{b1}, s{b1}, s{sWb}\n'
            A.push(pre + f'buffer_load_dwordx4 v{vXo_+i}, s[{sX}:{sX+3}], s{b0} offen offset:{1024*i} lds', ('d', st))
        for i in range(4):
            pre = f's_add_u32 m0, s{sLb}, {Bslot(slot)}\n' if i == 0 else ''
            A.push(pre + f'buffer_load_dwordx4 v{vWo+i}, s[{sW1}:{sW1+3}], s{b1} offen offset:{1024*i} lds', ('d', st))
        if now: A.flush()
    dma(0, now=True)
    A(f"""v_lshrrev_b32 v{t0}, 2, v1
    v_mul_u32_u24 v{t0}, 3584, v{t0}
    v_and_b32 v{t1}, 3, v1
    v_mul_u32_u24 v{t1}, 72, v{t1}
    v_add_u32 v{t0}, v{t0}, v{t1}
    s_add_u32 s{sT0}, s{sCh0}, 1
    s_and_b32 s{sT0}, s{sT0}, 7
    s_mul_i32 s{sT0}, s{sT0}, {64*3584}
    s_add_u32 s{sT0}, s{sT0}, s{sWb}
    buffer_load_dword v47, v{t0}, s[{sW1}:{sW1+3}], s{sT0} offen""", 't1')
    A0.fence(); A0.raw('; @@SPLIT')
    srd(A, sWS, pWS, WS_SIZE); srd(A, sW2, pW2, 1792 * 1024); srd(A, sOUT, pOUT, 2048 * 1024)
    A(f"""v_bfe_u32 v{t0}, v1, 4, 1
    v_bfe_u32 v{t1}, v1, 2, 2
    v_lshl_or_b32 v{t2}, v{t0}, 2, v{t1}
    v_lshl_add_u32 v{t0}, v{t0}, 3, v{t1}
    v_lshrrev_b32 v{t1}, 5, v1
    v_lshl_add_u32 v{t0}, v{t1}, 2, v{t0}
    v_and_b32 v{t1}, 3, v1
    v_lshlrev_b32 v{t1}, 3, v{t1}
    v_lshl_add_u32 v{t3}, v{t0}, 8, v{t1}
    s_add_u32 s{sT0}, s{sLb}, {Bslot(0)}
    v_add_u32 v{t3}, s{sT0}, v{t3}""")
    for P in range(7): A(f'v_xor_b32 v{t0}, {P}, v{t2}\nv_lshl_add_u32 v{vWr+P}, v{t0}, 5, v{t3}')
    for i in range(4): A(f'v_mov_b32 v{vOne+i}, 0x3f803f80')
    A(f"""v_lshlrev_b32 v{vH}, 4, v1
    v_add_u32 v{vH+1}, {57344}, v{vH}
    v_add_u32 v{vH+2}, {2*57344}, v{vH}
    v_add_u32 v{vH+3}, {3*57344}, v{vH}
    s_mul_i32 s{sH}, s{sRB2}, {4*57344}
    s_mul_i32 s{sT0}, s{hw}, {14*1024}
    s_add_u32 s{sH}, s{sH}, s{sT0}
    v_lshrrev_b32 v{t0}, 3, v1
    v_bfe_u32 v{t1}, v1, 4, 1
    v_lshlrev_b32 v{t1}, 1, v{t1}
    v_and_b32 v{t2}, 7, v1
    v_xor_b32 v{t2}, v{t2}, v{t1}
    v_lshlrev_b32 v{t2}, 4, v{t2}
    v_lshl_add_u32 v{vW}, v{t0}, 10, v{t2}
    v_xor_b32 v{t3}, 64, v{vW}
    v_add_u32 v{vW+1}, 7168, v{t3}
    v_add_u32 v{vW+2}, 14336, v{vW}
    v_add_u32 v{vW+3}, 21504, v{t3}
    s_mul_i32 s{sWo}, s{hw}, {14*32768}
    s_lshl_b32 s{sT0}, s{sCB2}, 7
    s_add_u32 s{sWo}, s{sWo}, s{sT0}
    s_mov_b32 s{sKw}, s{sK0}
    s_mov_b32 s{sK}, s{sK0}
    v_lshrrev_b32 v{t0}, 4, v1
    v_bfe_u32 v{t1}, v1, 2, 2
    v_lshl_add_u32 v{t0}, v{t0}, 3, v{t1}
    v_bfe_u32 v{t1}, v1, 3, 2
    v_and_b32 v{t2}, 3, v1
    v_lshlrev_b32 v{t2}, 3, v{t2}
    v_lshl_add_u32 v{t2}, v{t0}, 7, v{t2}
    v_add_u32 v{t2}, s{sLb}, v{t2}""")
    for T in range(4): A(f'v_xor_b32 v{t3}, {T}, v{t1}\nv_lshl_add_u32 v{vR+T}, v{t3}, 5, v{t2}')
    for T in range(4): A(f'v_add_u32 v{vR+4+T}, 65536, v{vR+T}')
    ST('d01')
    vSy, vI1 = 6, 7
    A(f'v_mov_b32 v{vSy}, {LSY}\nv_mov_b32 v{vI1}, 1')
    def colsum(st):
        slot = st & 3
        vwait(('d', st))
        for P in range(7): A(f'ds_read_b64_tr_b16 {v(vFw+4*P+2*(st&1),2)}, v{vWr+P} offset:{slot*16384}')
        A('s_waitcnt lgkmcnt(0)')
        if st == 7:
            for P in range(4, 7): A(f'v_mov_b32 v{vFw+4*P}, 0\nv_mov_b32 v{vFw+4*P+1}, 0')
        for P in range(7):
            if (P < 4 and st & 1) or (P >= 4 and (not st & 1 or st == 7)):
                A(f'v_mfma_f32_16x16x32_bf16 {v(vCS+4*P,4)}, {v(vOne,4)}, {v(vFw+4*P,4)}, {"0" if st <= 1 else v(vCS+4*P,4)}')
    for P in range(4, 7): A(f'v_mov_b32 v{vFw+4*P+2}, 0\nv_mov_b32 v{vFw+4*P+3}, 0')
    ST('pre')
    NREG = cfg.get('nreg', 7)
    WR = 192 - 16 * NREG
    def ldW(i):
        for e in range(4):
            pre = f's_add_u32 m0, s{sLb}, {RING[i % 6]}\ns_lshl_b32 s{b0}, s{sKw}, 15\ns_add_u32 s{b0}, s{sWo}, s{b0}\ns_add_u32 s{sKw}, s{sKw}, 1\ns_cmp_eq_u32 s{sKw}, 14\ns_cselect_b32 s{sKw}, 0, s{sKw}\n' if e == 0 else ''
            A.push(pre + f'buffer_load_dwordx4 v{vW+e}, s[{sW2}:{sW2+3}], s{b0} offen offset:{1024*e} lds', ('w', i))
    def rdW(i, dst):
        base = RING[i % 6]; hi = 4 if base >= 65536 else 0; base &= 65535
        for T in range(4):
            for hh in range(2):
                A(f'ds_read_b64_tr_b16 {v(dst+4*T+2*hh,2)}, v{vR+hi+T} offset:{base+hh*512}')
    nw = [0]
    def ldWn(n):
        for _ in range(n): ldW(nw[0]); nw[0] += 1
    def cert(st):
        vwait(('d', st)); lds_inc(A0, vSy, CERT(st), vI1); ST(f'c{st}')
    def wdone(st): lds_wait(A0, f'L_DN{st}', vSy, DONE(st), 4, t3, sT0, sleep=1); ST(f'w{st}')
    def pop3():
        for _ in range(3):
            if A.q: A.pop()
    def bar(st):
        if st < 8: vwait(('d', st))
        ST(f'b{st}'); A0('s_barrier'); ST(f'B{st}')
    A(f"""s_lshl_b32 s{sT0}, s{sK0}, 5
    s_add_u32 s{sT0}, s{sT0}, 64
    s_mul_i32 s{sT1}, s{hw}, {448*1024}
    s_lshl_b32 s{sT2}, s{sCB2}, 7
    s_add_u32 s{sT1}, s{sT1}, s{sT2}
    v_min_u32 v{t0}, 47, v1
    v_add_u32 v{t0}, s{sT0}, v{t0}
    v_subrev_u32 v{t1}, 448, v{t0}
    v_cmp_gt_u32 vcc, 448, v{t0}
    v_cndmask_b32 v{t0}, v{t1}, v{t0}, vcc
    v_lshl_add_u32 v46, v{t0}, 10, s{sT1}""")
    sF1 = 16
    A(f"""v_and_b32 v{t0}, 31, v1
    v_lshlrev_b32 v2, 3, v{t0}
    s_lshl_b32 s{sE}, s{sRB}, 10
    s_lshl_b32 s{sT1}, s{hw}, 8
    s_add_u32 s{sE}, s{sE}, s{sT1}
    s_add_u32 s{sE}, s{sE}, {WS_GR}
    s_lshr_b32 s{sF1}, s{sDP}, 6
    s_lshl_b32 s{sF1}, s{sF1}, 10
    s_add_u32 s{sF1}, s{sF1}, s{sT1}
    s_add_u32 s{sF1}, s{sF1}, {WS_F1}
    v_lshlrev_b32 v41, 2, v1""")
    A.flush()
    vwait('par')
    ST('par')
    KT = kgen_tables(kP, PC, PR, YS)
    nk = cfg.get('d1at', 170)
    A('\n'.join(KT[:nk]))
    A.every = 12; dma(1)
    A('\n'.join(KT[nk:]))
    A.flush(); A.every = cfg.get('every', 6)
    ST('kt')
    nd = [2]
    for _ in range(cfg.get('pre', 1)): dma(nd[0], now=True); nd[0] += 1
    AHEAD = cfg.get('ahead', [1, 1, 1, 1, 1])
    O = 164; R = 116; RA = 88
    def pk(d, a, b): return f'v_cvt_pk_f16_f32 v{d}, v{a}, v{b}'
    sCh, sHF, sKb = 18, 19, 20
    def kaddr():
        A(f"""s_lshr_b32 s{sCh}, s{hw}, 1
        s_and_b32 s{sHF}, s{hw}, 1
        s_lshl_b32 s{sT0}, s{sCh}, 16
        s_lshl_b32 s{sT1}, s{sHF}, 13
        s_add_u32 s{sT2}, s{sT0}, s{sT1}
        s_add_u32 s{sT2}, s{sT2}, {Aslot(2)}
        v_lshl_add_u32 v{WA}, v1, 2, s{sT2}""")
        L = []
        L += f"""v_and_b32 v{t0}, 31, v1
        v_lshrrev_b32 v{t1}, 5, v1
        v_and_b32 v{t2}, 15, v1
        v_xor_b32 v{t1}, v{t1}, v{t2}
        v_lshlrev_b32 v{t1}, 4, v{t1}
        v_lshl_add_u32 v{t1}, v{t0}, 8, v{t1}
        v_add_u32 v{RA}, s{sT2}, v{t1}
        v_add_u32 v96, s{sT2}, v13
        v_xor_b32 v97, 0x2000, v96""".split('\n')
        L += [f'v_xor_b32 v{RA+sg}, {sg*32}, v{RA}' for sg in range(1, 8)]
        L += f"""s_mul_i32 s{sKb}, s{sCh}, {4*KCP}
        s_add_u32 s{sKb}, s{sKb}, {LKC}
        s_lshl_b32 s{sT0}, s{sCh}, 2
        v_add_u32 v{R}, s{sT0}, v{vSy}
        v_mov_b32 v{R+4}, 0
        v_mov_b32 v{R+5}, 0
        v_mov_b32 v{R+6}, 0
        v_mov_b32 v{R+7}, 0
        v_lshrrev_b32 v{R+1}, 2, v1
        v_mul_u32_u24 v{R+1}, {KCP}, v{R+1}
        v_and_b32 v{t2}, 3, v1
        v_lshl_add_u32 v{R+1}, v{t2}, 4, v{R+1}
        v_add_u32 v{R+1}, s{sKb}, v{R+1}
        s_mul_i32 s{sT0}, s{sCh}, {UP}
        s_add_u32 s{sT0}, s{sT0}, {LU}
        v_add_u32 v{R+2}, s{sT0}, v13
        s_add_u32 s{sT0}, s{sKb}, 1008
        v_sub_u32 v{R+3}, s{sT0}, v13
        v_and_b32 v{t3}, 1, v1
        v_cmp_eq_u32 s[24:25], 1, v{t3}""".split('\n')
        W = []
        for i in range(16):
            if i: W.append(f'v_xor_b32 v{WA+i}, {i*16}, v{WA}')
            if i < cfg.get('cearly', 0): W.append(wr1(PC, i))
            W += L[:2]; del L[:2]
            if cfg.get('cpace', 0): W.append(f's_sleep {cfg.get("cpace", 1)}')
        A('\n'.join(W + L))
    def wr1(P, i): return f'ds_write2st64_b32 v{WA+i}, v{P+i}, v{P+i+16} offset0:{i} offset1:{i+16}'
    def trd(P):
        for sg in range(8): A(f'ds_read_b128 {v(P+4*sg,4)}, v{RA+sg}')
    def kphase():
        for i in range(cfg.get('cearly', 0), 16): A(wr1(PC, i))
        trd(PC)
        for i in range(16): A(wr1(PR, i))
        trd(PR)
        for sg in range(8):
            A(f's_waitcnt lgkmcnt({7-sg})')
            A(f'v_mfma_f32_32x32x16_f16 {v(D,16)}, {v(PR+4*sg,4)}, {v(PC+4*sg,4)}, {"0" if sg == 0 else v(D,16)}')
        A(f"""ds_write_b32 v{R}, v{YS} offset:40
        s_mov_b64 exec, 0xffff
        ds_write_b128 v{R+1}, {v(R+4,4)} offset:4096
        s_mov_b64 exec, 0x3fffffff
        ds_write_b128 v{R+2}, {v(R+4,4)}
        s_mov_b64 exec, -1""")
        for i in range(4): A(f'ds_write_b128 v96, {v(D+4*i,4)} offset:{1024*i}')
        ST('k1')
        lds_inc(A0, R, SY_KG, vI1)
        UWRITE()
        lds_wait(A0, 'L_WKG', R, SY_KG, 2, t3, sT0)
        for i in range(4): A(f'ds_read_b128 {v(PC+4*i,4)}, v97 offset:{1024*i}')
        A0(f's_cmp_eq_u32 s{sHF}, 1\ns_waitcnt lgkmcnt(0)')
        A.fwd_branch('s_cbranch_scc1 L_KH1')
        def chunk(c, E):
            if c == 0: return [pk(E, D+7, D+6), pk(E+1, D+5, D+4), pk(E+2, D+3, D+2), pk(E+3, D+1, D+0)]
            if c == 1: return [pk(E, D+10, D+10), pk(E+1, D+9, D+9), pk(E+2, D+9, D+8), pk(E+3, D+8, D+8)]
            lo, hi = D + 11 + 2 * (c - 2), D + 12 + 2 * (c - 2)
            return [f'v_cndmask_b32 v{t3}, v{lo}, v{hi}, s[24:25]', pk(E, hi, hi), pk(E+1, hi, t3), pk(E+2, lo, lo), pk(E+3, lo, lo)]
        for hf in range(2):
            if hf: A.label('L_KH1')
            need = range(0, 11) if hf == 0 else range(9, 15)
            for i in need: A0(f'v_add_f32 v{D+i}, v{D+i}, v{PC+i}')
            Es = {c: O + 24 * (c & 1) for c in range(4)}
            PV = 160
            if hf == 0: A0(f'v_mov_b32 v{PV}, 0\nv_mov_b32 v{PV+1}, 0')
            else: A0('\n'.join(chunk(1, PV)[:2]))
            for c in (2 * hf, 2 * hf + 1): A0('\n'.join(chunk(c, Es[c])))
            for c in (2 * hf, 2 * hf + 1):
                E = Es[c]; prev = PV if c == 2 * hf else Es[c - 1]
                A0(f'ds_write_b128 v{R+3}, {v(E,4)} offset:{1024*(3-c)}')
                for j in range(2): A0(f'v_mov_b32_dpp v{E+4+j}, v{prev+j} wave_ror:1 row_mask:0xf bank_mask:0xf')
                for j in range(2): A0(f'v_mov_b32_dpp v{E+4+j}, v{E+j} wave_shr:1 row_mask:0xf bank_mask:0xf')
                c1, c2, c3 = E + 8, E + 12, E + 16
                for i in range(4): A0(f'v_alignbit_b32 v{c1+i}, v{E+i+1}, v{E+i}, 16')
                A0(f'ds_write_b128 v{R+3}, {v(c1,4)} offset:{1024*(3-c)+KCP}')
                for i in range(4): A0(f'v_mov_b32 v{c2+i}, v{E+i+1}')
                A0(f'ds_write_b128 v{R+3}, {v(c2,4)} offset:{1024*(3-c)+2*KCP}')
                for i in range(4): A0(f'v_alignbit_b32 v{c3+i}, v{E+i+2}, v{E+i+1}, 16')
                A0(f'ds_write_b128 v{R+3}, {v(c3,4)} offset:{1024*(3-c)+3*KCP}')
            if hf == 0: A.fwd_branch('s_branch L_KH2')
        A.label('L_KH2')
        lds_inc(A0, vSy, SY_U, vI1)
        ST('u')
    for k in range(6):
        bar(k)
        for _ in range(AHEAD[k] if k < len(AHEAD) else 1):
            if nd[0] < 8:
                assert nd[0] <= k + 3
                dma(nd[0]); nd[0] += 1
        if k == 5: ldWn(2)
        pop3()
        if k == 0: A(f'ds_read_b32 v15, v{vSy} offset:32')
        for c in cfg.get('cs', {0: [0], 1: [1], 2: [2, 3], 3: [4], 4: [5], 5: [6, 7]})[k]: colsum(c)
        if k == 0: A(f'v_readfirstlane_b32 s{sNon}, v15')
        A.flush()
        if k == 4: A(f'buffer_load_dwordx2 v[4:5], v2, s[{sWS}:{sWS+3}], s{sE} offen{SC}', 'gl'); A(f'buffer_load_dword v40, v41, s[{sWS}:{sWS+3}], s{sF1} offen{SC}', 'f1')
    for P in range(7): A(f'v_mov_b32 v{vFw+P}, v{vCS+4*P}')
    A(f"""s_lshl_b32 s{sT0}, s{hw}, 9
    s_add_u32 s{sT0}, s{sT0}, {LCSP}
    v_lshl_add_u32 v{t1}, v1, 5, s{sT0}
    s_mov_b64 exec, 0xffff
    ds_write_b128 v{t1}, {v(vFw,4)}
    ds_write_b128 v{t1}, {v(vFw+4,4)} offset:16
    s_mov_b64 exec, -1
    s_waitcnt lgkmcnt(0)""")
    bar(6)
    A(f"""v_and_b32 v{t0}, 31, v1
    s_lshl_b32 s{sT0}, s{hw}, 5
    v_add_u32 v{t0}, s{sT0}, v{t0}
    v_lshlrev_b32 v{t1}, 2, v{t0}
    v_add_u32 v{t1}, {LCSP}, v{t1}""")
    for w in range(4): A(f'ds_read_b32 v{vCS+w}, v{t1} offset:{512*w}')
    A(f"""v_and_b32 v{t1}, 7, v{t0}
    v_lshrrev_b32 v{t0}, 3, v{t0}
    v_lshl_add_u32 v{t0}, v{t1}, 4, v{t0}
    v_lshlrev_b32 v{t0}, 2, v{t0}
    v_add_u32 v{t0}, {LCS}, v{t0}""")
    gpoll(A0, 'L_PG', f'buffer_load_dwordx2 v[4:5], v2, s[{sWS}:{sWS+3}], s{sE} offen{SC}', [5], first=lambda: vwait('gl'))
    A(f"""v_and_b32 v{t2}, 0xffff0000, v4
    v_lshlrev_b32 v{t3}, 16, v4
    v_rcp_f32 v{t2}, v{t2}
    s_lshl_b32 s{sT0}, s{hw}, 8
    s_add_u32 s{sT0}, s{sT0}, {LSTAT}
    v_add_u32 v{t1}, s{sT0}, v2
    v_mul_f32 v{t2}, {NLOG2E}, v{t2}
    v_mul_f32_e64 v{t3}, -v{t3}, v{t2}
    ds_write_b64 v{t1}, v[{t2}:{t3}]
    s_waitcnt lgkmcnt(1)
    v_add_f32 v{vCS}, v{vCS}, v{vCS+1}
    v_add_f32 v{vCS+2}, v{vCS+2}, v{vCS+3}
    v_add_f32 v{vCS}, v{vCS}, v{vCS+2}
    ds_write_b32 v{t0}, v{vCS}""")
    lds_inc(A0, vSy, CERT(8), vI1)
    ST('B8')
    UG = 16; sU0, sU1, sUok = 21, 22, 23
    A(f"""v_lshrrev_b32 v{t0}, 1, v1
    v_and_b32 v{t1}, 1, v1
    v_lshlrev_b32 v43, 4, v{t1}
    v_lshl_add_u32 v43, v{t0}, 13, v43
    s_lshl_b32 s{sU0}, s{sDP}, 5
    s_lshl_b32 s{sT1}, s{hw}, 19
    s_add_u32 s{sU0}, s{sU0}, s{sT1}
    s_add_u32 s{sU0}, s{sU0}, {WS_XN}
    s_add_u32 s{sU1}, s{sU0}, {32*8192}
    v_mul_u32_u24 v{t1}, {UP}, v{t1}
    v_lshl_add_u32 v44, v{t0}, 4, v{t1}
    s_lshl_b32 s{sT0}, s{hw}, 10
    s_add_u32 s{sT0}, s{sT0}, {LU+480}
    v_add_u32 v44, s{sT0}, v44""")
    UL = f'buffer_load_dwordx4 {v(UG,4)}, v43, s[{sWS}:{sWS+3}], s{sU0} offen{SC}\nbuffer_load_dwordx4 {v(UG+4,4)}, v43, s[{sWS}:{sWS+3}], s{sU1} offen{SC}'
    vwait('f1')
    A0(f'v_cmp_ne_u32 vcc, s{sNon}, v40\ns_mov_b32 s{sUok}, 0\ns_cmp_eq_u64 vcc, 0')
    A.fwd_branch('s_cbranch_scc0 L_NOU')
    A0(UL + f'\ns_mov_b32 s{sUok}, 1')
    A.label('L_NOU')
    vq.add('u', 2)
    ST('p1')
    A(f'buffer_load_dword v47, v46, s[{sW2}:{sW2+3}], 0 offen', 'tw')
    def UWRITE():
        vwait('u')
        A0(f's_cmp_eq_u32 s{sUok}, 1')
        A.fwd_branch('s_cbranch_scc1 L_UOK')
        gpoll(A0, 'L_P1', f'buffer_load_dword v40, v41, s[{sWS}:{sWS+3}], s{sF1} offen{SC}', [40])
        A0(UL + '\ns_waitcnt vmcnt(0)')
        A.label('L_UOK')
        A(f'ds_write_b128 v44, {v(UG,4)}\nds_write_b128 v44, {v(UG+4,4)} offset:512')
    if cfg.get('dbgw'):
        vwait(('w', 1)); ST('dw1'); vwait('u'); ST('du'); vwait('tw'); ST('dtw')
    kaddr()
    lds_wait(A0, 'L_WD7a', vSy, DONE(7), 4, t3, sT0, sleep=1)
    A0(f's_setprio {cfg.get("kprio", 3)}')
    ST('k0')
    kphase()
    A0(f's_setprio {cfg.get("wprio", 0)}')
    if cfg.get('stn', 4): lds_wait(A0, 'L_WST', vSy, SY_ST, cfg.get('stn', 4), t3, sT0, sleep=1)
    ST('st')
    ldWn(2); A.flush()
    lds_wait(A0, 'L_WXS', vSy, SY_U, 4, t3, sT0)
    ldWn(2); A.flush()
    D2 = cfg.get('d2', 5)
    NW = NREG + 6
    A(f"""s_lshl_b32 s{sE}, s{sRB2}, 7
    s_lshl_b32 s{sT1}, s{hw}, 5
    s_add_u32 s{sE}, s{sE}, s{sT1}
    s_add_u32 s{sE}, s{sE}, {WS_F2}
    v_and_b32 v{t0}, 7, v1
    v_lshlrev_b32 v{t0}, 2, v{t0}""")
    F2L = f'buffer_load_dword v{t2}, v{t0}, s[{sWS}:{sWS+3}], s{sE} offen{SC}'
    for i in range(NREG + 1):
        if i < NREG:
            vwait(('w', i))
            ST(f'W{i}')
            rdW(i, WR + 16 * i)
        while nw[0] < NW and nw[0] <= i + D2 and nw[0] - 6 <= i - 1:
            if nw[0] >= 6: A0(f's_waitcnt lgkmcnt({8 if i < NREG else 0})')
            if nw[0] == NW - cfg.get('f2early', 1): A(F2L, 'f2')
            ldWn(1); A.flush()
    assert nw[0] == NW
    A.flush()
    load_x_final(A0); vq.add('x')
    ST('wpre')
    gpoll(A0, 'L_P2', F2L, [t2], sleep=cfg.get('p2sleep', 4), first=lambda: vwait('f2'))
    if cfg.get('inv'): A0('buffer_inv sc1'); vq.add('inv')
    ST('p2')
    if cfg.get('hprio'): A(f's_setprio {cfg["hprio"]}')
    ACC = 192
    free = [16, 32] + list(range(64, WR, 16))
    hbuf = {}
    nh = 0
    def ldH():
        nonlocal nh
        if nh >= 14 or not free: return
        b = free.pop(0); hbuf[nh] = b
        for q in range(4):
            pre = f's_lshl_b32 s{b1}, s{sK}, 10\ns_add_u32 s{b1}, s{sH}, s{b1}\ns_add_u32 s{sK}, s{sK}, 1\ns_cmp_eq_u32 s{sK}, 14\ns_cselect_b32 s{sK}, 0, s{sK}\n' if q == 0 else ''
            A.push(pre + f'buffer_load_dwordx4 {v(b+4*q,4)}, v{vH+q}, s[{sWS}:{sWS+3}], s{b1} offen{cfg.get("hsc", SC)}', ('h', nh))
        nh += 1
    while free: ldH()
    A.flush()
    A0(f"""v_and_b32 v2, 15, v1
    v_lshrrev_b32 v3, 4, v1
    v_xor_b32 v3, v3, v2
    v_lshlrev_b32 v3, 4, v3
    v_lshl_add_u32 v2, v2, 8, v3
    v_add_u32 v2, s{sLb}, v2
    v_xor_b32 v3, 64, v2
    v_xor_b32 v4, 128, v2
    v_xor_b32 v5, 192, v2""")
    A.every = cfg.get('every2', 6)
    wfrag = {i: WR + 16 * i for i in range(NREG)}
    wtmp = []; pend = []
    def rdWl(i, dst):
        base = RING[i % 6]; hi = 4 if base >= 65536 else 0; base &= 65535
        return [f'ds_read_b64_tr_b16 {v(dst+4*T+2*hh,2)}, v{vR+hi+T} offset:{base+hh*512}' for T in range(4) for hh in range(2)]
    LP = cfg.get('lpos', [0, 8])
    for i in range(14):
        if i == cfg.get('trig', 10):
            A0(f'ds_write_b32 v{vSy}, v{vI1} offset:{SY_TRIG}')
        rd = []
        vwait(('h', i))
        ST(f'h{i}')
        if i >= NREG:
            A0('s_waitcnt lgkmcnt(0)')
            if nw[0] < 14: ldWn(1)
        if NREG <= i + 1 < 14:
            vwait(('w', i + 1))
            wfrag[i + 1] = wtmp.pop(0); rd = rdWl(i + 1, wfrag[i + 1])
        n = 0
        per = -(-len(A.q) // len(LP))
        for T in range(4):
            for q in range(4):
                a = ACC + 16 * T + 4 * q
                A0(f'v_mfma_f32_16x16x32_bf16 {v(a,4)}, {v(wfrag[i]+4*T,4)}, {v(hbuf[i]+4*q,4)}, {"0" if i == 0 else v(a,4)}')
                if n in LP:
                    for _ in range(per):
                        if A.q: A.pop()
                elif rd: A0(rd.pop(0))
                if i == 13:
                    pend.append(f'ds_write_b128 v{2+T}, {v(a,4)} offset:{PART[q]}')
                    if len(pend) > 4: A0(pend.pop(0))
                n += 1
        if i == 13: A0('\n'.join(pend))
        assert not rd
        A.flush()
        free.append(hbuf[i])
        if i >= NREG - 3: wtmp.append(wfrag[i])
        else: free.append(wfrag[i])
        for _ in range(2):
            if nh - (i + 1) < cfg.get('hd', 5): ldH()
    ST('g2')

def gen_final(A, cfg, ST):
    A.label('L_FINAL')
    t0, t1, t2, t3 = 4, 5, 6, 7
    PB = 16; SV = 48; E = 52; XU = 60; SU = 68
    A(f"""v_lshrrev_b32 v{t0}, 3, v0
    v_and_b32 v{t1}, 7, v0
    v_and_b32 v2, 15, v{t0}
    v_lshlrev_b32 v3, 1, v{t1}
    v_xor_b32 v3, v3, v2
    v_lshlrev_b32 v3, 4, v3
    v_lshl_add_u32 v{t2}, v2, 8, v3
    v_lshrrev_b32 v2, 7, v0
    v_lshl_add_u32 v{t2}, v2, 14, v{t2}
    v_xor_b32 v{t3}, 16, v{t2}
    v_bfe_u32 v3, v0, 5, 3
    v_xor_b32 v{t1}, v{t1}, v3
    v_lshlrev_b32 v{t1}, 4, v{t1}
    v_lshl_add_u32 v{t1}, v{t0}, 7, v{t1}
    v_add_u32 v{t1}, {LS}, v{t1}
    s_mov_b32 s{sM0}, {NLOG2E}
    s_mov_b32 s{sM0+1}, {NLOG2E}
    s_waitcnt vmcnt(0) lgkmcnt(0)
    s_barrier""")
    for w in range(4):
        for hh in range(2): A(f'ds_read_b128 {v(PB+8*w+4*hh,4)}, v{t2+hh} offset:{w*4096}')
    A(f'ds_read_b128 {v(SV,4)}, v{t1}')
    for j in range(4): A(f'v_lshlrev_b32 v{XU+2*j}, 16, v{vX+j}\nv_and_b32 v{XU+2*j+1}, 0xffff0000, v{vX+j}')
    A('s_waitcnt lgkmcnt(5)')
    for j in range(4): A(f'v_pk_add_f32 {v(PB+2*j,2)}, {v(PB+2*j,2)}, {v(PB+8+2*j,2)}')
    A('s_waitcnt lgkmcnt(1)')
    for j in range(4): A(f'v_pk_add_f32 {v(PB+16+2*j,2)}, {v(PB+16+2*j,2)}, {v(PB+24+2*j,2)}')
    for j in range(4): A(f'v_pk_add_f32 {v(PB+2*j,2)}, {v(PB+2*j,2)}, {v(PB+16+2*j,2)}')
    for j in range(4): A(f'v_pk_mul_f32 {v(E+2*j,2)}, {v(PB+2*j,2)}, s[{sM0}:{sM0+1}]')
    for j in range(8): A(f'v_exp_f32 v{E+j}, v{E+j}')
    for j in range(4): A(f'v_pk_add_f32 {v(E+2*j,2)}, {v(E+2*j,2)}, 1.0 op_sel_hi:[1,0]')
    for j in range(8): A(f'v_rcp_f32 v{E+j}, v{E+j}')
    A('s_waitcnt lgkmcnt(0)')
    for j in range(4): A(f'v_lshlrev_b32 v{SU+2*j}, 16, v{SV+j}\nv_and_b32 v{SU+2*j+1}, 0xffff0000, v{SV+j}')
    for j in range(4): A(f'v_pk_mul_f32 {v(PB+2*j,2)}, {v(PB+2*j,2)}, {v(E+2*j,2)}')
    for j in range(4): A(f'v_pk_fma_f32 {v(PB+2*j,2)}, {v(PB+2*j,2)}, {v(SU+2*j,2)}, {v(XU+2*j,2)}')
    for j in range(4): A(f'v_cvt_pk_bf16_f32 v{SV+j}, v{PB+2*j}, v{PB+2*j+1}')
    A(f'buffer_store_dwordx4 {v(SV,4)}, v{vXo}, s[{sOUT}:{sOUT+3}], 0 offen{cfg.get("outf", " sc1")}')
    ST.dump(sWS, 100, 101)

if __name__ == '__main__':
    out = sys.argv[1]
    cfg = eval(sys.argv[2]) if len(sys.argv) > 2 else {}
    PRESET = {1: dict(H=['ld','par','kt','B0','B4','B8','u','st','wpre','p2','g2','y'], M=['row','xn','kg','B0','B4','g1','epi','cv0','f2','cv1','f3','p3']),
              2: dict(H=['b0','b1','b2','b3','b4','b5','b6','b7','b8','p1','u','wpre'], M=['kg','B0','B1','B2','B3','B4','B5','B6','B7','B8','g1','epi'])}
    PRESET[3] = dict(H=['wpre','p2','g2'], M=['B0','g1','epi','f2','cv1','p3'])
    PRESET[4] = dict(H=['u','st','W0','W3','W6','wpre','p2','h0','h2','h5','h9','g2'], M=['g1','epi','cv0','f2','cv1','f3','p3'])
    PRESET[5] = dict(H=['kt','B0','B4','B8','k0','k1','u','st','wpre','p2','h2','g2'], M=['kg','g1','epi','f2a','cv0','f2','cv1','f3','p3'])
    PRESET[6] = dict(H=['p2','h0','h1','h2','h3','h4','h6','h8','h10','h12','h13','g2'], M=['cv1','f3','p3'])
    PRESET[7] = dict(H=['B5','B6','B8','p1','dw1','du','dtw','k0','u','wpre','p2','g2'], M=['g1','epi'])
    if cfg.get('stamps') in PRESET:
        cfg['stamps'] = PRESET[cfg['stamps']]
        print('H:', ' '.join('%6s' % a for a in ['t0'] + cfg['stamps']['H'] + ['end']))
        print('M:', ' '.join('%6s' % a for a in ['t0'] + cfg['stamps']['M'] + ['end']))
    MINSLEEP[0] = cfg.get('minsleep', 0)
    A = Asm()
    head = open('cdna_kernels/%s.s.ref' % NAME).read().split('; Override')[0]
    A.raw('.amdgcn_target "amdgcn-amd-amdhsa--gfx950"\n.text')
    k = gen(A, cfg)
    open(out, 'w').write(head + '; @launch grid=(256,1,1) block=(512,1,1) lds=163840\n' + A.text() + '.section .rodata,"a"\n.p2align 6\n' + k)
```

```python
import sys, math, struct
from asmlib import Asm
from gen import NAME, f32, LOG2E, NLOG2E, INV2PI, v, s, srd, kernel_head, kd, cmul, bf16r, interleave

WS_H = 0
WS_XN = 0x700000
WS_SP = 0x900000
WS_GR = 0xD00000
WS_F1 = WS_GR + 0x4000
WS_F2 = WS_F1 + 0x1000
WS_F3 = WS_F2 + 0x1000
WS_EP = WS_F3 + 0x400
WS_STAMP = 0xD10000
WS_SIZE = 0xE00000
SC = ' sc1'

def Aslot(i): return i * 16384
def Bslot(i): return 65536 + i * 16384
LC = 131072
LDD = LC
LNB = LC + 16384; LNP = 1088
TOP = LC + 28672
LSTAT, LCS, LSY = TOP, TOP + 3072, TOP + 3584
LCSP = LNB
LKC = Bslot(3); KCP = 4160
LEX = LKC
LU = LKC + 8 * KCP; UP = 4608
LS = LU
RING = [Aslot(0), Bslot(0), Aslot(1), Bslot(1), Aslot(2), Bslot(2)]
PART = [Aslot(0), Aslot(1), Aslot(2), Aslot(3)]
SY_U, SY_H, SY_K, SY_CV, SY_EX, SY_S, SY_TRIG = 0, 4, 8, 16, 20, 24, 28
SY_XN, SY_XS, SY_KG, SY_ST = 48, 52, 56, 68
def CERT(st): return 64 + 4 * st
def DONE(st): return 128 + 4 * st

MINSLEEP = [0]
class Q:
    def __init__(s, A, name, mx): s.A, s.name, s.mx, s.q = A, name, mx, []
    def add(s, tag, n=1): s.q += [tag] * n
    def wait(s, tag):
        if tag not in s.q: return
        i = len(s.q) - 1 - s.q[::-1].index(tag)
        n = len(s.q) - 1 - i
        n = min(n, s.mx)
        s.A(f's_waitcnt {s.name}({n})'); s.q = s.q[len(s.q) - n:] if n else []
    def all(s):
        s.A(f's_waitcnt {s.name}(0)'); s.q = []

class BG:
    def __init__(s, A, vq, every): s.A, s.vq, s.every, s.q, s.n, s.hold = A, vq, every, [], 0, 0
    def push(s, text, tag): s.q.append((text, tag))
    def pop(s):
        t, tag = s.q.pop(0); s.A(t); s.vq.add(tag); s.n = 0
    def flush(s, tag=None):
        while s.q and (tag is None or any(t == tag for _, t in s.q)): s.pop()
    def __call__(s, text, tag=None):
        for line in text.strip().split('\n'):
            l = line.strip()
            if not l: continue
            if 'exec' in l.split(',')[0] and '-1' not in l: s.hold = 1
            if l.startswith('s_waitcnt lgkmcnt') and not s.hold:
                for _ in range(2):
                    if s.q: s.pop()
            s.A(l)
            if l.startswith(('buffer_', 'global_')):
                assert tag is not None, l
                s.vq.add(tag)
            if l.startswith('s_mov_b64 exec, -1'): s.hold = 0
            w = 3 if l.startswith('v_mfma') else 1
            s.n += w
            if s.q and not s.hold and s.n >= s.every and not l.startswith(('s_cmp', 's_sub_u32', 's_add_u32', 'v_cmp', 's_or_b64', 's_bitcmp')): s.pop()
    def __getattr__(s, k): return getattr(s.A, k)

class Stamps:
    def __init__(self, A, on): self.A, self.on, self.role = A, on, 'H'
    def start(self):
        if self.on: self.A('s_memrealtime s[70:71]\ns_memtime s[72:73]')
    def __call__(self, name):
        if self.on and name in self.on[self.role]:
            i = 1 + self.on[self.role].index(name)
            self.A(f's_memtime s[{72+2*i}:{73+2*i}]')
    def dump(self, sWS, vt, vo):
        if not self.on: return
        A = self.A
        A('s_waitcnt vmcnt(0)\ns_memtime s[98:99]\ns_memrealtime s[100:101]\ns_waitcnt lgkmcnt(0)')
        for i in range(16): A(f'v_writelane_b32 v{vt}, s{70+2*i}, {i}')
        A(f"""v_lshrrev_b32 v{vo}, 6, v0
        v_lshlrev_b32 v{vo}, 7, v{vo}
        v_and_b32 v{vo+1}, 63, v0
        v_lshl_add_u32 v{vo}, v{vo+1}, 2, v{vo}
        s_lshl_b32 s70, s2, 10
        s_add_u32 s70, s70, {WS_STAMP}
        s_mov_b64 exec, 0xffff
        buffer_store_dword v{vt}, v{vo}, s[{sWS}:{sWS+3}], s70 offen
        s_mov_b64 exec, -1""")

sX, sW1, sWS, sW2, sOUT = 4, 8, 12, 44, 48
pX, pLAR, pAIM, pCRE, pCIM, pLDT, pDSK, pW1, pW2, pOUT, pDBG, pWS = 16, 18, 20, 22, 24, 26, 28, 32, 34, 36, 38, 40
sWave, sRB, sCB, sT0, sT1, sT2, sOdd, sCh0, sDP, sNon, sCap, sRB2, sCB2 = 52, 53, 54, 55, 56, 57, 58, 59, 60, 61, 62, 63, 64
sA, sB, sC, sD, sE = 65, 66, 67, 68, 69
sK0 = 3
sM0 = 30
sM1 = 42

def lds_wait(A, name, vaddr, off, val, vt, st, sleep=0):
    A(f's_mov_b32 s{sCap}, 0x1000000')
    if sleep:
        A.fwd_branch(f's_branch {name}_R')
        A.label(name)
        A(f's_sleep {sleep}')
        A.label(name + '_R')
    else:
        A.label(name)
    A(f'''ds_read_b32 v{vt}, v{vaddr} offset:{off}
    s_waitcnt lgkmcnt(0)
    v_readfirstlane_b32 s{st}, v{vt}
    s_sub_u32 s{sCap}, s{sCap}, 1
    s_cselect_b32 s{st}, {val}, s{st}
    s_cmp_lt_u32 s{st}, {val}''')
    A.back_branch(f's_cbranch_scc1 {name}', name)

def lds_inc(A, vaddr, off, vone, rtn=None):
    A('s_mov_b64 exec, 1')
    if rtn is None: A(f'ds_add_u32 v{vaddr}, v{vone} offset:{off}')
    else: A(f'ds_add_rtn_u32 v{rtn}, v{vaddr}, v{vone} offset:{off}')
    A('s_mov_b64 exec, -1')

def gpoll(A, name, load, checks, sleep=8, first=None):
    A(f's_mov_b32 s{sCap}, 0x80000')
    if first:
        first()
        A.fwd_branch(f's_branch {name}_C')
    A.label(name)
    A(f'{load}\ns_waitcnt vmcnt(0)')
    A.label(name + '_C')
    A(f'v_cmp_ne_u32 vcc, s{sNon}, v{checks[0]}')
    for c in checks[1:]:
        A(f'v_cmp_ne_u32 s[{sM1}:{sM1+1}], s{sNon}, v{c}\ns_or_b64 vcc, vcc, s[{sM1}:{sM1+1}]')
    A(f'''s_cmp_eq_u64 vcc, 0
    s_cbranch_scc1 {name}_D
    s_sub_u32 s{sCap}, s{sCap}, 1
    s_cbranch_scc1 {name}_D
    s_sleep {sleep}''')
    A.back_branch(f's_branch {name}', name)
    A.label(name + '_D')

def x_read_addr(A, vXr, sw, t0, t1, t2):
    A(f"""v_and_b32 v{t0}, 15, v1
    v_lshrrev_b32 v{t1}, 4, v1
    v_lshrrev_b32 v{t2}, 1, v{t0}
    v_xor_b32 v{t2}, v{t2}, v{t1}
    v_lshlrev_b32 v{t2}, 4, v{t2}
    v_lshl_add_u32 v{t2}, v{t0}, 7, v{t2}
    s_lshl_b32 s{sT0}, s{sw}, 12
    v_add_u32 v{vXr}, s{sT0}, v{t2}
    v_xor_b32 v{vXr+1}, 64, v{vXr}""")

def kgen_tables(kP, PC, PR, YS):
    lar, aim, cre, cim, cre2, cim2, ldt = [kP + i for i in range(7)]
    dt, a1, w1, t2, t3 = 72, 73, 74, 78, 79
    C = 80; F1, F2, F4, F8, F256, G8, G16, G128 = 82, 84, 86, 88, 90, 92, 94, 96
    X = [98, 100, 102, 104, 106, 108, 110, 112]
    L = []
    for r in range(7): L.append(f'v_lshlrev_b32 v{kP+r}, 16, v{kP+r}')
    L += [f'v_mul_f32 v{dt}, {LOG2E}, v{ldt}', f'v_mul_f32 v{a1}, {LOG2E}, v{lar}', f'v_exp_f32 v{dt}, v{dt}', f'v_exp_f32 v{a1}, v{a1}',
          f'v_max3_f32 v{t2}, |v{cre}|, |v{cim}|, |v{cre2}|', f'v_max_f32_e64 v{t2}, v{t2}, |v{cim2}|']
    La = bf16r(dt, dt) + bf16r(a1, a1) + [f'v_mul_f32 v{a1}, v{a1}, v{dt}', f'v_mul_f32 v{w1}, v{aim}, v{dt}', f'v_mul_f32 v{a1}, {NLOG2E}, v{a1}', f'v_mul_f32 v{w1}, {INV2PI}, v{w1}']
    def direct(d, pos, ta, tb, neg=False):
        return [f'v_mul_f32 v{ta}, {f32(pos)}, v{a1}', f'v_mul_f32 v{tb}, {f32(-pos if neg else pos)}, v{w1}', f'v_exp_f32 v{ta}, v{ta}', f'v_fract_f32 v{tb}, v{tb}',
                f'v_cos_f32 v{d}, v{tb}', f'v_sin_f32 v{d+1}, v{tb}', f'v_mul_f32 v{d}, v{d}, v{ta}', f'v_mul_f32 v{d+1}, v{d+1}, v{ta}']
    La += interleave(direct(G8, 8.0, X[0], X[0] + 1, True), direct(G128, 128.0, X[1], X[1] + 1, True))
    La += interleave(direct(F1, 1.0, X[2], X[2] + 1), direct(F256, 256.0, X[3], X[3] + 1))
    Lb = []
    for r in (1, 2, 4, 8): Lb += [f'v_max_f32_dpp v{t2}, v{t2}, v{t2} row_ror:{r} row_mask:0xf bank_mask:0xf', None]
    for op in ('v_permlane16_swap_b32', 'v_permlane32_swap_b32'):
        Lb += [f'v_mov_b32 v{t3}, v{t2}', None, f'{op} v{t2}, v{t3}', f'v_max_f32 v{t2}, v{t2}, v{t3}']
    Lb += [f'v_lshrrev_b32 v{t2}, 23, v{t2}', f'v_min_u32 v{t2}, 253, v{t2}', f'v_sub_u32 v{t3}, 254, v{t2}',
           f'v_lshlrev_b32 v{t3}, 23, v{t3}', f'v_lshlrev_b32 v{t2}, 23, v{t2}',
           f'v_mul_f32 v{C}, v{cre}, v{t3}', f'v_mul_f32 v{C+1}, v{cim}, v{t3}',
           f'v_mul_f32 v{YS}, v{t2}, v{dt}', f'v_add_f32 v{YS}, v{YS}, v{YS}']
    L += [x for x in interleave(La, Lb) if x]
    L += cmul(G16, G8, G8) + cmul(F2, F1, F1) + [f'v_mov_b32 v{F8}, v{G8}', f'v_xor_b32 v{F8+1}, 0x80000000, v{G8+1}'] + cmul(F4, F2, F2)
    def cv(P, idx, src): return f'v_cvt_pk_f16_f32 v{P+idx}, v{src}, v{src+1}'
    def colchain(par, xa, xb, xc):
        Qq = []
        if par == 0:
            Qq += [f'v_mov_b32 v{PC}, 0x3c00', cv(PC, 16, G128)]; cur = G16; js = range(2, 16, 2)
        else:
            cur = G8; js = range(1, 16, 2)
        first = True
        for j in js:
            if not first:
                d = xa if cur != xa else xb; Qq += cmul(d, cur, G16); cur = d
            first = False
            Qq += cmul(xc, cur, G128) + [cv(PC, j, cur), cv(PC, j + 16, xc)]
        return Qq
    L += interleave(colchain(0, X[0], X[1], X[2]), colchain(1, X[3], X[4], X[5]))
    def ridx(rho, hf): return 8 * (rho >> 2) + 4 * hf + (rho & 3)
    Qa = [cv(PR, ridx(0, 0), C)]; cur = C
    for e in range(1, 8):
        d = X[0] if cur != X[0] else X[1]; Qa += cmul(d, cur, F1) + [cv(PR, ridx(e, 0), d)]; cur = d
    B1 = X[7]
    Qb = cmul(B1, C, F256) + [cv(PR, ridx(0, 1), B1), cv(PR, ridx(1, 1), B1)]
    Qc = []; cur = B1
    for k, rhos in enumerate([[2], [3, 4, 5], [6], [7]]):
        d = X[2] if cur != X[2] else X[3]; Qc += cmul(d, cur, F2) + [cv(PR, ridx(r, 1), d) for r in rhos]; cur = d
    Bc, Bn = B1, X[4]; alt = X[5]
    for sp in range(6):
        Qb += cmul(Bn, Bc, F256); Bc = Bn; Bn = alt if Bc == X[4] else X[4]
        if sp < 2:
            Qb += [cv(PR, ridx(8, sp), Bc)] + cmul(X[6], Bc, F4) + [cv(PR, ridx(9, sp), X[6])] + cmul(X[6], Bc, F8) + [cv(PR, ridx(10, sp), X[6])]
        else:
            rho = 11 + 2 * ((sp - 2) >> 1); hf = sp & 1
            Qb += [cv(PR, ridx(rho, hf), Bc)] + cmul(X[6], Bc, F8) + [cv(PR, ridx(rho + 1, hf), X[6])]
    L += Qb[:2] + interleave(Qb[2:], Qa + Qc)
    L += [f'v_mov_b32 v{PR+27}, 0', f'v_mov_b32 v{PR+31}, 0']
    return L

KN = NAME + '_kernel'

def gen(A, cfg):
    kernel_head(A, KN)
    A('s_cmp_ge_u32 s2, 256\ns_cbranch_scc1 L_END')
    ST = Stamps(A, cfg.get('stamps')); ST.start()
    A(f"""s_load_dwordx16 s[16:31], s[0:1], 0
    s_load_dwordx8 s[32:39], s[0:1], 64
    s_load_dwordx2 s[40:41], s[0:1], 96
    s_getpc_b64 s[{sM1}:{sM1+1}]""")
    A.raw('L_PC0:')
    if cfg.get('cpfall', 1):
        A('v_lshlrev_b32 v2, 7, v0\nv_cmp_gt_u32 vcc, L_CODE_END-L_PC0, v2')
    else:
        A(f's_lshr_b32 s{sT0}, s2, 3\ns_lshl_b32 s{sT0}, s{sT0}, 7\nv_lshl_add_u32 v2, v0, 12, s{sT0}\nv_cmp_gt_u32 vcc, L_CODE_END-L_PC0, v2')
    A(f"""s_and_saveexec_b64 s[{sA+1}:{sA+2}], vcc
    s_cbranch_execz L_NOCPF
    global_load_dword v159, v2, s[{sM1}:{sM1+1}]""")
    A.label('L_NOCPF', fence=False)
    A(f"""s_mov_b64 exec, -1
    v_lshrrev_b32 v2, 6, v0
    v_and_b32 v1, 63, v0
    v_readfirstlane_b32 s{sWave}, v2
    s_bfe_u32 s{sT0}, s2, 0x20001
    s_lshl_b32 s{sT0}, s{sT0}, 2
    s_bfe_u32 s{sT1}, s2, 0x20003
    s_add_u32 s{sRB}, s{sT0}, s{sT1}
    s_and_b32 s{sT0}, s2, 1
    s_lshl_b32 s{sT0}, s{sT0}, 3
    s_lshr_b32 s{sCB2}, s2, 5
    s_add_u32 s{sCB}, s{sT0}, s{sCB2}
    s_lshl_b32 s{sT2}, s{sT1}, 1
    s_add_u32 s{sCh0}, s{sT2}, s{sCB2}
    s_and_b32 s{sOdd}, s{sCB}, 1
    s_and_b32 s{sT0}, s2, 7
    s_lshl_b32 s{sRB2}, s{sT0}, 2
    s_add_u32 s{sRB2}, s{sRB2}, s{sT1}
    s_lshl_b32 s{sDP}, s{sT0}, 5
    s_lshr_b32 s{sT0}, s2, 3
    s_add_u32 s{sDP}, s{sDP}, s{sT0}
    s_mul_i32 s{sK0}, s{sCB2}, 14
    s_lshr_b32 s{sK0}, s{sK0}, 3
    s_mul_i32 s{sT0}, s{sT1}, 7
    s_lshr_b32 s{sT0}, s{sT0}, 1
    s_add_u32 s{sK0}, s{sK0}, s{sT0}
    s_sub_u32 s{sT0}, s{sK0}, 14
    s_cmp_ge_u32 s{sK0}, 14
    s_cselect_b32 s{sK0}, s{sT0}, s{sK0}
    v_lshlrev_b32 v2, 2, v1
    v_add_u32 v2, {LSY}, v2
    v_mov_b32 v14, 0
    ds_write_b32 v2, v14
    s_cmp_lt_u32 s{sWave}, 4""")
    A.fwd_branch('s_cbranch_scc0 L_M')
    n0 = len(A.out)
    A.label('L_M')
    gen_M(A, cfg, ST)
    n1 = len(A.out)
    gen_H(A, cfg, ST)
    Mt, Ht = A.out[n0:n1], A.out[n1:]
    k = Ht.index('; @@SPLIT')
    A.out[n0:] = Ht[:k] + ['    s_branch L_H2'] + Mt + ['L_H2:'] + Ht[k+1:]
    gen_final(A, cfg, ST)
    A.label('L_END', fence=False)
    A('s_endpgm')
    A.raw('L_CODE_END:')
    return kd(KN, 256, 102)

vX, vXo = 8, 12

def load_x_final(A):
    A(f"""v_lshrrev_b32 v2, 3, v0
    v_and_b32 v3, 7, v0
    v_lshlrev_b32 v3, 4, v3
    v_lshl_add_u32 v{vXo}, v2, 10, v3
    s_lshl_b32 s{sT0}, s{sRB2}, 16
    s_lshl_b32 s{sT1}, s{sCB2}, 7
    s_add_u32 s{sT0}, s{sT0}, s{sT1}
    v_add_u32 v{vXo}, s{sT0}, v{vXo}
    buffer_load_dwordx4 {v(vX,4)}, v{vXo}, s[{sX}:{sX+3}], 0 offen""")

def gen_M(A, cfg, ST):
    ST.role = 'M'
    mw = sWave
    t0, t1, t2, t3 = 16, 17, 18, 19
    kP = 64; D = 232
    vRow, vTmp, vOne = 160, 168, 184
    PC, PR, YS, WA = 192, 224, 189, 160
    vSyM, vOneM, vFl = 14, 15, 3
    A(f"""s_sub_u32 s{mw}, s{mw}, 4
    v_lshlrev_b32 v{t3}, 21, v1
    v_lshlrev_b32 v187, 4, v1
    v_mov_b32 v188, {WS_EP}
    s_lshl_b32 s{sT0}, s{sDP}, 13
    s_lshl_b32 s{sT1}, s{mw}, 11
    s_add_u32 s{sT0}, s{sT0}, s{sT1}
    v_add_u32 v186, s{sT0}, v187
    s_lshl_b32 s{sT0}, s2, 2
    s_add_u32 s{sT0}, s{sT0}, s{mw}
    s_mul_i32 s{sT0}, s{sT0}, {14*128}
    v_lshl_add_u32 v185, v1, 7, s{sT0}
    s_waitcnt lgkmcnt(0)
    global_load_dword v188, v188, s[{pWS}:{pWS+1}]{SC}
    global_load_dwordx4 {v(vRow,4)}, v186, s[{pX}:{pX+1}]
    global_load_dwordx4 {v(vRow+4,4)}, v186, s[{pX}:{pX+1}] offset:1024""")
    srd(A, sWS, pWS, WS_SIZE); srd(A, sX, pX, 2048 * 1024); srd(A, sOUT, pOUT, 2048 * 1024)
    A(f"""s_mov_b64 exec, 0x7f
    buffer_load_dword v156, v{t3}, s[{sWS}:{sWS+3}], 0 offen
    s_mov_b64 exec, 1
    global_load_dword v157, v{t3}, s[{pOUT}:{pOUT+1}]
    s_mov_b64 exec, {'0x3fff' if cfg.get('mall', 0) else '1'}
    global_load_dword v158, v185, s[{pW2}:{pW2+1}]
    s_mov_b64 exec, -1
    s_barrier
    s_lshl_b32 s{sT0}, s{sDP}, 2
    s_load_dword s{sD}, s[{pDSK}:{pDSK+1}], s{sT0}""")
    if cfg.get('lnprio'): A(f's_setprio {cfg["lnprio"]}')
    ST('ld')
    vXr, vWr = 4, 6
    F = [20, 56]; ACC = 92
    x_read_addr(A, vXr, mw, t0, t1, t2)
    A(f"""v_lshrrev_b32 v{t0}, 4, v1
    v_bfe_u32 v{t1}, v1, 2, 2
    v_and_b32 v{t2}, 1, v{t0}
    v_lshl_or_b32 v{t2}, v{t2}, 2, v{t1}
    v_lshl_add_u32 v{t0}, v{t0}, 3, v{t1}
    v_and_b32 v{t1}, 3, v1
    v_lshlrev_b32 v{t1}, 3, v{t1}
    v_lshl_add_u32 v{t3}, v{t0}, 8, v{t1}
    v_add_u32 v{t3}, {Bslot(0)}, v{t3}""")
    for tau in range(7):
        A(f'v_xor_b32 v{t0}, {tau}, v{t2}\nv_lshl_add_u32 v{vWr+tau}, v{t0}, 5, v{t3}')
    A(f'v_mov_b32 v{vOne}, 0x3f803f80\ns_waitcnt lgkmcnt(0)')
    A('s_waitcnt vmcnt(3)')
    ST('row')
    class Col:
        def __init__(s): s.L = []
        def __call__(s, t): s.L += [x.strip() for x in t.strip().split('\n') if x.strip()]
    A_ = A; A = Col()
    S = [vTmp + i for i in range(4)]
    T = [vTmp + 4 + i for i in range(4)]
    for r in range(2):
        for j in range(4):
            x = vRow + 4 * r + j
            if j == 0:
                A(f'v_dot2_f32_bf16 v{S[r]}, v{x}, v{vOne}, 0\nv_dot2_f32_bf16 v{S[2+r]}, v{x}, v{x}, 0')
            else:
                A(f'v_dot2_f32_bf16 v{S[r]}, v{x}, v{vOne}, v{S[r]}\nv_dot2_f32_bf16 v{S[2+r]}, v{x}, v{x}, v{S[2+r]}')
    for rr in (1, 2, 4, 8):
        for i in range(4): A(f'v_add_f32_dpp v{S[i]}, v{S[i]}, v{S[i]} row_ror:{rr} row_mask:0xf bank_mask:0xf')
    for op in ('v_permlane16_swap_b32', 'v_permlane32_swap_b32'):
        for i in range(4): A(f'v_mov_b32 v{T[i]}, v{S[i]}')
        for i in range(4): A(f'{op} v{S[i]}, v{T[i]}')
        for i in range(4): A(f'v_add_f32 v{S[i]}, v{S[i]}, v{T[i]}')
    Ls = []
    for r in range(2):
        m, e2, a, b = S[r], S[2 + r], T[r], T[2 + r]
        Ls.append([f'v_mul_f32 v{m}, {f32(1/512)}, v{m}', f'v_mul_f32 v{e2}, {f32(1/512)}, v{e2}',
                   f'v_fma_f32 v{e2}, -v{m}, v{m}, v{e2}', f'v_max_f32 v{e2}, 0, v{e2}'] + bf16r(e2, e2) + bf16r(m, m) +
                  [f'v_add_f32 v{e2}, {f32(1e-5)}, v{e2}'] + bf16r(e2, e2) + [f'v_sqrt_f32 v{e2}, v{e2}'] + bf16r(e2, e2) +
                  [f'v_rcp_f32 v{a}, v{e2}', f'v_mul_f32_e64 v{b}, -v{m}, v{a}', f'v_lshrrev_b32 v{m}, 16, v{m}', f'v_or_b32 v{m}, v{m}, v{e2}'])
    A('\n'.join(interleave(*Ls)))
    vSy, vI1 = vSyM, vOneM
    A(f"""v_readfirstlane_b32 s{sNon}, v188
    v_mov_b32 v{vSy}, {LSY}
    v_mov_b32 v{vI1}, 1
    s_mul_i32 s{sNon}, s{sNon}, 0x9e3779b1
    s_add_u32 s{sNon}, s{sNon}, 0x7f4a7c15
    v_cmp_eq_u32 vcc, 1, v1
    v_cndmask_b32 v{vTmp+8}, v{S[0]}, v{S[1]}, vcc
    v_mov_b32 v{vTmp+9}, s{sNon}
    ds_write_b32 v{vSy}, v{vTmp+9} offset:32""")
    for r in range(2):
        for j in range(4):
            x = vRow + 4 * r + j; u = vTmp + 10 + 2 * (j & 1)
            A(f"""v_lshlrev_b32 v{u}, 16, v{x}
            v_and_b32 v{u+1}, 0xffff0000, v{x}
            v_fma_f32 v{u}, v{u}, v{T[r]}, v{T[2+r]}
            v_fma_f32 v{u+1}, v{u+1}, v{T[r]}, v{T[2+r]}
            v_cvt_pk_f16_f32 v{x}, v{u}, v{u+1}""")
    A(f"""s_mul_i32 s{sT0}, s{mw}, {2*LNP}
    s_add_u32 s{sT0}, s{sT0}, {LNB}
    v_add_u32 v{t0}, s{sT0}, v187
    ds_write_b128 v{t0}, {v(vRow,4)}
    ds_write_b128 v{t0}, {v(vRow+4,4)} offset:{LNP}""")
    LNL = A.L; A = A_
    A('\n'.join(LNL))
    lds_inc(A, vSy, SY_XN, vI1)
    A(f"""v_bfe_u32 v{t0}, v1, 2, 2
    v_mul_u32_u24 v{t0}, {LNP}, v{t0}
    v_lshrrev_b32 v{t1}, 4, v1
    v_lshl_add_u32 v{t0}, v{t1}, 5, v{t0}
    v_and_b32 v{t1}, 3, v1
    v_lshl_add_u32 v{t0}, v{t1}, 3, v{t0}
    s_lshl_b32 s{sT0}, s{mw}, 8
    s_add_u32 s{sT0}, s{sT0}, {LNB}
    v_add_u32 v{t0}, s{sT0}, v{t0}""")
    lds_wait(A, 'L_WXN', vSy, SY_XN, 4, t3, sT0)
    for i in range(2):
        for hh in range(2): A(f'ds_read_b64_tr_b16 {v(vRow+4*i+2*hh,2)}, v{t0} offset:{128*i+4*LNP*hh}')
    ST('xn')
    ST('kt')
    lq = Q(A, 'lgkmcnt', 15)
    def reads(st, kap):
        slot = st & 3; f = F[kap]; L = []
        for q in range(2): L.append((f'ds_read_b128 {v(f+28+4*q,4)}, v{vXr+kap} offset:{Aslot(slot)+q*2048}', (st, kap, 0)))
        for tau in range(7):
            for hh in range(2):
                L.append((f'ds_read_b64_tr_b16 {v(f+4*tau+2*hh,2)}, v{vWr+tau} offset:{slot*16384+kap*8192+hh*1024}', (st, kap, tau)))
        return L
    def emit(rd):
        for t, tag in rd: A(t); lq.add(tag)
    vSyM, vOneM, vFl = 14, 15, 3
    def kstep(st, kap, rd, first=False, bar_at=None, bar_fn=None):
        f = F[kap]; k = 0; n = 0
        start = 0 if bar_at is None else bar_at
        slots = 14 - start - 1
        if bar_at is None: slots = cfg.get('r0', 13)
        flag = bar_at is not None and st == 7
        if flag: A(f'ds_read_b32 v{vFl}, v{vSyM} offset:{CERT(st+1)}'); lq.add('fl')
        for tau in range(7):
            lq.wait((st, kap, tau))
            for q in range(2):
                if n == bar_at:
                    lq.all()
                    if flag:
                        A(f'v_readfirstlane_b32 s{sT0}, v{vFl}')
                        A(f's_cmp_ge_u32 s{sT0}, {0 if cfg.get("nocheck") else 4}')
                        A(f's_cbranch_scc1 L_CK{st}')
                        lds_wait(A, f'L_CW{st}', vSyM, CERT(st+1), 4, vFl, sT0)
                        A.label(f'L_CK{st}', fence=False)
                    else:
                        A('s_barrier')
                    bar_fn and bar_fn()
                a = ACC + 8 * tau + 4 * q
                A(f'v_mfma_f32_16x16x32_bf16 {v(a,4)}, {v(f+4*tau,4)}, {v(f+28+4*q,4)}, {"0" if first else v(a,4)}')
                if n >= start:
                    want = min(len(rd), -(-len(rd) * (n - start + 1) // slots))
                    emit(rd[k:want]); k = max(k, want)
                n += 1
        emit(rd[k:])
    A(f"""v_lshlrev_b32 v{t0}, 3, v1
    s_lshl_b32 s{sT0}, s{sDP}, 6
    s_lshl_b32 s{sT1}, s{mw}, 4
    s_add_u32 s{sT0}, s{sT0}, s{sT1}
    s_add_u32 s{sT0}, s{sT0}, {WS_GR}
    s_setprio 3
    s_mov_b64 exec, 3
    buffer_store_dwordx2 {v(vTmp+8,2)}, v{t0}, s[{sWS}:{sWS+3}], s{sT0} offen{SC}
    s_mov_b64 exec, -1
    s_lshl_b32 s{sT0}, s{sDP}, 13
    s_lshl_b32 s{sT1}, s{mw}, 11
    s_add_u32 s{sT0}, s{sT0}, s{sT1}
    s_add_u32 s{sT0}, s{sT0}, {WS_XN}
    s_waitcnt lgkmcnt(0)
    buffer_store_dwordx4 {v(vRow,4)}, v187, s[{sWS}:{sWS+3}], s{sT0} offen{SC}
    buffer_store_dwordx4 {v(vRow+4,4)}, v187, s[{sWS}:{sWS+3}], s{sT0} offen offset:1024{SC}
    s_waitcnt lgkmcnt(0)""")
    A(f's_setprio {cfg.get("lprio", 0)}')
    ST('kg')
    A('s_barrier')
    ST('B0')
    emit(reads(0, 0))
    A(f'v_mov_b32 v{vFl}, s{sNon}')
    def twr(P, off): return [(f'ds_write2st64_b32 v{WA+i}, v{P+i}, v{P+i+16} offset0:{off+i} offset1:{off+i+16}', 'tw') for i in range(16)]
    ab = 20; cs = 24
    BA = cfg.get('bar_at', 4)
    for st in range(8):
        if st == cfg.get('f1st', 1):
            A(f"""s_lshl_b32 s{sT1}, s{sDP}, 2
            s_lshl_b32 s{sT0}, s{mw}, 10
            s_add_u32 s{sT1}, s{sT1}, s{sT0}
            s_add_u32 s{sT1}, s{sT1}, {WS_F1}
            v_mov_b32 v{t0}, 0
            s_waitcnt vmcnt(0)
            s_setprio 3
            s_mov_b64 exec, 1
            buffer_store_dword v{vFl}, v{t0}, s[{sWS}:{sWS+3}], s{sT1} offen{SC}
            s_mov_b64 exec, -1
            s_setprio {cfg.get('lprio', 0)}""")
        kstep(st, 0, reads(st, 1), first=(st == 0))
        if st < 7:
            def bf(st=st):
                ST(f'B{st+1}')
            if st == 6: kstep(st, 1, reads(st + 1, 0))
            else: kstep(st, 1, reads(st + 1, 0), bar_at=BA, bar_fn=bf)
        else:
            A(f"""v_and_b32 v{t0}, 15, v1
            s_lshl_b32 s{sT0}, s{mw}, 8
            s_add_u32 s{sT0}, s{sT0}, {LSTAT}
            v_lshl_add_u32 v{t1}, v{t0}, 3, s{sT0}
            v_lshrrev_b32 v{t0}, 4, v1
            v_lshlrev_b32 v{t0}, 4, v{t0}
            v_add_u32 v{t0}, {LCS}, v{t0}""")
            rd = [(f'ds_read_b64 {v(ab,2)}, v{t1}', 'e'), (f'ds_read_b64 {v(ab+2,2)}, v{t1} offset:128', 'e')]
            rd += [(f'ds_read_b128 {v(cs+4*tau,4)}, v{t0} offset:{64*tau}', 'e') for tau in range(7)]
            kstep(st, 1, rd, bar_at=BA, bar_fn=lambda: ST('B8'))
    A('s_waitcnt lgkmcnt(0)')
    lds_inc(A, vSyM, DONE(7), vOneM)
    ST('g1')
    if cfg.get('mprio', 2): A(f's_setprio {cfg.get("mprio", 2)}')
    sHb, sHs = sA, sC
    A(f"""s_lshl_b32 s{sT0}, s{sRB}, 3
    s_lshl_b32 s{sT1}, s{mw}, 1
    s_add_u32 s{sT0}, s{sT0}, s{sT1}
    s_mul_i32 s{sT0}, s{sT0}, 56
    s_lshr_b32 s{sT1}, s{sCB}, 1
    s_mul_i32 s{sT1}, s{sT1}, 7
    s_add_u32 s{sT0}, s{sT0}, s{sT1}
    s_lshl_b32 s{sT0}, s{sT0}, 10
    s_lshl_b32 s{sT1}, s{sOdd}, 12
    s_add_u32 s{sHb}, s{sT0}, s{sT1}
    s_add_u32 s{sHb+1}, s{sHb}, {56*1024}
    s_lshl_b32 s{sT1}, s{sOdd}, 9
    s_add_u32 s{sHs}, s{sT0}, s{sT1}
    s_add_u32 s{sHs}, s{sHs}, 3072
    v_and_b32 v{t0}, 15, v1
    v_lshlrev_b32 v{t0}, 4, v{t0}
    v_lshrrev_b32 v{t2}, 5, v1
    v_lshl_add_u32 v{t0}, v{t2}, 8, v{t0}
    v_bfe_u32 v{t2}, v1, 4, 1
    v_lshl_add_u32 v{t1}, v{t2}, 9, v{t0}
    v_mul_u32_u24 v{t2}, {56*1024}, v{t2}
    v_add_u32 v{t2}, v{t2}, v{t0}
    s_mov_b32 s{sM0}, {NLOG2E}
    s_mov_b32 s{sM0+1}, {NLOG2E}
    v_mov_b32 v2, {NLOG2E}
    v_mov_b32 v3, {NLOG2E}
    s_waitcnt lgkmcnt(0)""")
    Zs = [56, 72]; Es = [64, 80]; O = [148, 152]
    groups = [[(2 * g, q), (2 * g + 1, q)] for q in range(2) for g in range(3)] + [[(6, 0), (6, 1)]]
    def part1(gi):
        Z = Zs[gi & 1]; E = Es[gi & 1]; L = []
        prs = [(tau, q, p) for tau, q in groups[gi] for p in range(2)]
        for n, (tau, q, p) in enumerate(prs):
            c = cs + 4 * tau + 2 * p
            L.append(f'v_pk_mul_f32 {v(Z+2*n,2)}, {v(c,2)}, {v(ab+2*q,2)} op_sel:[0,1] op_sel_hi:[1,1]')
        for n, (tau, q, p) in enumerate(prs):
            a = ACC + 8 * tau + 4 * q + 2 * p
            L.append(f'v_pk_fma_f32 {v(Z+2*n,2)}, {v(a,2)}, {v(ab+2*q,2)}, {v(Z+2*n,2)} op_sel:[0,0,0] op_sel_hi:[1,0,1]')
        for n in range(8 if not cfg.get('fake') else 0): L.append(f'v_exp_f32 v{E+n}, v{Z+n}')
        for n in range(4): L.append(f'v_pk_fma_f32 {v(E+2*n,2)}, {v(E+2*n,2)}, s[{sM0}:{sM0+1}], v[2:3]')
        for n in range(8 if not cfg.get('fake') else 0): L.append(f'v_rcp_f32 v{E+n}, v{E+n}')
        for n in range(4): L.append(f'v_pk_mul_f32 {v(Z+2*n,2)}, {v(Z+2*n,2)}, {v(E+2*n,2)}')
        o = O[gi & 1]
        for n in range(4): L.append(f'v_cvt_pk_bf16_f32 v{o+n}, v{Z+2*n}, v{Z+2*n+1}')
        T = [f'v_permlane16_swap_b32 v{o}, v{o+2}', f'v_permlane16_swap_b32 v{o+1}, v{o+3}']
        if gi < 6: T.append(f'buffer_store_dwordx4 {v(o,4)}, v{t1}, s[{sWS}:{sWS+3}], s{sHb+gi//3} offen offset:{1024*(gi%3)}{SC}')
        else: T.append(f'buffer_store_dwordx4 {v(o,4)}, v{t2}, s[{sWS}:{sWS+3}], s{sHs} offen{SC}')
        return L, T
    pend = []
    for gi in range(7):
        L, T = part1(gi)
        A('\n'.join(L[:2] + pend + L[2:])); pend = T
    A('\n'.join(pend))
    lds_inc(A, vSyM, SY_ST, vOneM)
    ST('epi')
    cw = mw
    sCh, sHF, sUb, sKb = sA, sB, sC, sE
    vK, vU, vSy, vOne, vL16 = 4, 5, 6, 7, 13
    A(f"""s_lshr_b32 s{sCh}, s{cw}, 1
    s_and_b32 s{sHF}, s{cw}, 1
    s_mul_i32 s{sUb}, s{sCh}, {UP}
    s_add_u32 s{sUb}, s{sUb}, {LU}
    s_mul_i32 s{sKb}, s{sCh}, {4*KCP}
    s_add_u32 s{sKb}, s{sKb}, {LKC}
    v_lshlrev_b32 v{vL16}, 4, v1
    v_mov_b32 v{vSy}, {LSY}
    v_mov_b32 v{vOne}, 1
    s_lshl_b32 s{sT0}, s{sCh}, 2
    v_add_u32 v{t0}, s{sT0}, v{vSy}
    v_and_b32 v{t1}, 3, v1
    v_sub_u32 v{t1}, 3, v{t1}
    v_mul_u32_u24 v{t1}, {KCP}, v{t1}
    v_bfe_u32 v{t2}, v1, 2, 2
    v_lshrrev_b32 v{t3}, 4, v1
    v_lshlrev_b32 v{vK}, 1, v{t3}
    v_sub_u32 v{vK}, v{vK}, v{t2}
    v_lshl_add_u32 v{vK}, v{vK}, 3, v{t1}
    s_lshl_b32 s{sT0}, s{sHF}, 8
    s_sub_u32 s{sT1}, s{sKb}, s{sT0}
    s_add_u32 s{sT1}, s{sT1}, {8*507-192-3584}
    v_add_u32 v{vK}, s{sT1}, v{vK}
    v_and_b32 v{t1}, 15, v1
    v_lshlrev_b32 v{t1}, 5, v{t1}
    v_lshl_add_u32 v{vU}, v{t3}, 4, v{t1}
    s_sub_u32 s{sT1}, s{sUb}, s{sT0}
    s_add_u32 s{sT1}, s{sT1}, {448-192}
    v_add_u32 v{vU}, s{sT1}, v{vU}""")
    def flag2():
        A(f"""s_lshl_b32 s{sT1}, s{sRB}, 8
        s_lshr_b32 s{sT0}, s{mw}, 1
        s_lshl_b32 s{sT0}, s{sT0}, 7
        s_add_u32 s{sT1}, s{sT1}, s{sT0}
        s_lshl_b32 s{sT0}, s{sCB}, 3
        s_add_u32 s{sT1}, s{sT1}, s{sT0}
        s_and_b32 s{sT0}, s{mw}, 1
        s_lshl_b32 s{sT0}, s{sT0}, 2
        s_add_u32 s{sT1}, s{sT1}, s{sT0}
        s_add_u32 s{sT1}, s{sT1}, {WS_F2}
        v_mov_b32 v{t1}, 0
        v_mov_b32 v{t2}, s{sNon}
        s_waitcnt vmcnt(0)
        s_setprio 3
        s_mov_b64 exec, 1
        buffer_store_dword v{t2}, v{t1}, s[{sWS}:{sWS+3}], s{sT1} offen{SC}
        s_mov_b64 exec, -1""")
    sF2 = sOdd
    A(f'ds_read_b32 v{t3}, v{vSy} offset:{SY_U}\ns_mov_b32 s{sF2}, 0\ns_waitcnt lgkmcnt(0)\nv_readfirstlane_b32 s{sT0}, v{t3}\ns_cmp_ge_u32 s{sT0}, {99 if cfg.get("f2first") else 4}')
    A.fwd_branch('s_cbranch_scc1 L_UR')
    flag2()
    ST('f2a')
    A(f's_mov_b32 s{sF2}, 1')
    lds_wait(A, 'L_WU', vSy, SY_U, 4, t3, sT0, sleep=1)
    A.label('L_UR')
    A(f's_or_b32 s{sT0}, s2, s{mw}\ns_cmp_lg_u32 s{sT0}, 0')
    A.fwd_branch('s_cbranch_scc1 L_NOEP')
    A(f's_mov_b32 s{sT0}, {WS_EP}\nv_mov_b32 v{t1}, 0\nv_mov_b32 v{t2}, s{sNon}\ns_mov_b64 exec, 1\nbuffer_store_dword v{t2}, v{t1}, s[{sWS}:{sWS+3}], s{sT0} offen{SC}\ns_mov_b64 exec, -1')
    A.label('L_NOEP')
    if cfg.get('cvdelay'):
        for _ in range(cfg['cvdelay']): A('s_sleep 100')
    A(f's_setprio {cfg.get("cvprio", 0)}')
    ST('cv0')
    ACC = 20
    FK = [52, 116]; FU = [84, 148]
    def creads(rl):
        b = rl & 1; L = []
        for m in range(8):
            L.append(f'ds_read_b128 {v(FU[b]+4*m,4)}, v{vU} offset:{512*m+64*(3-rl)}')
            for hh in range(2):
                L.append(f'ds_read_b64 {v(FK[b]+4*m+2*hh,2)}, v{vK} offset:{512*(7-m)+64*(3-rl)+8*hh}')
        return L
    A('\n'.join(creads(0)))
    for rl in range(4):
        b = rl & 1
        nxt = creads(rl + 1) if rl < 3 else []
        if rl == cfg.get('f2rl', 1):
            A(f's_cmp_eq_u32 s{sF2}, 1')
            A.fwd_branch('s_cbranch_scc1 L_F2D')
            flag2()
            A.label('L_F2D')
            A('s_setprio 3')
            ST('f2')
            load_x_final(A)
            A(f's_setprio {cfg.get("cvprio", 0)}')
        A('s_waitcnt lgkmcnt(0)')
        if rl == 3: lds_inc(A, vSy, SY_CV, vOne)
        k = 0
        for m in range(8):
            for jj in range(8 - m):
                a = ACC + 4 * (m + jj)
                A(f'v_mfma_f32_16x16x32_f16 {v(a,4)}, {v(FK[b]+4*m,4)}, {v(FU[b]+4*jj,4)}, {"0" if rl == 0 and m == 0 else v(a,4)}')
                if k < len(nxt): A(nxt[k])
                k += 1
    ST('cv1')
    A('s_setprio 2')
    lds_wait(A, 'L_WCV', vSy, SY_CV, 4, t3, sT0)
    A(f"""s_lshl_b32 s{sT0}, s{cw}, 13
    s_add_u32 s{sT0}, s{sT0}, {LEX}
    v_add_u32 v{t1}, s{sT0}, v{vL16}""")
    for i in range(8): A(f'ds_write_b128 v{t1}, {v(ACC+4*i,4)} offset:{1024*i}')
    UU = 116; YS = 124
    A(f"""s_lshl_b32 s{sT0}, s{cw}, 11
    s_add_u32 s{sT1}, s{sT0}, {LEX}
    v_add_u32 v{t0}, s{sT1}, v{vL16}
    v_and_b32 v{vK}, 15, v1
    v_lshrrev_b32 v{vU}, 4, v1
    v_lshlrev_b32 v{vU}, 2, v{vU}
    v_lshl_add_u32 v{vK}, v{vK}, 4, v{vU}
    s_lshl_b32 s{sT1}, s{cw}, 10
    s_add_u32 s{sT1}, s{sT1}, {LU+480}
    v_lshl_add_u32 v{vU}, v{vK}, 1, s{sT1}
    v_lshlrev_b32 v{vK}, 2, v{vK}
    s_lshl_b32 s{sT2}, s{sDP}, 14
    s_add_u32 s{sT2}, s{sT2}, s{sT0}
    s_add_u32 s{sT2}, s{sT2}, s{sT0}
    s_add_u32 s{sT2}, s{sT2}, {WS_SP}
    s_and_b32 s{sE}, s{sD}, 0xffff0000
    s_lshl_b32 s{sD}, s{sD}, 16
    s_waitcnt lgkmcnt(0)""")
    for ti in range(2):
        for c in range(2): A(f'ds_read_b64 {v(UU+4*ti+2*c,2)}, v{vU} offset:{512*ti+UP*c}')
    lds_inc(A, vSy, SY_EX, vOne)
    A(f'ds_read_b64 {v(YS,2)}, v{vSy} offset:40')
    lds_wait(A, 'L_WEX', vSy, SY_EX, 4, t3, sT0)
    PB = 52
    for ti in range(2):
        for w in range(4): A(f'ds_read_b128 {v(PB+16*ti+4*w,4)}, v{t0} offset:{8192*w+1024*ti}')
    for ti in range(2):
        A(f's_waitcnt lgkmcnt({4-4*ti})')
        for c in range(2):
            p0, p1 = PB + 16 * ti + 8 * c, PB + 16 * ti + 8 * c + 4
            for e in range(4): A(f'v_add_f32 v{p0+e}, v{p0+e}, v{p1+e}')
            for e in range(4): A(f'v_mul_f32 v{p0+e}, v{YS+c}, v{p0+e}')
            for e in range(4): A(f'v_fma_mix_f32 v{p0+e}, v{UU+4*ti+2*c+(e>>1)}, s{sD+c}, v{p0+e} op_sel:[{e&1},0,0] op_sel_hi:[1,0,0]')
        o = 128 + 8 * ti
        for e in range(4): A(f'v_cvt_pk_bf16_f32 v{o+2*e}, v{PB+16*ti+e}, v{PB+16*ti+8+e}\nv_mov_b32 v{o+2*e+1}, s{sNon}')
        for hh in range(2): A(f'buffer_store_dwordx4 {v(o+4*hh,4)}, v{vK}, s[{sWS}:{sWS+3}], s{sT2} offen offset:{2048*ti+1024*hh}{SC}')
    ST('f3')
    A(f"""v_lshrrev_b32 v{vK}, 5, v1
    v_bfe_u32 v{vU}, v1, 4, 1
    v_and_b32 v{t3}, 15, v1
    v_lshlrev_b32 v{t2}, 4, v{t3}
    v_lshl_add_u32 v{t2}, v{vU}, 10, v{t2}
    v_lshl_add_u32 v{t2}, v{vK}, 14, v{t2}
    s_lshl_b32 s{sA}, s{sCB2}, 19
    s_lshl_b32 s{sT2}, s{cw}, 17
    s_add_u32 s{sA}, s{sA}, s{sT2}
    s_lshr_b32 s{sT2}, s{sRB2}, 2
    s_lshl_b32 s{sT2}, s{sT2}, 11
    s_add_u32 s{sA}, s{sA}, s{sT2}
    s_and_b32 s{sT2}, s{sRB2}, 3
    s_lshl_b32 s{sT2}, s{sT2}, 8
    s_add_u32 s{sA}, s{sA}, s{sT2}
    s_add_u32 s{sA}, s{sA}, {WS_SP}
    s_add_u32 s{sB}, s{sA}, {32768}
    s_add_u32 s{sC}, s{sA}, {65536}
    s_add_u32 s{sD}, s{sA}, {98304}
    s_lshl_b32 s{sT2}, s{cw}, 3
    v_add_u32 v{vK}, s{sT2}, v{vK}
    v_and_b32 v{t1}, 7, v1
    v_lshlrev_b32 v{t1}, 2, v{t1}
    v_xor_b32 v{vK}, v{vK}, v{t1}
    v_lshlrev_b32 v{vK}, 2, v{vK}
    v_lshl_add_u32 v{vK}, v{t3}, 9, v{vK}
    v_lshl_add_u32 v{vK}, v{vU}, 8, v{vK}
    v_add_u32 v{vK}, {LS}, v{vK}
    v_xor_b32 v{vU}, 16, v{vK}""")
    lds_wait(A, 'L_WT', vSy, SY_TRIG, 1, t3, sT0, sleep=4)
    SG = 44
    gpoll(A, 'L_P3', '\n'.join(f'buffer_load_dwordx4 {v(SG+4*it,4)}, v{t2}, s[{sWS}:{sWS+3}], s{sA+it} offen{SC}' for it in range(4)),
          [SG + 2 * k + 1 for k in range(8)], sleep=cfg.get('p3sleep', 12))
    ST('p3')
    for it in range(4):
        for e in range(2): A(f'ds_write_b32 v{vU if it >= 2 else vK}, v{SG+4*it+2*e} offset:{128*e+8*(it&1)}')
    A.fwd_branch('s_branch L_FINAL')

def gen_H(A, cfg, ST):
    ST.role = 'H'
    A.label('L_H')
    hw = sWave
    vXo_, vWo = 16, 20
    vWr = 24
    vOne = 32
    t0, t1, t2, t3 = 36, 37, 38, 39
    vH, vW, vR = 48, 52, 56
    vRow = 64
    vTmp = 72
    vCS, vFw = 192, 220
    sXb, sWb, sLb, sCk = sA, sB, sC, sD
    sH, sWo, sK, sKw = 30, 31, 38, 39
    vq = Q(A, 'vmcnt', 63)
    A0 = A; A = BG(A0, vq, cfg.get('every', 6))
    b0, b1, b2 = 28, 29, 17
    def vwait(tag): A.flush(tag); vq.wait(tag)
    D = 232; kP = 64; PC, PR, YS, WA = 128, 160, 114, 64
    A(f"""s_lshr_b32 s{sT0}, s{hw}, 1
    s_lshl_b32 s{sT2}, s{sDP}, 1
    s_add_u32 s{sT2}, s{sT2}, s{sT0}
    s_and_b32 s{sT1}, s{hw}, 1
    s_lshl_b32 s{sT1}, s{sT1}, 7
    s_lshl_b32 s{sT0}, s{sT2}, 8
    s_add_u32 s{sT0}, s{sT0}, s{sT1}
    v_lshl_add_u32 v100, v1, 1, s{sT0}
    v_xor_b32 v101, 128, v100
    s_lshl_b32 s{sT0}, s{sT2}, 1
    v_mov_b32 v102, s{sT0}
    """)
    A(f"""v_lshrrev_b32 v{t0}, 3, v1
    v_lshrrev_b32 v{t1}, 4, v1
    v_and_b32 v{t2}, 7, v1
    v_xor_b32 v{t2}, v{t2}, v{t1}
    v_lshlrev_b32 v{t2}, 4, v{t2}
    v_lshl_add_u32 v{vXo_}, v{t0}, 10, v{t2}
    v_xor_b32 v{t3}, 64, v{vXo_}
    v_add_u32 v{vXo_+1}, 7168, v{t3}
    v_add_u32 v{vXo_+2}, 14336, v{vXo_}
    v_add_u32 v{vXo_+3}, 21504, v{t3}""")
    for half in range(2):
        A(f"""v_bfe_u32 v{t0}, v1, 1, 3
        v_xor_b32 v{t0}, v{t0}, v{t1}
        v_xor_b32 v{t0}, {4*half}, v{t0}
        v_and_b32 v{t2}, 1, v1
        v_lshl_add_u32 v{t2}, v{t0}, 1, v{t2}
        s_lshl_b32 s{sT0}, s{sOdd}, 1
        v_add_u32 v{t2}, s{sT0}, v{t2}
        v_subrev_u32 v{t3}, 14, v{t2}
        v_cmp_gt_u32 vcc, 14, v{t2}
        v_cndmask_b32 v{t2}, v{t3}, v{t2}, vcc
        v_lshlrev_b32 v{t2}, 4, v{t2}
        v_mul_u32_u24 v{t3}, 3584, v{t1}
        v_add_u32 v{t2}, v{t2}, v{t3}
        v_mov_b32 v{t3}, 0x7f000000
        v_cmp_eq_u32 vcc, 7, v{t0}
        v_cndmask_b32 v{t2}, v{t2}, v{t3}, vcc
        v_add_u32 v{vWo+2*half}, {(2*half)*13312}, v{t2}
        v_add_u32 v{vWo+2*half+1}, {(2*half+1)*13312}, v{t2}""")
    A(f"""s_lshl_b32 s{sXb}, s{sRB}, 17
    s_lshl_b32 s{sT0}, s{hw}, 15
    s_add_u32 s{sXb}, s{sXb}, s{sT0}
    s_mul_i32 s{sWb}, s{hw}, {16*3584}
    s_mul_i32 s{sT0}, s{sCB}, 224
    s_add_u32 s{sWb}, s{sWb}, s{sT0}
    s_lshl_b32 s{sLb}, s{hw}, 12
    v_lshlrev_b32 v13, 4, v1
    """)
    A(f"""s_waitcnt lgkmcnt(0)
    global_load_ushort v{kP+6}, v102, s[{pLDT}:{pLDT+1}]
    global_load_ushort v{kP+0}, v100, s[{pLAR}:{pLAR+1}]
    global_load_ushort v{kP+1}, v100, s[{pAIM}:{pAIM+1}]
    global_load_ushort v{kP+2}, v100, s[{pCRE}:{pCRE+1}]
    global_load_ushort v{kP+3}, v100, s[{pCIM}:{pCIM+1}]
    global_load_ushort v{kP+4}, v101, s[{pCRE}:{pCRE+1}]
    global_load_ushort v{kP+5}, v101, s[{pCIM}:{pCIM+1}]""", 'par')
    srd(A, sX, pX, 2048 * 1024); srd(A, sW1, pW1, 512 * 3584)
    A0('s_barrier')
    ST('ld')
    def dma(st, now=False):
        slot = st & 3
        for i in range(4):
            pre = ''
            if i == 0:
                pre = f's_add_u32 s{b2}, s{sCh0}, {st}\ns_and_b32 s{b2}, s{b2}, 7\ns_lshl_b32 s{b0}, s{b2}, 7\ns_add_u32 s{b0}, s{b0}, s{sXb}\ns_add_u32 m0, s{sLb}, {Aslot(slot)}\ns_mul_i32 s{b1}, s{b2}, {64*3584}\ns_add_u32 s{b1}, s{b1}, s{sWb}\n'
            A.push(pre + f'buffer_load_dwordx4 v{vXo_+i}, s[{sX}:{sX+3}], s{b0} offen offset:{1024*i} lds', ('d', st))
        for i in range(4):
            pre = f's_add_u32 m0, s{sLb}, {Bslot(slot)}\n' if i == 0 else ''
            A.push(pre + f'buffer_load_dwordx4 v{vWo+i}, s[{sW1}:{sW1+3}], s{b1} offen offset:{1024*i} lds', ('d', st))
        if now: A.flush()
    dma(0, now=True)
    A(f"""v_lshrrev_b32 v{t0}, 2, v1
    v_mul_u32_u24 v{t0}, 3584, v{t0}
    v_and_b32 v{t1}, 3, v1
    v_mul_u32_u24 v{t1}, 72, v{t1}
    v_add_u32 v{t0}, v{t0}, v{t1}
    s_add_u32 s{sT0}, s{sCh0}, 1
    s_and_b32 s{sT0}, s{sT0}, 7
    s_mul_i32 s{sT0}, s{sT0}, {64*3584}
    s_add_u32 s{sT0}, s{sT0}, s{sWb}
    buffer_load_dword v47, v{t0}, s[{sW1}:{sW1+3}], s{sT0} offen""", 't1')
    A0.fence(); A0.raw('; @@SPLIT')
    srd(A, sWS, pWS, WS_SIZE); srd(A, sW2, pW2, 1792 * 1024); srd(A, sOUT, pOUT, 2048 * 1024)
    A(f"""v_bfe_u32 v{t0}, v1, 4, 1
    v_bfe_u32 v{t1}, v1, 2, 2
    v_lshl_or_b32 v{t2}, v{t0}, 2, v{t1}
    v_lshl_add_u32 v{t0}, v{t0}, 3, v{t1}
    v_lshrrev_b32 v{t1}, 5, v1
    v_lshl_add_u32 v{t0}, v{t1}, 2, v{t0}
    v_and_b32 v{t1}, 3, v1
    v_lshlrev_b32 v{t1}, 3, v{t1}
    v_lshl_add_u32 v{t3}, v{t0}, 8, v{t1}
    s_add_u32 s{sT0}, s{sLb}, {Bslot(0)}
    v_add_u32 v{t3}, s{sT0}, v{t3}""")
    for P in range(7): A(f'v_xor_b32 v{t0}, {P}, v{t2}\nv_lshl_add_u32 v{vWr+P}, v{t0}, 5, v{t3}')
    for i in range(4): A(f'v_mov_b32 v{vOne+i}, 0x3f803f80')
    A(f"""v_lshlrev_b32 v{vH}, 4, v1
    v_add_u32 v{vH+1}, {57344}, v{vH}
    v_add_u32 v{vH+2}, {2*57344}, v{vH}
    v_add_u32 v{vH+3}, {3*57344}, v{vH}
    s_mul_i32 s{sH}, s{sRB2}, {4*57344}
    s_mul_i32 s{sT0}, s{hw}, {14*1024}
    s_add_u32 s{sH}, s{sH}, s{sT0}
    v_lshrrev_b32 v{t0}, 3, v1
    v_bfe_u32 v{t1}, v1, 4, 1
    v_lshlrev_b32 v{t1}, 1, v{t1}
    v_and_b32 v{t2}, 7, v1
    v_xor_b32 v{t2}, v{t2}, v{t1}
    v_lshlrev_b32 v{t2}, 4, v{t2}
    v_lshl_add_u32 v{vW}, v{t0}, 10, v{t2}
    v_xor_b32 v{t3}, 64, v{vW}
    v_add_u32 v{vW+1}, 7168, v{t3}
    v_add_u32 v{vW+2}, 14336, v{vW}
    v_add_u32 v{vW+3}, 21504, v{t3}
    s_mul_i32 s{sWo}, s{hw}, {14*32768}
    s_lshl_b32 s{sT0}, s{sCB2}, 7
    s_add_u32 s{sWo}, s{sWo}, s{sT0}
    s_mov_b32 s{sKw}, s{sK0}
    s_mov_b32 s{sK}, s{sK0}
    v_lshrrev_b32 v{t0}, 4, v1
    v_bfe_u32 v{t1}, v1, 2, 2
    v_lshl_add_u32 v{t0}, v{t0}, 3, v{t1}
    v_bfe_u32 v{t1}, v1, 3, 2
    v_and_b32 v{t2}, 3, v1
    v_lshlrev_b32 v{t2}, 3, v{t2}
    v_lshl_add_u32 v{t2}, v{t0}, 7, v{t2}
    v_add_u32 v{t2}, s{sLb}, v{t2}""")
    for T in range(4): A(f'v_xor_b32 v{t3}, {T}, v{t1}\nv_lshl_add_u32 v{vR+T}, v{t3}, 5, v{t2}')
    for T in range(4): A(f'v_add_u32 v{vR+4+T}, 65536, v{vR+T}')
    ST('d01')
    vSy, vI1 = 6, 7
    A(f'v_mov_b32 v{vSy}, {LSY}\nv_mov_b32 v{vI1}, 1')
    def colsum(st):
        slot = st & 3
        vwait(('d', st))
        for P in range(7): A(f'ds_read_b64_tr_b16 {v(vFw+4*P+2*(st&1),2)}, v{vWr+P} offset:{slot*16384}')
        A('s_waitcnt lgkmcnt(0)')
        if st == 7:
            for P in range(4, 7): A(f'v_mov_b32 v{vFw+4*P}, 0\nv_mov_b32 v{vFw+4*P+1}, 0')
        for P in range(7):
            if (P < 4 and st & 1) or (P >= 4 and (not st & 1 or st == 7)):
                A(f'v_mfma_f32_16x16x32_bf16 {v(vCS+4*P,4)}, {v(vOne,4)}, {v(vFw+4*P,4)}, {"0" if st <= 1 else v(vCS+4*P,4)}')
    for P in range(4, 7): A(f'v_mov_b32 v{vFw+4*P+2}, 0\nv_mov_b32 v{vFw+4*P+3}, 0')
    ST('pre')
    NREG = cfg.get('nreg', 7)
    WR = 192 - 16 * NREG
    def ldW(i):
        for e in range(4):
            pre = f's_add_u32 m0, s{sLb}, {RING[i % 6]}\ns_lshl_b32 s{b0}, s{sKw}, 15\ns_add_u32 s{b0}, s{sWo}, s{b0}\ns_add_u32 s{sKw}, s{sKw}, 1\ns_cmp_eq_u32 s{sKw}, 14\ns_cselect_b32 s{sKw}, 0, s{sKw}\n' if e == 0 else ''
            A.push(pre + f'buffer_load_dwordx4 v{vW+e}, s[{sW2}:{sW2+3}], s{b0} offen offset:{1024*e} lds', ('w', i))
    def rdW(i, dst):
        base = RING[i % 6]; hi = 4 if base >= 65536 else 0; base &= 65535
        for T in range(4):
            for hh in range(2):
                A(f'ds_read_b64_tr_b16 {v(dst+4*T+2*hh,2)}, v{vR+hi+T} offset:{base+hh*512}')
    nw = [0]
    def ldWn(n):
        for _ in range(n): ldW(nw[0]); nw[0] += 1
    def cert(st):
        vwait(('d', st)); lds_inc(A0, vSy, CERT(st), vI1); ST(f'c{st}')
    def wdone(st): lds_wait(A0, f'L_DN{st}', vSy, DONE(st), 4, t3, sT0, sleep=1); ST(f'w{st}')
    def pop3():
        for _ in range(3):
            if A.q: A.pop()
    def bar(st):
        if st < 8: vwait(('d', st))
        ST(f'b{st}'); A0('s_barrier'); ST(f'B{st}')
    A(f"""s_lshl_b32 s{sT0}, s{sK0}, 5
    s_add_u32 s{sT0}, s{sT0}, 64
    s_mul_i32 s{sT1}, s{hw}, {448*1024}
    s_lshl_b32 s{sT2}, s{sCB2}, 7
    s_add_u32 s{sT1}, s{sT1}, s{sT2}
    v_min_u32 v{t0}, 47, v1
    v_add_u32 v{t0}, s{sT0}, v{t0}
    v_subrev_u32 v{t1}, 448, v{t0}
    v_cmp_gt_u32 vcc, 448, v{t0}
    v_cndmask_b32 v{t0}, v{t1}, v{t0}, vcc
    v_lshl_add_u32 v46, v{t0}, 10, s{sT1}""")
    sF1 = 16
    A(f"""v_and_b32 v{t0}, 31, v1
    v_lshlrev_b32 v2, 3, v{t0}
    s_lshl_b32 s{sE}, s{sRB}, 10
    s_lshl_b32 s{sT1}, s{hw}, 8
    s_add_u32 s{sE}, s{sE}, s{sT1}
    s_add_u32 s{sE}, s{sE}, {WS_GR}
    s_lshr_b32 s{sF1}, s{sDP}, 6
    s_lshl_b32 s{sF1}, s{sF1}, 10
    s_add_u32 s{sF1}, s{sF1}, s{sT1}
    s_add_u32 s{sF1}, s{sF1}, {WS_F1}
    v_lshlrev_b32 v41, 2, v1""")
    A.flush()
    vwait('par')
    ST('par')
    KT = kgen_tables(kP, PC, PR, YS)
    nk = cfg.get('d1at', 170)
    A('\n'.join(KT[:nk]))
    A.every = 12; dma(1)
    A('\n'.join(KT[nk:]))
    A.flush(); A.every = cfg.get('every', 6)
    ST('kt')
    nd = [2]
    for _ in range(cfg.get('pre', 1)): dma(nd[0], now=True); nd[0] += 1
    AHEAD = cfg.get('ahead', [1, 1, 1, 1, 1])
    O = 164; R = 116; RA = 88
    def pk(d, a, b): return f'v_cvt_pk_f16_f32 v{d}, v{a}, v{b}'
    sCh, sHF, sKb = 18, 19, 20
    def kaddr():
        A(f"""s_lshr_b32 s{sCh}, s{hw}, 1
        s_and_b32 s{sHF}, s{hw}, 1
        s_lshl_b32 s{sT0}, s{sCh}, 16
        s_lshl_b32 s{sT1}, s{sHF}, 13
        s_add_u32 s{sT2}, s{sT0}, s{sT1}
        s_add_u32 s{sT2}, s{sT2}, {Aslot(2)}
        v_lshl_add_u32 v{WA}, v1, 2, s{sT2}""")
        L = []
        L += f"""v_and_b32 v{t0}, 31, v1
        v_lshrrev_b32 v{t1}, 5, v1
        v_and_b32 v{t2}, 15, v1
        v_xor_b32 v{t1}, v{t1}, v{t2}
        v_lshlrev_b32 v{t1}, 4, v{t1}
        v_lshl_add_u32 v{t1}, v{t0}, 8, v{t1}
        v_add_u32 v{RA}, s{sT2}, v{t1}
        v_add_u32 v96, s{sT2}, v13
        v_xor_b32 v97, 0x2000, v96""".split('\n')
        L += [f'v_xor_b32 v{RA+sg}, {sg*32}, v{RA}' for sg in range(1, 8)]
        L += f"""s_mul_i32 s{sKb}, s{sCh}, {4*KCP}
        s_add_u32 s{sKb}, s{sKb}, {LKC}
        s_lshl_b32 s{sT0}, s{sCh}, 2
        v_add_u32 v{R}, s{sT0}, v{vSy}
        v_mov_b32 v{R+4}, 0
        v_mov_b32 v{R+5}, 0
        v_mov_b32 v{R+6}, 0
        v_mov_b32 v{R+7}, 0
        v_lshrrev_b32 v{R+1}, 2, v1
        v_mul_u32_u24 v{R+1}, {KCP}, v{R+1}
        v_and_b32 v{t2}, 3, v1
        v_lshl_add_u32 v{R+1}, v{t2}, 4, v{R+1}
        v_add_u32 v{R+1}, s{sKb}, v{R+1}
        s_mul_i32 s{sT0}, s{sCh}, {UP}
        s_add_u32 s{sT0}, s{sT0}, {LU}
        v_add_u32 v{R+2}, s{sT0}, v13
        s_add_u32 s{sT0}, s{sKb}, 1008
        v_sub_u32 v{R+3}, s{sT0}, v13
        v_and_b32 v{t3}, 1, v1
        v_cmp_eq_u32 s[24:25], 1, v{t3}""".split('\n')
        W = []
        for i in range(16):
            if i: W.append(f'v_xor_b32 v{WA+i}, {i*16}, v{WA}')
            if i < cfg.get('cearly', 0): W.append(wr1(PC, i))
            W += L[:2]; del L[:2]
            if cfg.get('cpace', 0): W.append(f's_sleep {cfg.get("cpace", 1)}')
        A('\n'.join(W + L))
    def wr1(P, i): return f'ds_write2st64_b32 v{WA+i}, v{P+i}, v{P+i+16} offset0:{i} offset1:{i+16}'
    def trd(P):
        for sg in range(8): A(f'ds_read_b128 {v(P+4*sg,4)}, v{RA+sg}')
    def kphase():
        for i in range(cfg.get('cearly', 0), 16 if cfg.get('fake', 0) < 2 else 0): A(wr1(PC, i))
        trd(PC)
        for i in range(16 if cfg.get('fake', 0) < 2 else 0): A(wr1(PR, i))
        trd(PR)
        for sg in range(8):
            A(f's_waitcnt lgkmcnt({7-sg})')
            A(f'v_mfma_f32_32x32x16_f16 {v(D,16)}, {v(PR+4*sg,4)}, {v(PC+4*sg,4)}, {"0" if sg == 0 else v(D,16)}')
        A(f"""ds_write_b32 v{R}, v{YS} offset:40
        s_mov_b64 exec, 0xffff
        ds_write_b128 v{R+1}, {v(R+4,4)} offset:4096
        s_mov_b64 exec, 0x3fffffff
        ds_write_b128 v{R+2}, {v(R+4,4)}
        s_mov_b64 exec, -1""")
        for i in range(4): A(f'ds_write_b128 v96, {v(D+4*i,4)} offset:{1024*i}')
        ST('k1')
        lds_inc(A0, R, SY_KG, vI1)
        UWRITE()
        lds_wait(A0, 'L_WKG', R, SY_KG, 2, t3, sT0)
        for i in range(4): A(f'ds_read_b128 {v(PC+4*i,4)}, v97 offset:{1024*i}')
        A0(f's_cmp_eq_u32 s{sHF}, 1\ns_waitcnt lgkmcnt(0)')
        A.fwd_branch('s_cbranch_scc1 L_KH1')
        def chunk(c, E):
            if c == 0: return [pk(E, D+7, D+6), pk(E+1, D+5, D+4), pk(E+2, D+3, D+2), pk(E+3, D+1, D+0)]
            if c == 1: return [pk(E, D+10, D+10), pk(E+1, D+9, D+9), pk(E+2, D+9, D+8), pk(E+3, D+8, D+8)]
            lo, hi = D + 11 + 2 * (c - 2), D + 12 + 2 * (c - 2)
            return [f'v_cndmask_b32 v{t3}, v{lo}, v{hi}, s[24:25]', pk(E, hi, hi), pk(E+1, hi, t3), pk(E+2, lo, lo), pk(E+3, lo, lo)]
        for hf in range(2):
            if hf: A.label('L_KH1')
            need = range(0, 11) if hf == 0 else range(9, 15)
            for i in need: A0(f'v_add_f32 v{D+i}, v{D+i}, v{PC+i}')
            Es = {c: O + 24 * (c & 1) for c in range(4)}
            PV = 160
            if hf == 0: A0(f'v_mov_b32 v{PV}, 0\nv_mov_b32 v{PV+1}, 0')
            else: A0('\n'.join(chunk(1, PV)[:2]))
            for c in (2 * hf, 2 * hf + 1): A0('\n'.join(chunk(c, Es[c])))
            for c in (2 * hf, 2 * hf + 1):
                E = Es[c]; prev = PV if c == 2 * hf else Es[c - 1]
                A0(f'ds_write_b128 v{R+3}, {v(E,4)} offset:{1024*(3-c)}')
                for j in range(2): A0(f'v_mov_b32_dpp v{E+4+j}, v{prev+j} wave_ror:1 row_mask:0xf bank_mask:0xf')
                for j in range(2): A0(f'v_mov_b32_dpp v{E+4+j}, v{E+j} wave_shr:1 row_mask:0xf bank_mask:0xf')
                c1, c2, c3 = E + 8, E + 12, E + 16
                for i in range(4): A0(f'v_alignbit_b32 v{c1+i}, v{E+i+1}, v{E+i}, 16')
                A0(f'ds_write_b128 v{R+3}, {v(c1,4)} offset:{1024*(3-c)+KCP}')
                for i in range(4): A0(f'v_mov_b32 v{c2+i}, v{E+i+1}')
                A0(f'ds_write_b128 v{R+3}, {v(c2,4)} offset:{1024*(3-c)+2*KCP}')
                for i in range(4): A0(f'v_alignbit_b32 v{c3+i}, v{E+i+2}, v{E+i+1}, 16')
                A0(f'ds_write_b128 v{R+3}, {v(c3,4)} offset:{1024*(3-c)+3*KCP}')
            if hf == 0: A.fwd_branch('s_branch L_KH2')
        A.label('L_KH2')
        lds_inc(A0, vSy, SY_U, vI1)
        ST('u')
    def tw2(k):
        a, b = cfg.get('t2at', (9, 9))
        L = f'buffer_load_dword v47, v46, s[{sW2}:{sW2+3}], 0 offen'
        if a == b == k: A(L, 'tw')
        elif k in (a, b):
            A0(f's_bitcmp{1 if k == a else 0}_b32 s{sRB}, 0')
            A.fwd_branch(f's_cbranch_scc1 L_T2{k}')
            A0(L)
            A.label(f'L_T2{k}')
    tw2(-1)
    for k in range(6):
        bar(k)
        for _ in range(AHEAD[k] if k < len(AHEAD) else 1):
            if nd[0] < 8:
                assert nd[0] <= k + 3
                dma(nd[0]); nd[0] += 1
        if k == 5: ldWn(2)
        pop3()
        if k == 0: A(f'ds_read_b32 v15, v{vSy} offset:32')
        for c in cfg.get('cs', {0: [0], 1: [1], 2: [2, 3], 3: [4], 4: [5], 5: [6, 7]})[k]: colsum(c)
        if k == 0: A(f'v_readfirstlane_b32 s{sNon}, v15')
        A.flush()
        tw2(k)
        if k == 4: A(f'buffer_load_dwordx2 v[4:5], v2, s[{sWS}:{sWS+3}], s{sE} offen{SC}', 'gl'); A(f'buffer_load_dword v40, v41, s[{sWS}:{sWS+3}], s{sF1} offen{SC}', 'f1')
    for P in range(7): A(f'v_mov_b32 v{vFw+P}, v{vCS+4*P}')
    A(f"""s_lshl_b32 s{sT0}, s{hw}, 9
    s_add_u32 s{sT0}, s{sT0}, {LCSP}
    v_lshl_add_u32 v{t1}, v1, 5, s{sT0}
    s_mov_b64 exec, 0xffff
    ds_write_b128 v{t1}, {v(vFw,4)}
    ds_write_b128 v{t1}, {v(vFw+4,4)} offset:16
    s_mov_b64 exec, -1
    s_waitcnt lgkmcnt(0)""")
    bar(6)
    A(f"""v_and_b32 v{t0}, 31, v1
    s_lshl_b32 s{sT0}, s{hw}, 5
    v_add_u32 v{t0}, s{sT0}, v{t0}
    v_lshlrev_b32 v{t1}, 2, v{t0}
    v_add_u32 v{t1}, {LCSP}, v{t1}""")
    for w in range(4): A(f'ds_read_b32 v{vCS+w}, v{t1} offset:{512*w}')
    A(f"""v_and_b32 v{t1}, 7, v{t0}
    v_lshrrev_b32 v{t0}, 3, v{t0}
    v_lshl_add_u32 v{t0}, v{t1}, 4, v{t0}
    v_lshlrev_b32 v{t0}, 2, v{t0}
    v_add_u32 v{t0}, {LCS}, v{t0}""")
    gpoll(A0, 'L_PG', f'buffer_load_dwordx2 v[4:5], v2, s[{sWS}:{sWS+3}], s{sE} offen{SC}', [5], first=lambda: vwait('gl'))
    A(f"""v_and_b32 v{t2}, 0xffff0000, v4
    v_lshlrev_b32 v{t3}, 16, v4
    v_rcp_f32 v{t2}, v{t2}
    s_lshl_b32 s{sT0}, s{hw}, 8
    s_add_u32 s{sT0}, s{sT0}, {LSTAT}
    v_add_u32 v{t1}, s{sT0}, v2
    v_mul_f32 v{t2}, {NLOG2E}, v{t2}
    v_mul_f32_e64 v{t3}, -v{t3}, v{t2}
    ds_write_b64 v{t1}, v[{t2}:{t3}]
    s_waitcnt lgkmcnt(1)
    v_add_f32 v{vCS}, v{vCS}, v{vCS+1}
    v_add_f32 v{vCS+2}, v{vCS+2}, v{vCS+3}
    v_add_f32 v{vCS}, v{vCS}, v{vCS+2}
    ds_write_b32 v{t0}, v{vCS}""")
    lds_inc(A0, vSy, CERT(8), vI1)
    ST('B8')
    UG = 16; sU0, sU1, sUok = 21, 22, 23
    A(f"""v_lshrrev_b32 v{t0}, 1, v1
    v_and_b32 v{t1}, 1, v1
    v_lshlrev_b32 v43, 4, v{t1}
    v_lshl_add_u32 v43, v{t0}, 13, v43
    s_lshl_b32 s{sU0}, s{sDP}, 5
    s_lshl_b32 s{sT1}, s{hw}, 19
    s_add_u32 s{sU0}, s{sU0}, s{sT1}
    s_add_u32 s{sU0}, s{sU0}, {WS_XN}
    s_add_u32 s{sU1}, s{sU0}, {32*8192}
    v_mul_u32_u24 v{t1}, {UP}, v{t1}
    v_lshl_add_u32 v44, v{t0}, 4, v{t1}
    s_lshl_b32 s{sT0}, s{hw}, 10
    s_add_u32 s{sT0}, s{sT0}, {LU+480}
    v_add_u32 v44, s{sT0}, v44""")
    UL = f'buffer_load_dwordx4 {v(UG,4)}, v43, s[{sWS}:{sWS+3}], s{sU0} offen{SC}\nbuffer_load_dwordx4 {v(UG+4,4)}, v43, s[{sWS}:{sWS+3}], s{sU1} offen{SC}'
    vwait('f1')
    A0(f'v_cmp_ne_u32 vcc, s{sNon}, v40\ns_mov_b32 s{sUok}, 0\ns_cmp_eq_u64 vcc, 0')
    A.fwd_branch('s_cbranch_scc0 L_NOU')
    A0(UL + f'\ns_mov_b32 s{sUok}, 1')
    A.label('L_NOU')
    vq.add('u', 2)
    ST('p1')
    tw2(9)
    def UWRITE():
        vwait('u')
        A0(f's_cmp_eq_u32 s{sUok}, 1')
        A.fwd_branch('s_cbranch_scc1 L_UOK')
        gpoll(A0, 'L_P1', f'buffer_load_dword v40, v41, s[{sWS}:{sWS+3}], s{sF1} offen{SC}', [40])
        A0(UL + '\ns_waitcnt vmcnt(0)')
        A.label('L_UOK')
        A(f'ds_write_b128 v44, {v(UG,4)}\nds_write_b128 v44, {v(UG+4,4)} offset:512')
    if cfg.get('dbgw'):
        vwait(('w', 1)); ST('dw1'); vwait('u'); ST('du'); vwait('tw'); ST('dtw')
    kaddr()
    lds_wait(A0, 'L_WD7a', vSy, DONE(7), 4, t3, sT0, sleep=1)
    A0(f's_setprio {cfg.get("kprio", 3)}')
    ST('k0')
    kphase()
    A0(f's_setprio {cfg.get("wprio", 0)}')
    if cfg.get('stn', 4): lds_wait(A0, 'L_WST', vSy, SY_ST, cfg.get('stn', 4), t3, sT0, sleep=1)
    ST('st')
    ldWn(2); A.flush()
    lds_wait(A0, 'L_WXS', vSy, SY_U, 4, t3, sT0)
    ldWn(2); A.flush()
    D2 = cfg.get('d2', 5)
    NW = NREG + 6
    A(f"""s_lshl_b32 s{sE}, s{sRB2}, 7
    s_lshl_b32 s{sT1}, s{hw}, 5
    s_add_u32 s{sE}, s{sE}, s{sT1}
    s_add_u32 s{sE}, s{sE}, {WS_F2}
    v_and_b32 v{t0}, 7, v1
    v_lshlrev_b32 v{t0}, 2, v{t0}""")
    F2L = f'buffer_load_dword v{t2}, v{t0}, s[{sWS}:{sWS+3}], s{sE} offen{SC}'
    for i in range(NREG + 1):
        if i < NREG:
            vwait(('w', i))
            ST(f'W{i}')
            rdW(i, WR + 16 * i)
        while nw[0] < NW and nw[0] <= i + D2 and nw[0] - 6 <= i - 1:
            if nw[0] >= 6: A0(f's_waitcnt lgkmcnt({8 if i < NREG else 0})')
            if nw[0] == NW - cfg.get('f2early', 1): A(F2L, 'f2')
            ldWn(1); A.flush()
    assert nw[0] == NW
    A.flush()
    load_x_final(A0); vq.add('x')
    ST('wpre')
    gpoll(A0, 'L_P2', F2L, [t2], sleep=cfg.get('p2sleep', 4), first=lambda: vwait('f2'))
    if cfg.get('inv'): A0('buffer_inv sc1'); vq.add('inv')
    ST('p2')
    if cfg.get('hprio'): A(f's_setprio {cfg["hprio"]}')
    ACC = 192
    free = [16, 32] + list(range(64, WR, 16))
    hbuf = {}
    nh = 0
    def ldH():
        nonlocal nh
        if nh >= 14 or not free: return
        b = free.pop(0); hbuf[nh] = b
        for q in range(4):
            pre = f's_lshl_b32 s{b1}, s{sK}, 10\ns_add_u32 s{b1}, s{sH}, s{b1}\ns_add_u32 s{sK}, s{sK}, 1\ns_cmp_eq_u32 s{sK}, 14\ns_cselect_b32 s{sK}, 0, s{sK}\n' if q == 0 else ''
            A.push(pre + f'buffer_load_dwordx4 {v(b+4*q,4)}, v{vH+q}, s[{sWS}:{sWS+3}], s{b1} offen{cfg.get("hsc", SC)}', ('h', nh))
        nh += 1
    while free: ldH()
    A.flush()
    A0(f"""v_and_b32 v2, 15, v1
    v_lshrrev_b32 v3, 4, v1
    v_xor_b32 v3, v3, v2
    v_lshlrev_b32 v3, 4, v3
    v_lshl_add_u32 v2, v2, 8, v3
    v_add_u32 v2, s{sLb}, v2
    v_xor_b32 v3, 64, v2
    v_xor_b32 v4, 128, v2
    v_xor_b32 v5, 192, v2""")
    A.every = cfg.get('every2', 6)
    wfrag = {i: WR + 16 * i for i in range(NREG)}
    wtmp = []; pend = []
    def rdWl(i, dst):
        base = RING[i % 6]; hi = 4 if base >= 65536 else 0; base &= 65535
        return [f'ds_read_b64_tr_b16 {v(dst+4*T+2*hh,2)}, v{vR+hi+T} offset:{base+hh*512}' for T in range(4) for hh in range(2)]
    LP = cfg.get('lpos', [0, 8])
    for i in range(14):
        if i == cfg.get('trig', 10):
            A0(f'ds_write_b32 v{vSy}, v{vI1} offset:{SY_TRIG}')
        rd = []
        vwait(('h', i))
        ST(f'h{i}')
        if i >= NREG:
            A0('s_waitcnt lgkmcnt(0)')
            if nw[0] < 14: ldWn(1)
        if NREG <= i + 1 < 14:
            vwait(('w', i + 1))
            wfrag[i + 1] = wtmp.pop(0); rd = rdWl(i + 1, wfrag[i + 1])
        n = 0
        per = -(-len(A.q) // len(LP))
        for T in range(4):
            for q in range(4):
                a = ACC + 16 * T + 4 * q
                A0(f'v_mfma_f32_16x16x32_bf16 {v(a,4)}, {v(wfrag[i]+4*T,4)}, {v(hbuf[i]+4*q,4)}, {"0" if i == 0 else v(a,4)}')
                if n in LP:
                    for _ in range(per):
                        if A.q: A.pop()
                elif rd: A0(rd.pop(0))
                if i == 13:
                    pend.append(f'ds_write_b128 v{2+T}, {v(a,4)} offset:{PART[q]}')
                    if len(pend) > 4: A0(pend.pop(0))
                n += 1
        if i == 13: A0('\n'.join(pend))
        assert not rd
        A.flush()
        free.append(hbuf[i])
        if i >= NREG - 3: wtmp.append(wfrag[i])
        else: free.append(wfrag[i])
        for _ in range(2):
            if nh - (i + 1) < cfg.get('hd', 5): ldH()
    ST('g2')

def gen_final(A, cfg, ST):
    A.label('L_FINAL')
    t0, t1, t2, t3 = 4, 5, 6, 7
    PB = 16; SV = 48; E = 52; XU = 60; SU = 68
    A(f"""v_lshrrev_b32 v{t0}, 3, v0
    v_and_b32 v{t1}, 7, v0
    v_and_b32 v2, 15, v{t0}
    v_lshlrev_b32 v3, 1, v{t1}
    v_xor_b32 v3, v3, v2
    v_lshlrev_b32 v3, 4, v3
    v_lshl_add_u32 v{t2}, v2, 8, v3
    v_lshrrev_b32 v2, 7, v0
    v_lshl_add_u32 v{t2}, v2, 14, v{t2}
    v_xor_b32 v{t3}, 16, v{t2}
    v_bfe_u32 v3, v0, 5, 3
    v_xor_b32 v{t1}, v{t1}, v3
    v_lshlrev_b32 v{t1}, 4, v{t1}
    v_lshl_add_u32 v{t1}, v{t0}, 7, v{t1}
    v_add_u32 v{t1}, {LS}, v{t1}
    s_mov_b32 s{sM0}, {NLOG2E}
    s_mov_b32 s{sM0+1}, {NLOG2E}
    s_waitcnt vmcnt(0) lgkmcnt(0)
    s_barrier""")
    for w in range(4):
        for hh in range(2): A(f'ds_read_b128 {v(PB+8*w+4*hh,4)}, v{t2+hh} offset:{w*4096}')
    A(f'ds_read_b128 {v(SV,4)}, v{t1}')
    for j in range(4): A(f'v_lshlrev_b32 v{XU+2*j}, 16, v{vX+j}\nv_and_b32 v{XU+2*j+1}, 0xffff0000, v{vX+j}')
    A('s_waitcnt lgkmcnt(5)')
    for j in range(4): A(f'v_pk_add_f32 {v(PB+2*j,2)}, {v(PB+2*j,2)}, {v(PB+8+2*j,2)}')
    A('s_waitcnt lgkmcnt(1)')
    for j in range(4): A(f'v_pk_add_f32 {v(PB+16+2*j,2)}, {v(PB+16+2*j,2)}, {v(PB+24+2*j,2)}')
    for j in range(4): A(f'v_pk_add_f32 {v(PB+2*j,2)}, {v(PB+2*j,2)}, {v(PB+16+2*j,2)}')
    for j in range(4): A(f'v_pk_mul_f32 {v(E+2*j,2)}, {v(PB+2*j,2)}, s[{sM0}:{sM0+1}]')
    for j in range(8): A(f'v_exp_f32 v{E+j}, v{E+j}')
    for j in range(4): A(f'v_pk_add_f32 {v(E+2*j,2)}, {v(E+2*j,2)}, 1.0 op_sel_hi:[1,0]')
    for j in range(8): A(f'v_rcp_f32 v{E+j}, v{E+j}')
    A('s_waitcnt lgkmcnt(0)')
    for j in range(4): A(f'v_lshlrev_b32 v{SU+2*j}, 16, v{SV+j}\nv_and_b32 v{SU+2*j+1}, 0xffff0000, v{SV+j}')
    for j in range(4): A(f'v_pk_mul_f32 {v(PB+2*j,2)}, {v(PB+2*j,2)}, {v(E+2*j,2)}')
    for j in range(4): A(f'v_pk_fma_f32 {v(PB+2*j,2)}, {v(PB+2*j,2)}, {v(SU+2*j,2)}, {v(XU+2*j,2)}')
    for j in range(4): A(f'v_cvt_pk_bf16_f32 v{SV+j}, v{PB+2*j}, v{PB+2*j+1}')
    A(f'buffer_store_dwordx4 {v(SV,4)}, v{vXo}, s[{sOUT}:{sOUT+3}], 0 offen{cfg.get("outf", " sc1")}')
    ST.dump(sWS, 100, 101)

DOC = '''; Design (one workgroup per CU, 8 waves: H = waves 0-3, M = waves 4-7; generated by a script of my own):
'''

if __name__ == '__main__':
    out = sys.argv[1]
    cfg = eval(sys.argv[2]) if len(sys.argv) > 2 else {}
    PRESET = {1: dict(H=['ld','par','kt','B0','B4','B8','u','st','wpre','p2','g2','y'], M=['row','xn','kg','B0','B4','g1','epi','cv0','f2','cv1','f3','p3']),
              2: dict(H=['b0','b1','b2','b3','b4','b5','b6','b7','b8','p1','u','wpre'], M=['kg','B0','B1','B2','B3','B4','B5','B6','B7','B8','g1','epi'])}
    PRESET[3] = dict(H=['wpre','p2','g2'], M=['B0','g1','epi','f2','cv1','p3'])
    PRESET[4] = dict(H=['u','st','W0','W3','W6','wpre','p2','h0','h2','h5','h9','g2'], M=['g1','epi','cv0','f2','cv1','f3','p3'])
    PRESET[5] = dict(H=['kt','B0','B4','B8','k0','k1','u','st','wpre','p2','h2','g2'], M=['kg','g1','epi','f2a','cv0','f2','cv1','f3','p3'])
    PRESET[6] = dict(H=['p2','h0','h1','h2','h3','h4','h6','h8','h10','h12','h13','g2'], M=['cv1','f3','p3'])
    PRESET[7] = dict(H=['B5','B6','B8','p1','dw1','du','dtw','k0','u','wpre','p2','g2'], M=['g1','epi'])
    if cfg.get('stamps') in PRESET:
        cfg['stamps'] = PRESET[cfg['stamps']]
        print('H:', ' '.join('%6s' % a for a in ['t0'] + cfg['stamps']['H'] + ['end']))
        print('M:', ' '.join('%6s' % a for a in ['t0'] + cfg['stamps']['M'] + ['end']))
    MINSLEEP[0] = cfg.get('minsleep', 0)
    A = Asm()
    head = open('cdna_kernels/%s.s.ref' % NAME).read().split('; Override')[0]
    A.raw('.amdgcn_target "amdgcn-amd-amdhsa--gfx950"\n.text')
    k = gen(A, cfg)
    open(out, 'w').write(head + DOC + '; @launch grid=(256,1,1) block=(512,1,1) lds=163840\n' + A.text() + '.section .rodata,"a"\n.p2align 6\n' + k)
```

```python
import sys, math, struct
from asmlib import Asm
from gen import NAME, f32, LOG2E, NLOG2E, INV2PI, v, s, srd, kernel_head, kd, cmul, bf16r, interleave

WS_H = 0
WS_XN = 0x700000
WS_SP = 0x900000
WS_GR = 0xD00000
WS_F1 = WS_GR + 0x4000
WS_F2 = WS_F1 + 0x1000
WS_F3 = WS_F2 + 0x1000
WS_EP = WS_F3 + 0x400
WS_STAMP = 0xD10000
WS_SIZE = 0xE00000
SC = ' sc1'

def Aslot(i): return i * 16384
def Bslot(i): return 65536 + i * 16384
LC = 131072
LDD = LC
LNB = LC + 16384; LNP = 1088
TOP = LC + 28672
LSTAT, LCS, LSY = TOP, TOP + 3072, TOP + 3584
LCSP = LNB
LKC = Bslot(3); KCP = 4160
LEX = LKC
LU = LKC + 8 * KCP; UP = 4608
LS = LU
RING = [Aslot(0), Bslot(0), Aslot(1), Bslot(1), Aslot(2), Bslot(2)]
PART = [Aslot(0), Aslot(1), Aslot(2), Aslot(3)]
SY_U, SY_H, SY_K, SY_CV, SY_EX, SY_S, SY_TRIG = 0, 4, 8, 16, 20, 24, 28
SY_XN, SY_XS, SY_KG, SY_ST = 48, 52, 56, 68
def CERT(st): return 64 + 4 * st
def DONE(st): return 128 + 4 * st

MINSLEEP = [0]
class Q:
    def __init__(s, A, name, mx): s.A, s.name, s.mx, s.q = A, name, mx, []
    def add(s, tag, n=1): s.q += [tag] * n
    def wait(s, tag):
        if tag not in s.q: return
        i = len(s.q) - 1 - s.q[::-1].index(tag)
        n = len(s.q) - 1 - i
        n = min(n, s.mx)
        s.A(f's_waitcnt {s.name}({n})'); s.q = s.q[len(s.q) - n:] if n else []
    def all(s):
        s.A(f's_waitcnt {s.name}(0)'); s.q = []

class BG:
    def __init__(s, A, vq, every): s.A, s.vq, s.every, s.q, s.n, s.hold = A, vq, every, [], 0, 0
    def push(s, text, tag): s.q.append((text, tag))
    def pop(s):
        t, tag = s.q.pop(0); s.A(t); s.vq.add(tag); s.n = 0
    def flush(s, tag=None):
        while s.q and (tag is None or any(t == tag for _, t in s.q)): s.pop()
    def __call__(s, text, tag=None):
        for line in text.strip().split('\n'):
            l = line.strip()
            if not l: continue
            if 'exec' in l.split(',')[0] and '-1' not in l: s.hold = 1
            if l.startswith('s_waitcnt lgkmcnt') and not s.hold:
                for _ in range(2):
                    if s.q: s.pop()
            s.A(l)
            if l.startswith(('buffer_', 'global_')):
                assert tag is not None, l
                s.vq.add(tag)
            if l.startswith('s_mov_b64 exec, -1'): s.hold = 0
            w = 3 if l.startswith('v_mfma') else 1
            s.n += w
            if s.q and not s.hold and s.n >= s.every and not l.startswith(('s_cmp', 's_sub_u32', 's_add_u32', 'v_cmp', 's_or_b64', 's_bitcmp')): s.pop()
    def __getattr__(s, k): return getattr(s.A, k)

class Stamps:
    def __init__(self, A, on): self.A, self.on, self.role = A, on, 'H'
    def start(self):
        if self.on: self.A('s_memrealtime s[70:71]\ns_memtime s[72:73]')
    def __call__(self, name):
        if self.on and name in self.on[self.role]:
            i = 1 + self.on[self.role].index(name)
            self.A(f's_memtime s[{72+2*i}:{73+2*i}]')
    def dump(self, sWS, vt, vo):
        if not self.on: return
        A = self.A
        A('s_waitcnt vmcnt(0)\ns_memtime s[98:99]\ns_memrealtime s[100:101]\ns_waitcnt lgkmcnt(0)')
        for i in range(16): A(f'v_writelane_b32 v{vt}, s{70+2*i}, {i}')
        A(f"""v_lshrrev_b32 v{vo}, 6, v0
        v_lshlrev_b32 v{vo}, 7, v{vo}
        v_and_b32 v{vo+1}, 63, v0
        v_lshl_add_u32 v{vo}, v{vo+1}, 2, v{vo}
        s_lshl_b32 s70, s2, 10
        s_add_u32 s70, s70, {WS_STAMP}
        s_mov_b64 exec, 0xffff
        buffer_store_dword v{vt}, v{vo}, s[{sWS}:{sWS+3}], s70 offen
        s_mov_b64 exec, -1""")

sX, sW1, sWS, sW2, sOUT = 4, 8, 12, 44, 48
pX, pLAR, pAIM, pCRE, pCIM, pLDT, pDSK, pW1, pW2, pOUT, pDBG, pWS = 16, 18, 20, 22, 24, 26, 28, 32, 34, 36, 38, 40
sWave, sRB, sCB, sT0, sT1, sT2, sOdd, sCh0, sDP, sNon, sCap, sRB2, sCB2 = 52, 53, 54, 55, 56, 57, 58, 59, 60, 61, 62, 63, 64
sA, sB, sC, sD, sE = 65, 66, 67, 68, 69
sK0 = 3
sM0 = 30
sM1 = 42

def lds_wait(A, name, vaddr, off, val, vt, st, sleep=0):
    A(f's_mov_b32 s{sCap}, 0x1000000')
    if sleep:
        A.fwd_branch(f's_branch {name}_R')
        A.label(name)
        A(f's_sleep {sleep}')
        A.label(name + '_R')
    else:
        A.label(name)
    A(f'''ds_read_b32 v{vt}, v{vaddr} offset:{off}
    s_waitcnt lgkmcnt(0)
    v_readfirstlane_b32 s{st}, v{vt}
    s_sub_u32 s{sCap}, s{sCap}, 1
    s_cselect_b32 s{st}, {val}, s{st}
    s_cmp_lt_u32 s{st}, {val}''')
    A.back_branch(f's_cbranch_scc1 {name}', name)

def lds_inc(A, vaddr, off, vone, rtn=None):
    A('s_mov_b64 exec, 1')
    if rtn is None: A(f'ds_add_u32 v{vaddr}, v{vone} offset:{off}')
    else: A(f'ds_add_rtn_u32 v{rtn}, v{vaddr}, v{vone} offset:{off}')
    A('s_mov_b64 exec, -1')

def gpoll(A, name, load, checks, sleep=8, first=None):
    A(f's_mov_b32 s{sCap}, 0x80000')
    if first:
        first()
        A.fwd_branch(f's_branch {name}_C')
    A.label(name)
    A(f'{load}\ns_waitcnt vmcnt(0)')
    A.label(name + '_C')
    A(f'v_cmp_ne_u32 vcc, s{sNon}, v{checks[0]}')
    for c in checks[1:]:
        A(f'v_cmp_ne_u32 s[{sM1}:{sM1+1}], s{sNon}, v{c}\ns_or_b64 vcc, vcc, s[{sM1}:{sM1+1}]')
    A(f'''s_cmp_eq_u64 vcc, 0
    s_cbranch_scc1 {name}_D
    s_sub_u32 s{sCap}, s{sCap}, 1
    s_cbranch_scc1 {name}_D
    s_sleep {sleep}''')
    A.back_branch(f's_branch {name}', name)
    A.label(name + '_D')

def x_read_addr(A, vXr, sw, t0, t1, t2):
    A(f"""v_and_b32 v{t0}, 15, v1
    v_lshrrev_b32 v{t1}, 4, v1
    v_lshrrev_b32 v{t2}, 1, v{t0}
    v_xor_b32 v{t2}, v{t2}, v{t1}
    v_lshlrev_b32 v{t2}, 4, v{t2}
    v_lshl_add_u32 v{t2}, v{t0}, 7, v{t2}
    s_lshl_b32 s{sT0}, s{sw}, 12
    v_add_u32 v{vXr}, s{sT0}, v{t2}
    v_xor_b32 v{vXr+1}, 64, v{vXr}""")

def kgen_tables(kP, PC, PR, YS):
    lar, aim, cre, cim, cre2, cim2, ldt = [kP + i for i in range(7)]
    dt, a1, w1, t2, t3 = 72, 73, 74, 78, 79
    C = 80; F1, F2, F4, F8, F256, G8, G16, G128 = 82, 84, 86, 88, 90, 92, 94, 96
    X = [98, 100, 102, 104, 106, 108, 110, 112]
    L = []
    for r in range(7): L.append(f'v_lshlrev_b32 v{kP+r}, 16, v{kP+r}')
    L += [f'v_mul_f32 v{dt}, {LOG2E}, v{ldt}', f'v_mul_f32 v{a1}, {LOG2E}, v{lar}', f'v_exp_f32 v{dt}, v{dt}', f'v_exp_f32 v{a1}, v{a1}',
          f'v_max3_f32 v{t2}, |v{cre}|, |v{cim}|, |v{cre2}|', f'v_max_f32_e64 v{t2}, v{t2}, |v{cim2}|']
    La = bf16r(dt, dt) + bf16r(a1, a1) + [f'v_mul_f32 v{a1}, v{a1}, v{dt}', f'v_mul_f32 v{w1}, v{aim}, v{dt}', f'v_mul_f32 v{a1}, {NLOG2E}, v{a1}', f'v_mul_f32 v{w1}, {INV2PI}, v{w1}']
    def direct(d, pos, ta, tb, neg=False):
        return [f'v_mul_f32 v{ta}, {f32(pos)}, v{a1}', f'v_mul_f32 v{tb}, {f32(-pos if neg else pos)}, v{w1}', f'v_exp_f32 v{ta}, v{ta}', f'v_fract_f32 v{tb}, v{tb}',
                f'v_cos_f32 v{d}, v{tb}', f'v_sin_f32 v{d+1}, v{tb}', f'v_mul_f32 v{d}, v{d}, v{ta}', f'v_mul_f32 v{d+1}, v{d+1}, v{ta}']
    La += interleave(direct(G8, 8.0, X[0], X[0] + 1, True), direct(G128, 128.0, X[1], X[1] + 1, True))
    La += interleave(direct(F1, 1.0, X[2], X[2] + 1), direct(F256, 256.0, X[3], X[3] + 1))
    Lb = []
    for r in (1, 2, 4, 8): Lb += [f'v_max_f32_dpp v{t2}, v{t2}, v{t2} row_ror:{r} row_mask:0xf bank_mask:0xf', None]
    for op in ('v_permlane16_swap_b32', 'v_permlane32_swap_b32'):
        Lb += [f'v_mov_b32 v{t3}, v{t2}', None, f'{op} v{t2}, v{t3}', f'v_max_f32 v{t2}, v{t2}, v{t3}']
    Lb += [f'v_lshrrev_b32 v{t2}, 23, v{t2}', f'v_min_u32 v{t2}, 253, v{t2}', f'v_sub_u32 v{t3}, 254, v{t2}',
           f'v_lshlrev_b32 v{t3}, 23, v{t3}', f'v_lshlrev_b32 v{t2}, 23, v{t2}',
           f'v_mul_f32 v{C}, v{cre}, v{t3}', f'v_mul_f32 v{C+1}, v{cim}, v{t3}',
           f'v_mul_f32 v{YS}, v{t2}, v{dt}', f'v_add_f32 v{YS}, v{YS}, v{YS}']
    L += [x for x in interleave(La, Lb) if x]
    L += cmul(G16, G8, G8) + cmul(F2, F1, F1) + [f'v_mov_b32 v{F8}, v{G8}', f'v_xor_b32 v{F8+1}, 0x80000000, v{G8+1}'] + cmul(F4, F2, F2)
    def cv(P, idx, src): return f'v_cvt_pk_f16_f32 v{P+idx}, v{src}, v{src+1}'
    def colchain(par, xa, xb, xc):
        Qq = []
        if par == 0:
            Qq += [f'v_mov_b32 v{PC}, 0x3c00', cv(PC, 16, G128)]; cur = G16; js = range(2, 16, 2)
        else:
            cur = G8; js = range(1, 16, 2)
        first = True
        for j in js:
            if not first:
                d = xa if cur != xa else xb; Qq += cmul(d, cur, G16); cur = d
            first = False
            Qq += cmul(xc, cur, G128) + [cv(PC, j, cur), cv(PC, j + 16, xc)]
        return Qq
    L += interleave(colchain(0, X[0], X[1], X[2]), colchain(1, X[3], X[4], X[5]))
    def ridx(rho, hf): return 8 * (rho >> 2) + 4 * hf + (rho & 3)
    Qa = [cv(PR, ridx(0, 0), C)]; cur = C
    for e in range(1, 8):
        d = X[0] if cur != X[0] else X[1]; Qa += cmul(d, cur, F1) + [cv(PR, ridx(e, 0), d)]; cur = d
    B1 = X[7]
    Qb = cmul(B1, C, F256) + [cv(PR, ridx(0, 1), B1), cv(PR, ridx(1, 1), B1)]
    Qc = []; cur = B1
    for k, rhos in enumerate([[2], [3, 4, 5], [6], [7]]):
        d = X[2] if cur != X[2] else X[3]; Qc += cmul(d, cur, F2) + [cv(PR, ridx(r, 1), d) for r in rhos]; cur = d
    Bc, Bn = B1, X[4]; alt = X[5]
    for sp in range(6):
        Qb += cmul(Bn, Bc, F256); Bc = Bn; Bn = alt if Bc == X[4] else X[4]
        if sp < 2:
            Qb += [cv(PR, ridx(8, sp), Bc)] + cmul(X[6], Bc, F4) + [cv(PR, ridx(9, sp), X[6])] + cmul(X[6], Bc, F8) + [cv(PR, ridx(10, sp), X[6])]
        else:
            rho = 11 + 2 * ((sp - 2) >> 1); hf = sp & 1
            Qb += [cv(PR, ridx(rho, hf), Bc)] + cmul(X[6], Bc, F8) + [cv(PR, ridx(rho + 1, hf), X[6])]
    L += Qb[:2] + interleave(Qb[2:], Qa + Qc)
    L += [f'v_mov_b32 v{PR+27}, 0', f'v_mov_b32 v{PR+31}, 0']
    return L

KN = NAME + '_kernel'

def gen(A, cfg):
    kernel_head(A, KN)
    A('s_cmp_ge_u32 s2, 256\ns_cbranch_scc1 L_END')
    ST = Stamps(A, cfg.get('stamps')); ST.start()
    A(f"""s_load_dwordx16 s[16:31], s[0:1], 0
    s_load_dwordx8 s[32:39], s[0:1], 64
    s_load_dwordx2 s[40:41], s[0:1], 96
    s_getpc_b64 s[{sM1}:{sM1+1}]""")
    A.raw('L_PC0:')
    if cfg.get('cpfall', 1):
        A('v_lshlrev_b32 v2, 7, v0\nv_cmp_gt_u32 vcc, L_CODE_END-L_PC0, v2')
    else:
        A(f's_lshr_b32 s{sT0}, s2, 3\ns_lshl_b32 s{sT0}, s{sT0}, 7\nv_lshl_add_u32 v2, v0, 12, s{sT0}\nv_cmp_gt_u32 vcc, L_CODE_END-L_PC0, v2')
    A(f"""s_and_saveexec_b64 s[{sA+1}:{sA+2}], vcc
    s_cbranch_execz L_NOCPF
    global_load_dword v159, v2, s[{sM1}:{sM1+1}]""")
    A.label('L_NOCPF', fence=False)
    A(f"""s_mov_b64 exec, -1
    v_lshrrev_b32 v2, 6, v0
    v_and_b32 v1, 63, v0
    v_readfirstlane_b32 s{sWave}, v2
    s_bfe_u32 s{sT0}, s2, 0x20001
    s_lshl_b32 s{sT0}, s{sT0}, 2
    s_bfe_u32 s{sT1}, s2, 0x20003
    s_add_u32 s{sRB}, s{sT0}, s{sT1}
    s_and_b32 s{sT0}, s2, 1
    s_lshl_b32 s{sT0}, s{sT0}, 3
    s_lshr_b32 s{sCB2}, s2, 5
    s_add_u32 s{sCB}, s{sT0}, s{sCB2}
    s_lshl_b32 s{sT2}, s{sT1}, 1
    s_add_u32 s{sCh0}, s{sT2}, s{sCB2}
    s_and_b32 s{sOdd}, s{sCB}, 1
    s_and_b32 s{sT0}, s2, 7
    s_lshl_b32 s{sRB2}, s{sT0}, 2
    s_add_u32 s{sRB2}, s{sRB2}, s{sT1}
    s_lshl_b32 s{sDP}, s{sT0}, 5
    s_lshr_b32 s{sT0}, s2, 3
    s_add_u32 s{sDP}, s{sDP}, s{sT0}
    s_mul_i32 s{sK0}, s{sCB2}, 14
    s_lshr_b32 s{sK0}, s{sK0}, 3
    s_mul_i32 s{sT0}, s{sT1}, 7
    s_lshr_b32 s{sT0}, s{sT0}, 1
    s_add_u32 s{sK0}, s{sK0}, s{sT0}
    s_sub_u32 s{sT0}, s{sK0}, 14
    s_cmp_ge_u32 s{sK0}, 14
    s_cselect_b32 s{sK0}, s{sT0}, s{sK0}
    v_lshlrev_b32 v2, 2, v1
    v_add_u32 v2, {LSY}, v2
    v_mov_b32 v14, 0
    ds_write_b32 v2, v14
    s_cmp_lt_u32 s{sWave}, 4""")
    A.fwd_branch('s_cbranch_scc0 L_M')
    n0 = len(A.out)
    A.label('L_M')
    gen_M(A, cfg, ST)
    n1 = len(A.out)
    gen_H(A, cfg, ST)
    Mt, Ht = A.out[n0:n1], A.out[n1:]
    k = Ht.index('; @@SPLIT')
    A.out[n0:] = Ht[:k] + ['    s_branch L_H2'] + Mt + ['L_H2:'] + Ht[k+1:]
    gen_final(A, cfg, ST)
    A.label('L_END', fence=False)
    A('s_endpgm')
    A.raw('L_CODE_END:')
    return kd(KN, 256, 102)

vX, vXo = 8, 12

def load_x_final(A):
    A(f"""v_lshrrev_b32 v2, 3, v0
    v_and_b32 v3, 7, v0
    v_lshlrev_b32 v3, 4, v3
    v_lshl_add_u32 v{vXo}, v2, 10, v3
    s_lshl_b32 s{sT0}, s{sRB2}, 16
    s_lshl_b32 s{sT1}, s{sCB2}, 7
    s_add_u32 s{sT0}, s{sT0}, s{sT1}
    v_add_u32 v{vXo}, s{sT0}, v{vXo}
    buffer_load_dwordx4 {v(vX,4)}, v{vXo}, s[{sX}:{sX+3}], 0 offen""")

def gen_M(A, cfg, ST):
    ST.role = 'M'
    mw = sWave
    t0, t1, t2, t3 = 16, 17, 18, 19
    kP = 64; D = 232
    vRow, vTmp, vOne = 160, 168, 184
    PC, PR, YS, WA = 192, 224, 189, 160
    vSyM, vOneM, vFl = 14, 15, 3
    A(f"""s_sub_u32 s{mw}, s{mw}, 4
    v_lshlrev_b32 v{t3}, 21, v1
    v_lshlrev_b32 v187, 4, v1
    v_mov_b32 v188, {WS_EP}
    s_lshl_b32 s{sT0}, s{sDP}, 13
    s_lshl_b32 s{sT1}, s{mw}, 11
    s_add_u32 s{sT0}, s{sT0}, s{sT1}
    v_add_u32 v186, s{sT0}, v187
    s_lshl_b32 s{sT0}, s2, 2
    s_add_u32 s{sT0}, s{sT0}, s{mw}
    s_mul_i32 s{sT0}, s{sT0}, {14*128}
    v_lshl_add_u32 v185, v1, 7, s{sT0}
    s_waitcnt lgkmcnt(0)
    global_load_dword v188, v188, s[{pWS}:{pWS+1}]{SC}
    global_load_dwordx4 {v(vRow,4)}, v186, s[{pX}:{pX+1}]
    global_load_dwordx4 {v(vRow+4,4)}, v186, s[{pX}:{pX+1}] offset:1024""")
    srd(A, sWS, pWS, WS_SIZE); srd(A, sX, pX, 2048 * 1024); srd(A, sOUT, pOUT, 2048 * 1024)
    A(f"""s_mov_b64 exec, 0x7f
    buffer_load_dword v156, v{t3}, s[{sWS}:{sWS+3}], 0 offen
    s_mov_b64 exec, 1
    global_load_dword v157, v{t3}, s[{pOUT}:{pOUT+1}]
    s_mov_b64 exec, {'0x3fff' if cfg.get('mall', 0) else '1'}
    global_load_dword v158, v185, s[{pW2}:{pW2+1}]
    s_mov_b64 exec, -1
    s_barrier
    s_lshl_b32 s{sT0}, s{sDP}, 2
    s_load_dword s{sD}, s[{pDSK}:{pDSK+1}], s{sT0}""")
    if cfg.get('lnprio'): A(f's_setprio {cfg["lnprio"]}')
    ST('ld')
    vXr, vWr = 4, 6
    F = [20, 56]; ACC = 92
    x_read_addr(A, vXr, mw, t0, t1, t2)
    A(f"""v_lshrrev_b32 v{t0}, 4, v1
    v_bfe_u32 v{t1}, v1, 2, 2
    v_and_b32 v{t2}, 1, v{t0}
    v_lshl_or_b32 v{t2}, v{t2}, 2, v{t1}
    v_lshl_add_u32 v{t0}, v{t0}, 3, v{t1}
    v_and_b32 v{t1}, 3, v1
    v_lshlrev_b32 v{t1}, 3, v{t1}
    v_lshl_add_u32 v{t3}, v{t0}, 8, v{t1}
    v_add_u32 v{t3}, {Bslot(0)}, v{t3}""")
    for tau in range(7):
        A(f'v_xor_b32 v{t0}, {tau}, v{t2}\nv_lshl_add_u32 v{vWr+tau}, v{t0}, 5, v{t3}')
    A(f'v_mov_b32 v{vOne}, 0x3f803f80\ns_waitcnt lgkmcnt(0)')
    A('s_waitcnt vmcnt(3)')
    ST('row')
    class Col:
        def __init__(s): s.L = []
        def __call__(s, t): s.L += [x.strip() for x in t.strip().split('\n') if x.strip()]
    A_ = A; A = Col()
    S = [vTmp + i for i in range(4)]
    T = [vTmp + 4 + i for i in range(4)]
    for r in range(2):
        for j in range(4):
            x = vRow + 4 * r + j
            if j == 0:
                A(f'v_dot2_f32_bf16 v{S[r]}, v{x}, v{vOne}, 0\nv_dot2_f32_bf16 v{S[2+r]}, v{x}, v{x}, 0')
            else:
                A(f'v_dot2_f32_bf16 v{S[r]}, v{x}, v{vOne}, v{S[r]}\nv_dot2_f32_bf16 v{S[2+r]}, v{x}, v{x}, v{S[2+r]}')
    for rr in (1, 2, 4, 8):
        for i in range(4): A(f'v_add_f32_dpp v{S[i]}, v{S[i]}, v{S[i]} row_ror:{rr} row_mask:0xf bank_mask:0xf')
    for op in ('v_permlane16_swap_b32', 'v_permlane32_swap_b32'):
        for i in range(4): A(f'v_mov_b32 v{T[i]}, v{S[i]}')
        for i in range(4): A(f'{op} v{S[i]}, v{T[i]}')
        for i in range(4): A(f'v_add_f32 v{S[i]}, v{S[i]}, v{T[i]}')
    Ls = []
    for r in range(2):
        m, e2, a, b = S[r], S[2 + r], T[r], T[2 + r]
        Ls.append([f'v_mul_f32 v{m}, {f32(1/512)}, v{m}', f'v_mul_f32 v{e2}, {f32(1/512)}, v{e2}',
                   f'v_fma_f32 v{e2}, -v{m}, v{m}, v{e2}', f'v_max_f32 v{e2}, 0, v{e2}'] + bf16r(e2, e2) + bf16r(m, m) +
                  [f'v_add_f32 v{e2}, {f32(1e-5)}, v{e2}'] + bf16r(e2, e2) + [f'v_sqrt_f32 v{e2}, v{e2}'] + bf16r(e2, e2) +
                  [f'v_rcp_f32 v{a}, v{e2}', f'v_mul_f32_e64 v{b}, -v{m}, v{a}', f'v_lshrrev_b32 v{m}, 16, v{m}', f'v_or_b32 v{m}, v{m}, v{e2}'])
    A('\n'.join(interleave(*Ls)))
    vSy, vI1 = vSyM, vOneM
    A(f"""v_readfirstlane_b32 s{sNon}, v188
    v_mov_b32 v{vSy}, {LSY}
    v_mov_b32 v{vI1}, 1
    s_mul_i32 s{sNon}, s{sNon}, 0x9e3779b1
    s_add_u32 s{sNon}, s{sNon}, 0x7f4a7c15
    v_cmp_eq_u32 vcc, 1, v1
    v_cndmask_b32 v{vTmp+8}, v{S[0]}, v{S[1]}, vcc
    v_mov_b32 v{vTmp+9}, s{sNon}
    ds_write_b32 v{vSy}, v{vTmp+9} offset:32""")
    for r in range(2):
        for j in range(4):
            x = vRow + 4 * r + j; u = vTmp + 10 + 2 * (j & 1)
            A(f"""v_lshlrev_b32 v{u}, 16, v{x}
            v_and_b32 v{u+1}, 0xffff0000, v{x}
            v_fma_f32 v{u}, v{u}, v{T[r]}, v{T[2+r]}
            v_fma_f32 v{u+1}, v{u+1}, v{T[r]}, v{T[2+r]}
            v_cvt_pk_f16_f32 v{x}, v{u}, v{u+1}""")
    A(f"""s_mul_i32 s{sT0}, s{mw}, {2*LNP}
    s_add_u32 s{sT0}, s{sT0}, {LNB}
    v_add_u32 v{t0}, s{sT0}, v187
    ds_write_b128 v{t0}, {v(vRow,4)}
    ds_write_b128 v{t0}, {v(vRow+4,4)} offset:{LNP}""")
    LNL = A.L; A = A_
    A('\n'.join(LNL))
    lds_inc(A, vSy, SY_XN, vI1)
    A(f"""v_bfe_u32 v{t0}, v1, 2, 2
    v_mul_u32_u24 v{t0}, {LNP}, v{t0}
    v_lshrrev_b32 v{t1}, 4, v1
    v_lshl_add_u32 v{t0}, v{t1}, 5, v{t0}
    v_and_b32 v{t1}, 3, v1
    v_lshl_add_u32 v{t0}, v{t1}, 3, v{t0}
    s_lshl_b32 s{sT0}, s{mw}, 8
    s_add_u32 s{sT0}, s{sT0}, {LNB}
    v_add_u32 v{t0}, s{sT0}, v{t0}""")
    lds_wait(A, 'L_WXN', vSy, SY_XN, 4, t3, sT0)
    for i in range(2):
        for hh in range(2): A(f'ds_read_b64_tr_b16 {v(vRow+4*i+2*hh,2)}, v{t0} offset:{128*i+4*LNP*hh}')
    ST('xn')
    ST('kt')
    lq = Q(A, 'lgkmcnt', 15)
    def reads(st, kap):
        slot = st & 3; f = F[kap]; L = []
        for q in range(2): L.append((f'ds_read_b128 {v(f+28+4*q,4)}, v{vXr+kap} offset:{Aslot(slot)+q*2048}', (st, kap, 0)))
        for tau in range(7):
            for hh in range(2):
                L.append((f'ds_read_b64_tr_b16 {v(f+4*tau+2*hh,2)}, v{vWr+tau} offset:{slot*16384+kap*8192+hh*1024}', (st, kap, tau)))
        return L
    def emit(rd):
        for t, tag in rd: A(t); lq.add(tag)
    vSyM, vOneM, vFl = 14, 15, 3
    def kstep(st, kap, rd, first=False, bar_at=None, bar_fn=None):
        f = F[kap]; k = 0; n = 0
        start = 0 if bar_at is None else bar_at
        slots = 14 - start - 1
        if bar_at is None: slots = cfg.get('r0', 13)
        flag = bar_at is not None and st == 7
        if flag: A(f'ds_read_b32 v{vFl}, v{vSyM} offset:{CERT(st+1)}'); lq.add('fl')
        for tau in range(7):
            lq.wait((st, kap, tau))
            for q in range(2):
                if n == bar_at:
                    lq.all()
                    if flag:
                        A(f'v_readfirstlane_b32 s{sT0}, v{vFl}')
                        A(f's_cmp_ge_u32 s{sT0}, {0 if cfg.get("nocheck") else 4}')
                        A(f's_cbranch_scc1 L_CK{st}')
                        lds_wait(A, f'L_CW{st}', vSyM, CERT(st+1), 4, vFl, sT0)
                        A.label(f'L_CK{st}', fence=False)
                    else:
                        A('s_barrier')
                    bar_fn and bar_fn()
                a = ACC + 8 * tau + 4 * q
                A(f'v_mfma_f32_16x16x32_bf16 {v(a,4)}, {v(f+4*tau,4)}, {v(f+28+4*q,4)}, {"0" if first else v(a,4)}')
                if n >= start:
                    want = min(len(rd), -(-len(rd) * (n - start + 1) // slots))
                    emit(rd[k:want]); k = max(k, want)
                n += 1
        emit(rd[k:])
    A(f"""v_lshlrev_b32 v{t0}, 3, v1
    s_lshl_b32 s{sT0}, s{sDP}, 6
    s_lshl_b32 s{sT1}, s{mw}, 4
    s_add_u32 s{sT0}, s{sT0}, s{sT1}
    s_add_u32 s{sT0}, s{sT0}, {WS_GR}
    s_setprio 3
    s_mov_b64 exec, 3
    buffer_store_dwordx2 {v(vTmp+8,2)}, v{t0}, s[{sWS}:{sWS+3}], s{sT0} offen{SC}
    s_mov_b64 exec, -1
    s_lshl_b32 s{sT0}, s{sDP}, 13
    s_lshl_b32 s{sT1}, s{mw}, 11
    s_add_u32 s{sT0}, s{sT0}, s{sT1}
    s_add_u32 s{sT0}, s{sT0}, {WS_XN}
    s_waitcnt lgkmcnt(0)
    buffer_store_dwordx4 {v(vRow,4)}, v187, s[{sWS}:{sWS+3}], s{sT0} offen{SC}
    buffer_store_dwordx4 {v(vRow+4,4)}, v187, s[{sWS}:{sWS+3}], s{sT0} offen offset:1024{SC}
    s_waitcnt lgkmcnt(0)""")
    A(f's_setprio {cfg.get("lprio", 0)}')
    ST('kg')
    A('s_barrier')
    ST('B0')
    emit(reads(0, 0))
    A(f'v_mov_b32 v{vFl}, s{sNon}')
    def twr(P, off): return [(f'ds_write2st64_b32 v{WA+i}, v{P+i}, v{P+i+16} offset0:{off+i} offset1:{off+i+16}', 'tw') for i in range(16)]
    ab = 20; cs = 24
    BA = cfg.get('bar_at', 4)
    for st in range(8):
        if st == cfg.get('f1st', 1):
            A(f"""s_lshl_b32 s{sT1}, s{sDP}, 2
            s_lshl_b32 s{sT0}, s{mw}, 10
            s_add_u32 s{sT1}, s{sT1}, s{sT0}
            s_add_u32 s{sT1}, s{sT1}, {WS_F1}
            v_mov_b32 v{t0}, 0
            s_waitcnt vmcnt(0)
            s_setprio 3
            s_mov_b64 exec, 1
            buffer_store_dword v{vFl}, v{t0}, s[{sWS}:{sWS+3}], s{sT1} offen{SC}
            s_mov_b64 exec, -1
            s_setprio {cfg.get('lprio', 0)}""")
        kstep(st, 0, reads(st, 1), first=(st == 0))
        if st < 7:
            def bf(st=st):
                ST(f'B{st+1}')
            if st == 6: kstep(st, 1, reads(st + 1, 0))
            else: kstep(st, 1, reads(st + 1, 0), bar_at=BA, bar_fn=bf)
        else:
            A(f"""v_and_b32 v{t0}, 15, v1
            s_lshl_b32 s{sT0}, s{mw}, 8
            s_add_u32 s{sT0}, s{sT0}, {LSTAT}
            v_lshl_add_u32 v{t1}, v{t0}, 3, s{sT0}
            v_lshrrev_b32 v{t0}, 4, v1
            v_lshlrev_b32 v{t0}, 4, v{t0}
            v_add_u32 v{t0}, {LCS}, v{t0}""")
            rd = [(f'ds_read_b64 {v(ab,2)}, v{t1}', 'e'), (f'ds_read_b64 {v(ab+2,2)}, v{t1} offset:128', 'e')]
            rd += [(f'ds_read_b128 {v(cs+4*tau,4)}, v{t0} offset:{64*tau}', 'e') for tau in range(7)]
            kstep(st, 1, rd, bar_at=BA, bar_fn=lambda: ST('B8'))
    A('s_waitcnt lgkmcnt(0)')
    lds_inc(A, vSyM, DONE(7), vOneM)
    ST('g1')
    if cfg.get('mprio', 2): A(f's_setprio {cfg.get("mprio", 2)}')
    sHb, sHs = sA, sC
    A(f"""s_lshl_b32 s{sT0}, s{sRB}, 3
    s_lshl_b32 s{sT1}, s{mw}, 1
    s_add_u32 s{sT0}, s{sT0}, s{sT1}
    s_mul_i32 s{sT0}, s{sT0}, 56
    s_lshr_b32 s{sT1}, s{sCB}, 1
    s_mul_i32 s{sT1}, s{sT1}, 7
    s_add_u32 s{sT0}, s{sT0}, s{sT1}
    s_lshl_b32 s{sT0}, s{sT0}, 10
    s_lshl_b32 s{sT1}, s{sOdd}, 12
    s_add_u32 s{sHb}, s{sT0}, s{sT1}
    s_add_u32 s{sHb+1}, s{sHb}, {56*1024}
    s_lshl_b32 s{sT1}, s{sOdd}, 9
    s_add_u32 s{sHs}, s{sT0}, s{sT1}
    s_add_u32 s{sHs}, s{sHs}, 3072
    v_and_b32 v{t0}, 15, v1
    v_lshlrev_b32 v{t0}, 4, v{t0}
    v_lshrrev_b32 v{t2}, 5, v1
    v_lshl_add_u32 v{t0}, v{t2}, 8, v{t0}
    v_bfe_u32 v{t2}, v1, 4, 1
    v_lshl_add_u32 v{t1}, v{t2}, 9, v{t0}
    v_mul_u32_u24 v{t2}, {56*1024}, v{t2}
    v_add_u32 v{t2}, v{t2}, v{t0}
    s_mov_b32 s{sM0}, {NLOG2E}
    s_mov_b32 s{sM0+1}, {NLOG2E}
    v_mov_b32 v2, {NLOG2E}
    v_mov_b32 v3, {NLOG2E}
    s_waitcnt lgkmcnt(0)""")
    Zs = [56, 72]; Es = [64, 80]; O = [148, 152]
    groups = [[(2 * g, q), (2 * g + 1, q)] for q in range(2) for g in range(3)] + [[(6, 0), (6, 1)]]
    def part1(gi):
        Z = Zs[gi & 1]; E = Es[gi & 1]; L = []
        prs = [(tau, q, p) for tau, q in groups[gi] for p in range(2)]
        for n, (tau, q, p) in enumerate(prs):
            c = cs + 4 * tau + 2 * p
            L.append(f'v_pk_mul_f32 {v(Z+2*n,2)}, {v(c,2)}, {v(ab+2*q,2)} op_sel:[0,1] op_sel_hi:[1,1]')
        for n, (tau, q, p) in enumerate(prs):
            a = ACC + 8 * tau + 4 * q + 2 * p
            L.append(f'v_pk_fma_f32 {v(Z+2*n,2)}, {v(a,2)}, {v(ab+2*q,2)}, {v(Z+2*n,2)} op_sel:[0,0,0] op_sel_hi:[1,0,1]')
        for n in range(8 if not cfg.get('fake') else 0): L.append(f'v_exp_f32 v{E+n}, v{Z+n}')
        for n in range(4): L.append(f'v_pk_fma_f32 {v(E+2*n,2)}, {v(E+2*n,2)}, s[{sM0}:{sM0+1}], v[2:3]')
        for n in range(8 if not cfg.get('fake') else 0): L.append(f'v_rcp_f32 v{E+n}, v{E+n}')
        for n in range(4): L.append(f'v_pk_mul_f32 {v(Z+2*n,2)}, {v(Z+2*n,2)}, {v(E+2*n,2)}')
        o = O[gi & 1]
        for n in range(4): L.append(f'v_cvt_pk_bf16_f32 v{o+n}, v{Z+2*n}, v{Z+2*n+1}')
        T = [f'v_permlane16_swap_b32 v{o}, v{o+2}', f'v_permlane16_swap_b32 v{o+1}, v{o+3}']
        if gi < 6: T.append(f'buffer_store_dwordx4 {v(o,4)}, v{t1}, s[{sWS}:{sWS+3}], s{sHb+gi//3} offen offset:{1024*(gi%3)}{SC}')
        else: T.append(f'buffer_store_dwordx4 {v(o,4)}, v{t2}, s[{sWS}:{sWS+3}], s{sHs} offen{SC}')
        return L, T
    pend = []
    for gi in range(7):
        L, T = part1(gi)
        A('\n'.join(L[:2] + pend + L[2:])); pend = T
    A('\n'.join(pend))
    lds_inc(A, vSyM, SY_ST, vOneM)
    ST('epi')
    cw = mw
    sCh, sHF, sUb, sKb = sA, sB, sC, sE
    vK, vU, vSy, vOne, vL16 = 4, 5, 6, 7, 13
    A(f"""s_lshr_b32 s{sCh}, s{cw}, 1
    s_and_b32 s{sHF}, s{cw}, 1
    s_mul_i32 s{sUb}, s{sCh}, {UP}
    s_add_u32 s{sUb}, s{sUb}, {LU}
    s_mul_i32 s{sKb}, s{sCh}, {4*KCP}
    s_add_u32 s{sKb}, s{sKb}, {LKC}
    v_lshlrev_b32 v{vL16}, 4, v1
    v_mov_b32 v{vSy}, {LSY}
    v_mov_b32 v{vOne}, 1
    s_lshl_b32 s{sT0}, s{sCh}, 2
    v_add_u32 v{t0}, s{sT0}, v{vSy}
    v_and_b32 v{t1}, 3, v1
    v_sub_u32 v{t1}, 3, v{t1}
    v_mul_u32_u24 v{t1}, {KCP}, v{t1}
    v_bfe_u32 v{t2}, v1, 2, 2
    v_lshrrev_b32 v{t3}, 4, v1
    v_lshlrev_b32 v{vK}, 1, v{t3}
    v_sub_u32 v{vK}, v{vK}, v{t2}
    v_lshl_add_u32 v{vK}, v{vK}, 3, v{t1}
    s_lshl_b32 s{sT0}, s{sHF}, 8
    s_sub_u32 s{sT1}, s{sKb}, s{sT0}
    s_add_u32 s{sT1}, s{sT1}, {8*507-192-3584}
    v_add_u32 v{vK}, s{sT1}, v{vK}
    v_and_b32 v{t1}, 15, v1
    v_lshlrev_b32 v{t1}, 5, v{t1}
    v_lshl_add_u32 v{vU}, v{t3}, 4, v{t1}
    s_sub_u32 s{sT1}, s{sUb}, s{sT0}
    s_add_u32 s{sT1}, s{sT1}, {448-192}
    v_add_u32 v{vU}, s{sT1}, v{vU}""")
    def flag2():
        A(f"""s_lshl_b32 s{sT1}, s{sRB}, 8
        s_lshr_b32 s{sT0}, s{mw}, 1
        s_lshl_b32 s{sT0}, s{sT0}, 7
        s_add_u32 s{sT1}, s{sT1}, s{sT0}
        s_lshl_b32 s{sT0}, s{sCB}, 3
        s_add_u32 s{sT1}, s{sT1}, s{sT0}
        s_and_b32 s{sT0}, s{mw}, 1
        s_lshl_b32 s{sT0}, s{sT0}, 2
        s_add_u32 s{sT1}, s{sT1}, s{sT0}
        s_add_u32 s{sT1}, s{sT1}, {WS_F2}
        v_mov_b32 v{t1}, 0
        v_mov_b32 v{t2}, s{sNon}
        s_waitcnt vmcnt(0)
        s_setprio 3
        s_mov_b64 exec, 1
        buffer_store_dword v{t2}, v{t1}, s[{sWS}:{sWS+3}], s{sT1} offen{SC}
        s_mov_b64 exec, -1""")
    sF2 = sOdd
    A(f'ds_read_b32 v{t3}, v{vSy} offset:{SY_U}\ns_mov_b32 s{sF2}, 0\ns_waitcnt lgkmcnt(0)\nv_readfirstlane_b32 s{sT0}, v{t3}\ns_cmp_ge_u32 s{sT0}, {99 if cfg.get("f2first") else 4}')
    A.fwd_branch('s_cbranch_scc1 L_UR')
    flag2()
    ST('f2a')
    A(f's_mov_b32 s{sF2}, 1')
    lds_wait(A, 'L_WU', vSy, SY_U, 4, t3, sT0, sleep=1)
    A.label('L_UR')
    A(f's_or_b32 s{sT0}, s2, s{mw}\ns_cmp_lg_u32 s{sT0}, 0')
    A.fwd_branch('s_cbranch_scc1 L_NOEP')
    A(f's_mov_b32 s{sT0}, {WS_EP}\nv_mov_b32 v{t1}, 0\nv_mov_b32 v{t2}, s{sNon}\ns_mov_b64 exec, 1\nbuffer_store_dword v{t2}, v{t1}, s[{sWS}:{sWS+3}], s{sT0} offen{SC}\ns_mov_b64 exec, -1')
    A.label('L_NOEP')
    if cfg.get('cvdelay'):
        for _ in range(cfg['cvdelay']): A('s_sleep 100')
    A(f's_setprio {cfg.get("cvprio", 0)}')
    ST('cv0')
    ACC = 20
    FK = [52, 116]; FU = [84, 148]
    def creads(rl):
        b = rl & 1; L = []
        for m in range(8):
            L.append(f'ds_read_b128 {v(FU[b]+4*m,4)}, v{vU} offset:{512*m+64*(3-rl)}')
            for hh in range(2):
                L.append(f'ds_read_b64 {v(FK[b]+4*m+2*hh,2)}, v{vK} offset:{512*(7-m)+64*(3-rl)+8*hh}')
        return L
    A('\n'.join(creads(0)))
    for rl in range(4):
        b = rl & 1
        nxt = creads(rl + 1) if rl < 3 else []
        if rl == cfg.get('f2rl', 1):
            A(f's_cmp_eq_u32 s{sF2}, 1')
            A.fwd_branch('s_cbranch_scc1 L_F2D')
            flag2()
            A.label('L_F2D')
            A('s_setprio 3')
            ST('f2')
            load_x_final(A)
            A(f's_setprio {cfg.get("cvprio", 0)}')
        A('s_waitcnt lgkmcnt(0)')
        if rl == 3: lds_inc(A, vSy, SY_CV, vOne)
        k = 0
        for m in range(8):
            for jj in range(8 - m):
                a = ACC + 4 * (m + jj)
                A(f'v_mfma_f32_16x16x32_f16 {v(a,4)}, {v(FK[b]+4*m,4)}, {v(FU[b]+4*jj,4)}, {"0" if rl == 0 and m == 0 else v(a,4)}')
                if k < len(nxt): A(nxt[k])
                k += 1
    ST('cv1')
    A('s_setprio 2')
    lds_wait(A, 'L_WCV', vSy, SY_CV, 4, t3, sT0)
    A(f"""s_lshl_b32 s{sT0}, s{cw}, 13
    s_add_u32 s{sT0}, s{sT0}, {LEX}
    v_add_u32 v{t1}, s{sT0}, v{vL16}""")
    for i in range(8): A(f'ds_write_b128 v{t1}, {v(ACC+4*i,4)} offset:{1024*i}')
    UU = 116; YS = 124
    A(f"""s_lshl_b32 s{sT0}, s{cw}, 11
    s_add_u32 s{sT1}, s{sT0}, {LEX}
    v_add_u32 v{t0}, s{sT1}, v{vL16}
    v_and_b32 v{vK}, 15, v1
    v_lshrrev_b32 v{vU}, 4, v1
    v_lshlrev_b32 v{vU}, 2, v{vU}
    v_lshl_add_u32 v{vK}, v{vK}, 4, v{vU}
    s_lshl_b32 s{sT1}, s{cw}, 10
    s_add_u32 s{sT1}, s{sT1}, {LU+480}
    v_lshl_add_u32 v{vU}, v{vK}, 1, s{sT1}
    v_lshlrev_b32 v{vK}, 2, v{vK}
    s_lshl_b32 s{sT2}, s{sDP}, 14
    s_add_u32 s{sT2}, s{sT2}, s{sT0}
    s_add_u32 s{sT2}, s{sT2}, s{sT0}
    s_add_u32 s{sT2}, s{sT2}, {WS_SP}
    s_and_b32 s{sE}, s{sD}, 0xffff0000
    s_lshl_b32 s{sD}, s{sD}, 16
    s_waitcnt lgkmcnt(0)""")
    for ti in range(2):
        for c in range(2): A(f'ds_read_b64 {v(UU+4*ti+2*c,2)}, v{vU} offset:{512*ti+UP*c}')
    lds_inc(A, vSy, SY_EX, vOne)
    A(f'ds_read_b64 {v(YS,2)}, v{vSy} offset:40')
    lds_wait(A, 'L_WEX', vSy, SY_EX, 4, t3, sT0)
    PB = 52
    for ti in range(2):
        for w in range(4): A(f'ds_read_b128 {v(PB+16*ti+4*w,4)}, v{t0} offset:{8192*w+1024*ti}')
    for ti in range(2):
        A(f's_waitcnt lgkmcnt({4-4*ti})')
        for c in range(2):
            p0, p1 = PB + 16 * ti + 8 * c, PB + 16 * ti + 8 * c + 4
            for e in range(4): A(f'v_add_f32 v{p0+e}, v{p0+e}, v{p1+e}')
            for e in range(4): A(f'v_mul_f32 v{p0+e}, v{YS+c}, v{p0+e}')
            for e in range(4): A(f'v_fma_mix_f32 v{p0+e}, v{UU+4*ti+2*c+(e>>1)}, s{sD+c}, v{p0+e} op_sel:[{e&1},0,0] op_sel_hi:[1,0,0]')
        o = 128 + 8 * ti
        for e in range(4): A(f'v_cvt_pk_bf16_f32 v{o+2*e}, v{PB+16*ti+e}, v{PB+16*ti+8+e}\nv_mov_b32 v{o+2*e+1}, s{sNon}')
        for hh in range(2): A(f'buffer_store_dwordx4 {v(o+4*hh,4)}, v{vK}, s[{sWS}:{sWS+3}], s{sT2} offen offset:{2048*ti+1024*hh}{SC}')
    ST('f3')
    A(f"""v_lshrrev_b32 v{vK}, 5, v1
    v_bfe_u32 v{vU}, v1, 4, 1
    v_and_b32 v{t3}, 15, v1
    v_lshlrev_b32 v{t2}, 4, v{t3}
    v_lshl_add_u32 v{t2}, v{vU}, 10, v{t2}
    v_lshl_add_u32 v{t2}, v{vK}, 14, v{t2}
    s_lshl_b32 s{sA}, s{sCB2}, 19
    s_lshl_b32 s{sT2}, s{cw}, 17
    s_add_u32 s{sA}, s{sA}, s{sT2}
    s_lshr_b32 s{sT2}, s{sRB2}, 2
    s_lshl_b32 s{sT2}, s{sT2}, 11
    s_add_u32 s{sA}, s{sA}, s{sT2}
    s_and_b32 s{sT2}, s{sRB2}, 3
    s_lshl_b32 s{sT2}, s{sT2}, 8
    s_add_u32 s{sA}, s{sA}, s{sT2}
    s_add_u32 s{sA}, s{sA}, {WS_SP}
    s_add_u32 s{sB}, s{sA}, {32768}
    s_add_u32 s{sC}, s{sA}, {65536}
    s_add_u32 s{sD}, s{sA}, {98304}
    s_lshl_b32 s{sT2}, s{cw}, 3
    v_add_u32 v{vK}, s{sT2}, v{vK}
    v_and_b32 v{t1}, 7, v1
    v_lshlrev_b32 v{t1}, 2, v{t1}
    v_xor_b32 v{vK}, v{vK}, v{t1}
    v_lshlrev_b32 v{vK}, 2, v{vK}
    v_lshl_add_u32 v{vK}, v{t3}, 9, v{vK}
    v_lshl_add_u32 v{vK}, v{vU}, 8, v{vK}
    v_add_u32 v{vK}, {LS}, v{vK}
    v_xor_b32 v{vU}, 16, v{vK}""")
    final_addr(A)
    lds_wait(A, 'L_WT', vSy, SY_TRIG, 1, t3, sT0, sleep=4)
    SG = 44
    gpoll(A, 'L_P3', '\n'.join(f'buffer_load_dwordx4 {v(SG+4*it,4)}, v{t2}, s[{sWS}:{sWS+3}], s{sA+it} offen{SC}' for it in range(4)),
          [SG + 2 * k + 1 for k in range(8)], sleep=cfg.get('p3sleep', 12))
    ST('p3')
    for it in range(4):
        for e in range(2): A(f'ds_write_b32 v{vU if it >= 2 else vK}, v{SG+4*it+2*e} offset:{128*e+8*(it&1)}')
    A.fwd_branch('s_branch L_FINAL')

def gen_H(A, cfg, ST):
    ST.role = 'H'
    A.label('L_H')
    hw = sWave
    vXo_, vWo = 16, 20
    vWr = 24
    vOne = 32
    t0, t1, t2, t3 = 36, 37, 38, 39
    vH, vW, vR = 48, 52, 56
    vRow = 64
    vTmp = 72
    vCS, vFw = 192, 220
    sXb, sWb, sLb, sCk = sA, sB, sC, sD
    sH, sWo, sK, sKw = 30, 31, 38, 39
    vq = Q(A, 'vmcnt', 63)
    A0 = A; A = BG(A0, vq, cfg.get('every', 6))
    b0, b1, b2 = 28, 29, 17
    def vwait(tag): A.flush(tag); vq.wait(tag)
    D = 232; kP = 64; PC, PR, YS, WA = 128, 160, 114, 64
    A(f"""s_lshr_b32 s{sT0}, s{hw}, 1
    s_lshl_b32 s{sT2}, s{sDP}, 1
    s_add_u32 s{sT2}, s{sT2}, s{sT0}
    s_and_b32 s{sT1}, s{hw}, 1
    s_lshl_b32 s{sT1}, s{sT1}, 7
    s_lshl_b32 s{sT0}, s{sT2}, 8
    s_add_u32 s{sT0}, s{sT0}, s{sT1}
    v_lshl_add_u32 v100, v1, 1, s{sT0}
    v_xor_b32 v101, 128, v100
    s_lshl_b32 s{sT0}, s{sT2}, 1
    v_mov_b32 v102, s{sT0}
    """)
    A(f"""v_lshrrev_b32 v{t0}, 3, v1
    v_lshrrev_b32 v{t1}, 4, v1
    v_and_b32 v{t2}, 7, v1
    v_xor_b32 v{t2}, v{t2}, v{t1}
    v_lshlrev_b32 v{t2}, 4, v{t2}
    v_lshl_add_u32 v{vXo_}, v{t0}, 10, v{t2}
    v_xor_b32 v{t3}, 64, v{vXo_}
    v_add_u32 v{vXo_+1}, 7168, v{t3}
    v_add_u32 v{vXo_+2}, 14336, v{vXo_}
    v_add_u32 v{vXo_+3}, 21504, v{t3}""")
    for half in range(2):
        A(f"""v_bfe_u32 v{t0}, v1, 1, 3
        v_xor_b32 v{t0}, v{t0}, v{t1}
        v_xor_b32 v{t0}, {4*half}, v{t0}
        v_and_b32 v{t2}, 1, v1
        v_lshl_add_u32 v{t2}, v{t0}, 1, v{t2}
        s_lshl_b32 s{sT0}, s{sOdd}, 1
        v_add_u32 v{t2}, s{sT0}, v{t2}
        v_subrev_u32 v{t3}, 14, v{t2}
        v_cmp_gt_u32 vcc, 14, v{t2}
        v_cndmask_b32 v{t2}, v{t3}, v{t2}, vcc
        v_lshlrev_b32 v{t2}, 4, v{t2}
        v_mul_u32_u24 v{t3}, 3584, v{t1}
        v_add_u32 v{t2}, v{t2}, v{t3}
        v_mov_b32 v{t3}, 0x7f000000
        v_cmp_eq_u32 vcc, 7, v{t0}
        v_cndmask_b32 v{t2}, v{t2}, v{t3}, vcc
        v_add_u32 v{vWo+2*half}, {(2*half)*13312}, v{t2}
        v_add_u32 v{vWo+2*half+1}, {(2*half+1)*13312}, v{t2}""")
    A(f"""s_lshl_b32 s{sXb}, s{sRB}, 17
    s_lshl_b32 s{sT0}, s{hw}, 15
    s_add_u32 s{sXb}, s{sXb}, s{sT0}
    s_mul_i32 s{sWb}, s{hw}, {16*3584}
    s_mul_i32 s{sT0}, s{sCB}, 224
    s_add_u32 s{sWb}, s{sWb}, s{sT0}
    s_lshl_b32 s{sLb}, s{hw}, 12
    v_lshlrev_b32 v13, 4, v1
    """)
    A(f"""s_waitcnt lgkmcnt(0)
    global_load_ushort v{kP+6}, v102, s[{pLDT}:{pLDT+1}]
    global_load_ushort v{kP+0}, v100, s[{pLAR}:{pLAR+1}]
    global_load_ushort v{kP+1}, v100, s[{pAIM}:{pAIM+1}]
    global_load_ushort v{kP+2}, v100, s[{pCRE}:{pCRE+1}]
    global_load_ushort v{kP+3}, v100, s[{pCIM}:{pCIM+1}]
    global_load_ushort v{kP+4}, v101, s[{pCRE}:{pCRE+1}]
    global_load_ushort v{kP+5}, v101, s[{pCIM}:{pCIM+1}]""", 'par')
    srd(A, sX, pX, 2048 * 1024); srd(A, sW1, pW1, 512 * 3584)
    A0('s_barrier')
    ST('ld')
    def dma(st, now=False):
        slot = st & 3
        for i in range(4):
            pre = ''
            if i == 0:
                pre = f's_add_u32 s{b2}, s{sCh0}, {st}\ns_and_b32 s{b2}, s{b2}, 7\ns_lshl_b32 s{b0}, s{b2}, 7\ns_add_u32 s{b0}, s{b0}, s{sXb}\ns_add_u32 m0, s{sLb}, {Aslot(slot)}\ns_mul_i32 s{b1}, s{b2}, {64*3584}\ns_add_u32 s{b1}, s{b1}, s{sWb}\n'
            A.push(pre + f'buffer_load_dwordx4 v{vXo_+i}, s[{sX}:{sX+3}], s{b0} offen offset:{1024*i} lds', ('d', st))
        for i in range(4):
            pre = f's_add_u32 m0, s{sLb}, {Bslot(slot)}\n' if i == 0 else ''
            A.push(pre + f'buffer_load_dwordx4 v{vWo+i}, s[{sW1}:{sW1+3}], s{b1} offen offset:{1024*i} lds', ('d', st))
        if now: A.flush()
    dma(0, now=True)
    A(f"""v_lshrrev_b32 v{t0}, 2, v1
    v_mul_u32_u24 v{t0}, 3584, v{t0}
    v_and_b32 v{t1}, 3, v1
    v_mul_u32_u24 v{t1}, 72, v{t1}
    v_add_u32 v{t0}, v{t0}, v{t1}
    s_add_u32 s{sT0}, s{sCh0}, 1
    s_and_b32 s{sT0}, s{sT0}, 7
    s_mul_i32 s{sT0}, s{sT0}, {64*3584}
    s_add_u32 s{sT0}, s{sT0}, s{sWb}
    buffer_load_dword v47, v{t0}, s[{sW1}:{sW1+3}], s{sT0} offen""", 't1')
    A0.fence(); A0.raw('; @@SPLIT')
    srd(A, sWS, pWS, WS_SIZE); srd(A, sW2, pW2, 1792 * 1024); srd(A, sOUT, pOUT, 2048 * 1024)
    A(f"""v_bfe_u32 v{t0}, v1, 4, 1
    v_bfe_u32 v{t1}, v1, 2, 2
    v_lshl_or_b32 v{t2}, v{t0}, 2, v{t1}
    v_lshl_add_u32 v{t0}, v{t0}, 3, v{t1}
    v_lshrrev_b32 v{t1}, 5, v1
    v_lshl_add_u32 v{t0}, v{t1}, 2, v{t0}
    v_and_b32 v{t1}, 3, v1
    v_lshlrev_b32 v{t1}, 3, v{t1}
    v_lshl_add_u32 v{t3}, v{t0}, 8, v{t1}
    s_add_u32 s{sT0}, s{sLb}, {Bslot(0)}
    v_add_u32 v{t3}, s{sT0}, v{t3}""")
    for P in range(7): A(f'v_xor_b32 v{t0}, {P}, v{t2}\nv_lshl_add_u32 v{vWr+P}, v{t0}, 5, v{t3}')
    for i in range(4): A(f'v_mov_b32 v{vOne+i}, 0x3f803f80')
    A(f"""v_lshlrev_b32 v{vH}, 4, v1
    v_add_u32 v{vH+1}, {57344}, v{vH}
    v_add_u32 v{vH+2}, {2*57344}, v{vH}
    v_add_u32 v{vH+3}, {3*57344}, v{vH}
    s_mul_i32 s{sH}, s{sRB2}, {4*57344}
    s_mul_i32 s{sT0}, s{hw}, {14*1024}
    s_add_u32 s{sH}, s{sH}, s{sT0}
    v_lshrrev_b32 v{t0}, 3, v1
    v_bfe_u32 v{t1}, v1, 4, 1
    v_lshlrev_b32 v{t1}, 1, v{t1}
    v_and_b32 v{t2}, 7, v1
    v_xor_b32 v{t2}, v{t2}, v{t1}
    v_lshlrev_b32 v{t2}, 4, v{t2}
    v_lshl_add_u32 v{vW}, v{t0}, 10, v{t2}
    v_xor_b32 v{t3}, 64, v{vW}
    v_add_u32 v{vW+1}, 7168, v{t3}
    v_add_u32 v{vW+2}, 14336, v{vW}
    v_add_u32 v{vW+3}, 21504, v{t3}
    s_mul_i32 s{sWo}, s{hw}, {14*32768}
    s_lshl_b32 s{sT0}, s{sCB2}, 7
    s_add_u32 s{sWo}, s{sWo}, s{sT0}
    s_mov_b32 s{sKw}, s{sK0}
    s_mov_b32 s{sK}, s{sK0}
    v_lshrrev_b32 v{t0}, 4, v1
    v_bfe_u32 v{t1}, v1, 2, 2
    v_lshl_add_u32 v{t0}, v{t0}, 3, v{t1}
    v_bfe_u32 v{t1}, v1, 3, 2
    v_and_b32 v{t2}, 3, v1
    v_lshlrev_b32 v{t2}, 3, v{t2}
    v_lshl_add_u32 v{t2}, v{t0}, 7, v{t2}
    v_add_u32 v{t2}, s{sLb}, v{t2}""")
    for T in range(4): A(f'v_xor_b32 v{t3}, {T}, v{t1}\nv_lshl_add_u32 v{vR+T}, v{t3}, 5, v{t2}')
    for T in range(4): A(f'v_add_u32 v{vR+4+T}, 65536, v{vR+T}')
    ST('d01')
    vSy, vI1 = 6, 7
    A(f'v_mov_b32 v{vSy}, {LSY}\nv_mov_b32 v{vI1}, 1')
    def colsum(st):
        slot = st & 3
        vwait(('d', st))
        for P in range(7): A(f'ds_read_b64_tr_b16 {v(vFw+4*P+2*(st&1),2)}, v{vWr+P} offset:{slot*16384}')
        A('s_waitcnt lgkmcnt(0)')
        if st == 7:
            for P in range(4, 7): A(f'v_mov_b32 v{vFw+4*P}, 0\nv_mov_b32 v{vFw+4*P+1}, 0')
        for P in range(7):
            if (P < 4 and st & 1) or (P >= 4 and (not st & 1 or st == 7)):
                A(f'v_mfma_f32_16x16x32_bf16 {v(vCS+4*P,4)}, {v(vOne,4)}, {v(vFw+4*P,4)}, {"0" if st <= 1 else v(vCS+4*P,4)}')
    for P in range(4, 7): A(f'v_mov_b32 v{vFw+4*P+2}, 0\nv_mov_b32 v{vFw+4*P+3}, 0')
    ST('pre')
    NREG = cfg.get('nreg', 7)
    WR = 192 - 16 * NREG
    def ldW(i):
        for e in range(4):
            pre = f's_add_u32 m0, s{sLb}, {RING[i % 6]}\ns_lshl_b32 s{b0}, s{sKw}, 15\ns_add_u32 s{b0}, s{sWo}, s{b0}\ns_add_u32 s{sKw}, s{sKw}, 1\ns_cmp_eq_u32 s{sKw}, 14\ns_cselect_b32 s{sKw}, 0, s{sKw}\n' if e == 0 else ''
            A.push(pre + f'buffer_load_dwordx4 v{vW+e}, s[{sW2}:{sW2+3}], s{b0} offen offset:{1024*e} lds', ('w', i))
    def rdW(i, dst):
        base = RING[i % 6]; hi = 4 if base >= 65536 else 0; base &= 65535
        for T in range(4):
            for hh in range(2):
                A(f'ds_read_b64_tr_b16 {v(dst+4*T+2*hh,2)}, v{vR+hi+T} offset:{base+hh*512}')
    nw = [0]
    def ldWn(n):
        for _ in range(n): ldW(nw[0]); nw[0] += 1
    def cert(st):
        vwait(('d', st)); lds_inc(A0, vSy, CERT(st), vI1); ST(f'c{st}')
    def wdone(st): lds_wait(A0, f'L_DN{st}', vSy, DONE(st), 4, t3, sT0, sleep=1); ST(f'w{st}')
    def pop3():
        for _ in range(3):
            if A.q: A.pop()
    def bar(st):
        if st < 8: vwait(('d', st))
        ST(f'b{st}'); A0('s_barrier'); ST(f'B{st}')
    A(f"""s_lshl_b32 s{sT0}, s{sK0}, 5
    s_add_u32 s{sT0}, s{sT0}, 64
    s_mul_i32 s{sT1}, s{hw}, {448*1024}
    s_lshl_b32 s{sT2}, s{sCB2}, 7
    s_add_u32 s{sT1}, s{sT1}, s{sT2}
    v_min_u32 v{t0}, 47, v1
    v_add_u32 v{t0}, s{sT0}, v{t0}
    v_subrev_u32 v{t1}, 448, v{t0}
    v_cmp_gt_u32 vcc, 448, v{t0}
    v_cndmask_b32 v{t0}, v{t1}, v{t0}, vcc
    v_lshl_add_u32 v46, v{t0}, 10, s{sT1}""")
    sF1 = 16
    A(f"""v_and_b32 v{t0}, 31, v1
    v_lshlrev_b32 v2, 3, v{t0}
    s_lshl_b32 s{sE}, s{sRB}, 10
    s_lshl_b32 s{sT1}, s{hw}, 8
    s_add_u32 s{sE}, s{sE}, s{sT1}
    s_add_u32 s{sE}, s{sE}, {WS_GR}
    s_lshr_b32 s{sF1}, s{sDP}, 6
    s_lshl_b32 s{sF1}, s{sF1}, 10
    s_add_u32 s{sF1}, s{sF1}, s{sT1}
    s_add_u32 s{sF1}, s{sF1}, {WS_F1}
    v_lshlrev_b32 v41, 2, v1""")
    A.flush()
    vwait('par')
    ST('par')
    KT = kgen_tables(kP, PC, PR, YS)
    nk = cfg.get('d1at', 170)
    A('\n'.join(KT[:nk]))
    A.every = 12; dma(1)
    A('\n'.join(KT[nk:]))
    A.flush(); A.every = cfg.get('every', 6)
    ST('kt')
    nd = [2]
    for _ in range(cfg.get('pre', 1)): dma(nd[0], now=True); nd[0] += 1
    AHEAD = cfg.get('ahead', [1, 1, 1, 1, 1])
    O = 164; R = 116; RA = 88
    def pk(d, a, b): return f'v_cvt_pk_f16_f32 v{d}, v{a}, v{b}'
    sCh, sHF, sKb = 18, 19, 20
    def kaddr():
        A(f"""s_lshr_b32 s{sCh}, s{hw}, 1
        s_and_b32 s{sHF}, s{hw}, 1
        s_lshl_b32 s{sT0}, s{sCh}, 16
        s_lshl_b32 s{sT1}, s{sHF}, 13
        s_add_u32 s{sT2}, s{sT0}, s{sT1}
        s_add_u32 s{sT2}, s{sT2}, {Aslot(2)}
        v_lshl_add_u32 v{WA}, v1, 2, s{sT2}""")
        L = []
        L += f"""v_and_b32 v{t0}, 31, v1
        v_lshrrev_b32 v{t1}, 5, v1
        v_and_b32 v{t2}, 15, v1
        v_xor_b32 v{t1}, v{t1}, v{t2}
        v_lshlrev_b32 v{t1}, 4, v{t1}
        v_lshl_add_u32 v{t1}, v{t0}, 8, v{t1}
        v_add_u32 v{RA}, s{sT2}, v{t1}
        v_add_u32 v96, s{sT2}, v13
        v_xor_b32 v97, 0x2000, v96""".split('\n')
        L += [f'v_xor_b32 v{RA+sg}, {sg*32}, v{RA}' for sg in range(1, 8)]
        L += f"""s_mul_i32 s{sKb}, s{sCh}, {4*KCP}
        s_add_u32 s{sKb}, s{sKb}, {LKC}
        s_lshl_b32 s{sT0}, s{sCh}, 2
        v_add_u32 v{R}, s{sT0}, v{vSy}
        v_mov_b32 v{R+4}, 0
        v_mov_b32 v{R+5}, 0
        v_mov_b32 v{R+6}, 0
        v_mov_b32 v{R+7}, 0
        v_lshrrev_b32 v{R+1}, 2, v1
        v_mul_u32_u24 v{R+1}, {KCP}, v{R+1}
        v_and_b32 v{t2}, 3, v1
        v_lshl_add_u32 v{R+1}, v{t2}, 4, v{R+1}
        v_add_u32 v{R+1}, s{sKb}, v{R+1}
        s_mul_i32 s{sT0}, s{sCh}, {UP}
        s_add_u32 s{sT0}, s{sT0}, {LU}
        v_add_u32 v{R+2}, s{sT0}, v13
        s_add_u32 s{sT0}, s{sKb}, 1008
        v_sub_u32 v{R+3}, s{sT0}, v13
        v_and_b32 v{t3}, 1, v1
        v_cmp_eq_u32 s[24:25], 1, v{t3}""".split('\n')
        W = []
        for i in range(16):
            if i: W.append(f'v_xor_b32 v{WA+i}, {i*16}, v{WA}')
            if i < cfg.get('cearly', 0): W.append(wr1(PC, i))
            W += L[:2]; del L[:2]
            if cfg.get('cpace', 0): W.append(f's_sleep {cfg.get("cpace", 1)}')
        A('\n'.join(W + L))
    def wr1(P, i): return f'ds_write2st64_b32 v{WA+i}, v{P+i}, v{P+i+16} offset0:{i} offset1:{i+16}'
    def trd(P):
        for sg in range(8): A(f'ds_read_b128 {v(P+4*sg,4)}, v{RA+sg}')
    def kphase():
        for i in range(cfg.get('cearly', 0), 16 if cfg.get('fake', 0) < 2 else 0): A(wr1(PC, i))
        trd(PC)
        for i in range(16 if cfg.get('fake', 0) < 2 else 0): A(wr1(PR, i))
        trd(PR)
        for sg in range(8):
            A(f's_waitcnt lgkmcnt({7-sg})')
            A(f'v_mfma_f32_32x32x16_f16 {v(D,16)}, {v(PR+4*sg,4)}, {v(PC+4*sg,4)}, {"0" if sg == 0 else v(D,16)}')
        A(f"""ds_write_b32 v{R}, v{YS} offset:40
        s_mov_b64 exec, 0xffff
        ds_write_b128 v{R+1}, {v(R+4,4)} offset:4096
        s_mov_b64 exec, 0x3fffffff
        ds_write_b128 v{R+2}, {v(R+4,4)}
        s_mov_b64 exec, -1""")
        for i in range(4): A(f'ds_write_b128 v96, {v(D+4*i,4)} offset:{1024*i}')
        ST('k1')
        lds_inc(A0, R, SY_KG, vI1)
        UWRITE()
        lds_wait(A0, 'L_WKG', R, SY_KG, 2, t3, sT0)
        for i in range(4): A(f'ds_read_b128 {v(PC+4*i,4)}, v97 offset:{1024*i}')
        A0(f's_cmp_eq_u32 s{sHF}, 1\ns_waitcnt lgkmcnt(0)')
        A.fwd_branch('s_cbranch_scc1 L_KH1')
        def chunk(c, E):
            if c == 0: return [pk(E, D+7, D+6), pk(E+1, D+5, D+4), pk(E+2, D+3, D+2), pk(E+3, D+1, D+0)]
            if c == 1: return [pk(E, D+10, D+10), pk(E+1, D+9, D+9), pk(E+2, D+9, D+8), pk(E+3, D+8, D+8)]
            lo, hi = D + 11 + 2 * (c - 2), D + 12 + 2 * (c - 2)
            return [f'v_cndmask_b32 v{t3}, v{lo}, v{hi}, s[24:25]', pk(E, hi, hi), pk(E+1, hi, t3), pk(E+2, lo, lo), pk(E+3, lo, lo)]
        for hf in range(2):
            if hf: A.label('L_KH1')
            need = range(0, 11) if hf == 0 else range(9, 15)
            for i in need: A0(f'v_add_f32 v{D+i}, v{D+i}, v{PC+i}')
            Es = {c: O + 24 * (c & 1) for c in range(4)}
            PV = 160
            if hf == 0: A0(f'v_mov_b32 v{PV}, 0\nv_mov_b32 v{PV+1}, 0')
            else: A0('\n'.join(chunk(1, PV)[:2]))
            for c in (2 * hf, 2 * hf + 1): A0('\n'.join(chunk(c, Es[c])))
            for c in (2 * hf, 2 * hf + 1):
                E = Es[c]; prev = PV if c == 2 * hf else Es[c - 1]
                A0(f'ds_write_b128 v{R+3}, {v(E,4)} offset:{1024*(3-c)}')
                for j in range(2): A0(f'v_mov_b32_dpp v{E+4+j}, v{prev+j} wave_ror:1 row_mask:0xf bank_mask:0xf')
                for j in range(2): A0(f'v_mov_b32_dpp v{E+4+j}, v{E+j} wave_shr:1 row_mask:0xf bank_mask:0xf')
                c1, c2, c3 = E + 8, E + 12, E + 16
                for i in range(4): A0(f'v_alignbit_b32 v{c1+i}, v{E+i+1}, v{E+i}, 16')
                A0(f'ds_write_b128 v{R+3}, {v(c1,4)} offset:{1024*(3-c)+KCP}')
                for i in range(4): A0(f'v_mov_b32 v{c2+i}, v{E+i+1}')
                A0(f'ds_write_b128 v{R+3}, {v(c2,4)} offset:{1024*(3-c)+2*KCP}')
                for i in range(4): A0(f'v_alignbit_b32 v{c3+i}, v{E+i+2}, v{E+i+1}, 16')
                A0(f'ds_write_b128 v{R+3}, {v(c3,4)} offset:{1024*(3-c)+3*KCP}')
            if hf == 0: A.fwd_branch('s_branch L_KH2')
        A.label('L_KH2')
        lds_inc(A0, vSy, SY_U, vI1)
        ST('u')
    def tw2(k):
        a, b = cfg.get('t2at', (9, 9))
        L = f'buffer_load_dword v47, v46, s[{sW2}:{sW2+3}], 0 offen'
        if a == b == k: A(L, 'tw')
        elif k in (a, b):
            A0(f's_bitcmp{1 if k == a else 0}_b32 s{sRB}, 0')
            A.fwd_branch(f's_cbranch_scc1 L_T2{k}')
            A0(L)
            A.label(f'L_T2{k}')
    tw2(-1)
    for k in range(6):
        bar(k)
        for _ in range(AHEAD[k] if k < len(AHEAD) else 1):
            if nd[0] < 8:
                assert nd[0] <= k + 3
                dma(nd[0]); nd[0] += 1
        if k == 5: ldWn(2)
        pop3()
        if k == 0: A(f'ds_read_b32 v15, v{vSy} offset:32')
        for c in cfg.get('cs', {0: [0], 1: [1], 2: [2, 3], 3: [4], 4: [5], 5: [6, 7]})[k]: colsum(c)
        if k == 0: A(f'v_readfirstlane_b32 s{sNon}, v15')
        A.flush()
        tw2(k)
        if k == 4: A(f'buffer_load_dwordx2 v[4:5], v2, s[{sWS}:{sWS+3}], s{sE} offen{SC}', 'gl'); A(f'buffer_load_dword v40, v41, s[{sWS}:{sWS+3}], s{sF1} offen{SC}', 'f1')
    for P in range(7): A(f'v_mov_b32 v{vFw+P}, v{vCS+4*P}')
    A(f"""s_lshl_b32 s{sT0}, s{hw}, 9
    s_add_u32 s{sT0}, s{sT0}, {LCSP}
    v_lshl_add_u32 v{t1}, v1, 5, s{sT0}
    s_mov_b64 exec, 0xffff
    ds_write_b128 v{t1}, {v(vFw,4)}
    ds_write_b128 v{t1}, {v(vFw+4,4)} offset:16
    s_mov_b64 exec, -1
    s_waitcnt lgkmcnt(0)""")
    bar(6)
    A(f"""v_and_b32 v{t0}, 31, v1
    s_lshl_b32 s{sT0}, s{hw}, 5
    v_add_u32 v{t0}, s{sT0}, v{t0}
    v_lshlrev_b32 v{t1}, 2, v{t0}
    v_add_u32 v{t1}, {LCSP}, v{t1}""")
    for w in range(4): A(f'ds_read_b32 v{vCS+w}, v{t1} offset:{512*w}')
    A(f"""v_and_b32 v{t1}, 7, v{t0}
    v_lshrrev_b32 v{t0}, 3, v{t0}
    v_lshl_add_u32 v{t0}, v{t1}, 4, v{t0}
    v_lshlrev_b32 v{t0}, 2, v{t0}
    v_add_u32 v{t0}, {LCS}, v{t0}""")
    gpoll(A0, 'L_PG', f'buffer_load_dwordx2 v[4:5], v2, s[{sWS}:{sWS+3}], s{sE} offen{SC}', [5], first=lambda: vwait('gl'))
    A(f"""v_and_b32 v{t2}, 0xffff0000, v4
    v_lshlrev_b32 v{t3}, 16, v4
    v_rcp_f32 v{t2}, v{t2}
    s_lshl_b32 s{sT0}, s{hw}, 8
    s_add_u32 s{sT0}, s{sT0}, {LSTAT}
    v_add_u32 v{t1}, s{sT0}, v2
    v_mul_f32 v{t2}, {NLOG2E}, v{t2}
    v_mul_f32_e64 v{t3}, -v{t3}, v{t2}
    ds_write_b64 v{t1}, v[{t2}:{t3}]
    s_waitcnt lgkmcnt(1)
    v_add_f32 v{vCS}, v{vCS}, v{vCS+1}
    v_add_f32 v{vCS+2}, v{vCS+2}, v{vCS+3}
    v_add_f32 v{vCS}, v{vCS}, v{vCS+2}
    ds_write_b32 v{t0}, v{vCS}""")
    lds_inc(A0, vSy, CERT(8), vI1)
    ST('B8')
    UG = 16; sU0, sU1, sUok = 21, 22, 23
    A(f"""v_lshrrev_b32 v{t0}, 1, v1
    v_and_b32 v{t1}, 1, v1
    v_lshlrev_b32 v43, 4, v{t1}
    v_lshl_add_u32 v43, v{t0}, 13, v43
    s_lshl_b32 s{sU0}, s{sDP}, 5
    s_lshl_b32 s{sT1}, s{hw}, 19
    s_add_u32 s{sU0}, s{sU0}, s{sT1}
    s_add_u32 s{sU0}, s{sU0}, {WS_XN}
    s_add_u32 s{sU1}, s{sU0}, {32*8192}
    v_mul_u32_u24 v{t1}, {UP}, v{t1}
    v_lshl_add_u32 v44, v{t0}, 4, v{t1}
    s_lshl_b32 s{sT0}, s{hw}, 10
    s_add_u32 s{sT0}, s{sT0}, {LU+480}
    v_add_u32 v44, s{sT0}, v44""")
    UL = f'buffer_load_dwordx4 {v(UG,4)}, v43, s[{sWS}:{sWS+3}], s{sU0} offen{SC}\nbuffer_load_dwordx4 {v(UG+4,4)}, v43, s[{sWS}:{sWS+3}], s{sU1} offen{SC}'
    vwait('f1')
    A0(f'v_cmp_ne_u32 vcc, s{sNon}, v40\ns_mov_b32 s{sUok}, 0\ns_cmp_eq_u64 vcc, 0')
    A.fwd_branch('s_cbranch_scc0 L_NOU')
    A0(UL + f'\ns_mov_b32 s{sUok}, 1')
    A.label('L_NOU')
    vq.add('u', 2)
    ST('p1')
    tw2(9)
    def UWRITE():
        vwait('u')
        A0(f's_cmp_eq_u32 s{sUok}, 1')
        A.fwd_branch('s_cbranch_scc1 L_UOK')
        gpoll(A0, 'L_P1', f'buffer_load_dword v40, v41, s[{sWS}:{sWS+3}], s{sF1} offen{SC}', [40])
        A0(UL + '\ns_waitcnt vmcnt(0)')
        A.label('L_UOK')
        A(f'ds_write_b128 v44, {v(UG,4)}\nds_write_b128 v44, {v(UG+4,4)} offset:512')
    if cfg.get('dbgw'):
        vwait(('w', 1)); ST('dw1'); vwait('u'); ST('du'); vwait('tw'); ST('dtw')
    kaddr()
    lds_wait(A0, 'L_WD7a', vSy, DONE(7), 4, t3, sT0, sleep=1)
    A0(f's_setprio {cfg.get("kprio", 3)}')
    ST('k0')
    kphase()
    A0(f's_setprio {cfg.get("wprio", 0)}')
    if cfg.get('stn', 4): lds_wait(A0, 'L_WST', vSy, SY_ST, cfg.get('stn', 4), t3, sT0, sleep=1)
    ST('st')
    ldWn(2); A.flush()
    lds_wait(A0, 'L_WXS', vSy, SY_U, 4, t3, sT0)
    ldWn(2); A.flush()
    D2 = cfg.get('d2', 5)
    NW = NREG + 6
    A(f"""s_lshl_b32 s{sE}, s{sRB2}, 7
    s_lshl_b32 s{sT1}, s{hw}, 5
    s_add_u32 s{sE}, s{sE}, s{sT1}
    s_add_u32 s{sE}, s{sE}, {WS_F2}
    v_and_b32 v{t0}, 7, v1
    v_lshlrev_b32 v{t0}, 2, v{t0}""")
    F2L = f'buffer_load_dword v{t2}, v{t0}, s[{sWS}:{sWS+3}], s{sE} offen{SC}'
    for i in range(NREG + 1):
        if i < NREG:
            vwait(('w', i))
            ST(f'W{i}')
            rdW(i, WR + 16 * i)
        while nw[0] < NW and nw[0] <= i + D2 and nw[0] - 6 <= i - 1:
            if nw[0] >= 6: A0(f's_waitcnt lgkmcnt({8 if i < NREG else 0})')
            if nw[0] == NW - cfg.get('f2early', 1): A(F2L, 'f2')
            ldWn(1); A.flush()
    assert nw[0] == NW
    A.flush()
    load_x_final(A0); vq.add('x')
    ST('wpre')
    gpoll(A0, 'L_P2', F2L, [t2], sleep=cfg.get('p2sleep', 4), first=lambda: vwait('f2'))
    if cfg.get('inv'): A0('buffer_inv sc1'); vq.add('inv')
    ST('p2')
    if cfg.get('hprio'): A(f's_setprio {cfg["hprio"]}')
    ACC = 192
    free = [16, 32] + list(range(64, WR, 16))
    hbuf = {}
    nh = 0
    G = cfg.get('lastg', 3); N1 = 14 - G
    HS = cfg.get("hsc", SC)
    adv = f's_add_u32 s{sK}, s{sK}, 1\ns_cmp_eq_u32 s{sK}, 14\ns_cselect_b32 s{sK}, 0, s{sK}\n'
    sG = [18, 19, 20, 21]
    gq = []
    def ldH():
        nonlocal nh
        if nh < N1:
            if not free: return
            b = free.pop(0); hbuf[nh] = b
            for q in range(4):
                pre = f's_lshl_b32 s{b1}, s{sK}, 10\ns_add_u32 s{b1}, s{sH}, s{b1}\n' + adv if q == 0 else ''
                A.push(pre + f'buffer_load_dwordx4 {v(b+4*q,4)}, v{vH+q}, s[{sWS}:{sWS+3}], s{b1} offen{HS}', ('h', nh))
            nh += 1
        elif nh < 14:
            if not free: return
            b = free.pop(0)
            if nh == N1:
                pre = ''.join(f's_lshl_b32 s{sG[j]}, s{sK}, 10\ns_add_u32 s{sG[j]}, s{sH}, s{sG[j]}\n' + adv for j in range(G))
                for q in range(4):
                    for j in range(G): gq.append((q, j))
            else: pre = ''
            for e in range(4):
                q, j = gq.pop(0); hq[(q, j)] = b + 4 * e
                A.push(pre + f'buffer_load_dwordx4 {v(b+4*e,4)}, v{vH+q}, s[{sWS}:{sWS+3}], s{sG[j]} offen{HS}', ('hq', q)); pre = ''
            nh += 1
    hq = {}
    while free: ldH()
    A.flush()
    final_addr(A0)
    A0(f"""v_and_b32 v2, 15, v1
    v_lshrrev_b32 v3, 4, v1
    v_xor_b32 v3, v3, v2
    v_lshlrev_b32 v3, 4, v3
    v_lshl_add_u32 v2, v2, 8, v3
    v_add_u32 v2, s{sLb}, v2
    v_xor_b32 v3, 64, v2
    v_xor_b32 v4, 128, v2
    v_xor_b32 v5, 192, v2""")
    wfrag = {i: WR + 16 * i for i in range(NREG)}
    wtmp = []; pend = []
    def rdWl(i, dst):
        base = RING[i % 6]; hi = 4 if base >= 65536 else 0; base &= 65535
        return [f'ds_read_b64_tr_b16 {v(dst+4*T+2*hh,2)}, v{vR+hi+T} offset:{base+hh*512}' for T in range(4) for hh in range(2)]
    LP = cfg.get('lpos', [0, 8])
    for i in range(N1):
        if i == min(cfg.get('trig', 10), N1 - 1):
            A0(f'ds_write_b32 v{vSy}, v{vI1} offset:{SY_TRIG}')
        rd = []
        vwait(('h', i))
        ST(f'h{i}')
        if i >= NREG:
            A0('s_waitcnt lgkmcnt(0)')
            if nw[0] < 14: ldWn(1)
        nxt = [i + 1] if i + 1 < N1 else list(range(N1, 14))
        for k in nxt:
            if k >= NREG:
                vwait(('w', k))
                wfrag[k] = (wtmp or free).pop(0); rd += rdWl(k, wfrag[k])
        n = 0
        per = -(-len(A.q) // len(LP))
        rper = -(-len(rd) // 14)
        for T in range(4):
            for q in range(4):
                a = ACC + 16 * T + 4 * q
                A0(f'v_mfma_f32_16x16x32_bf16 {v(a,4)}, {v(wfrag[i]+4*T,4)}, {v(hbuf[i]+4*q,4)}, {"0" if i == 0 else v(a,4)}')
                if n in LP:
                    for _ in range(per):
                        if A.q: A.pop()
                else:
                    for _ in range(rper):
                        if rd: A0(rd.pop(0))
                n += 1
        assert not rd
        A.flush()
        free.append(hbuf[i])
        if i >= NREG - 3: wtmp.append(wfrag[i])
        else: free.append(wfrag[i])
        for _ in range(2):
            if nh - (i + 1) < cfg.get('hd', 5): ldH()
    assert nh == 14
    A.flush()
    A0('s_waitcnt lgkmcnt(0)')
    for q in range(4):
        vwait(('hq', q))
        ST(f'q{q}')
        for j in range(G):
            for T in range(4):
                a = ACC + 16 * T + 4 * q
                A0(f'v_mfma_f32_16x16x32_bf16 {v(a,4)}, {v(wfrag[N1+j]+4*T,4)}, {v(hq[(q, j)],4)}, {v(a,4)}')
                if pend and (j, T) >= (0, 2): A0(pend.pop(0))
        pend += [f'ds_write_b128 v{2+T}, {v(ACC+16*T+4*q,4)} offset:{PART[q]}' for T in range(4)]
    A0('\n'.join(pend))
    ST('g2')

def final_addr(A):
    A(f"""v_bfe_u32 v2, v0, 3, 4
    v_and_b32 v13, 7, v0
    v_lshlrev_b32 v3, 1, v13
    v_xor_b32 v3, v3, v2
    v_lshlrev_b32 v3, 4, v3
    v_lshl_add_u32 v14, v2, 8, v3
    v_lshrrev_b32 v2, 7, v0
    v_lshl_add_u32 v14, v2, 14, v14
    v_xor_b32 v15, 16, v14
    v_bfe_u32 v3, v0, 5, 3
    v_xor_b32 v13, v13, v3
    v_lshlrev_b32 v13, 4, v13
    v_lshrrev_b32 v2, 3, v0
    v_lshl_add_u32 v13, v2, 7, v13
    v_add_u32 v13, {LS}, v13""")

def gen_final(A, cfg, ST):
    A.label('L_FINAL')
    t1, t2 = 13, 14
    PB = 16; SV = 48; E = 52; XU = 60; SU = 68
    A(f"""s_mov_b32 s{sM0}, {NLOG2E}
    s_mov_b32 s{sM0+1}, {NLOG2E}
    s_waitcnt vmcnt(0) lgkmcnt(0)
    s_barrier""")
    for w in range(4):
        for hh in range(2): A(f'ds_read_b128 {v(PB+8*w+4*hh,4)}, v{t2+hh} offset:{w*4096}')
    A(f'ds_read_b128 {v(SV,4)}, v{t1}')
    for j in range(4): A(f'v_lshlrev_b32 v{XU+2*j}, 16, v{vX+j}\nv_and_b32 v{XU+2*j+1}, 0xffff0000, v{vX+j}')
    A('s_waitcnt lgkmcnt(5)')
    for j in range(4): A(f'v_pk_add_f32 {v(PB+2*j,2)}, {v(PB+2*j,2)}, {v(PB+8+2*j,2)}')
    A('s_waitcnt lgkmcnt(1)')
    for j in range(4): A(f'v_pk_add_f32 {v(PB+16+2*j,2)}, {v(PB+16+2*j,2)}, {v(PB+24+2*j,2)}')
    for j in range(4): A(f'v_pk_add_f32 {v(PB+2*j,2)}, {v(PB+2*j,2)}, {v(PB+16+2*j,2)}')
    for j in range(4): A(f'v_pk_mul_f32 {v(E+2*j,2)}, {v(PB+2*j,2)}, s[{sM0}:{sM0+1}]')
    for j in range(8): A(f'v_exp_f32 v{E+j}, v{E+j}')
    for j in range(4): A(f'v_pk_add_f32 {v(E+2*j,2)}, {v(E+2*j,2)}, 1.0 op_sel_hi:[1,0]')
    for j in range(8): A(f'v_rcp_f32 v{E+j}, v{E+j}')
    A('s_waitcnt lgkmcnt(0)')
    for j in range(4): A(f'v_lshlrev_b32 v{SU+2*j}, 16, v{SV+j}\nv_and_b32 v{SU+2*j+1}, 0xffff0000, v{SV+j}')
    for j in range(4): A(f'v_pk_mul_f32 {v(PB+2*j,2)}, {v(PB+2*j,2)}, {v(E+2*j,2)}')
    for j in range(4): A(f'v_pk_fma_f32 {v(PB+2*j,2)}, {v(PB+2*j,2)}, {v(SU+2*j,2)}, {v(XU+2*j,2)}')
    for j in range(4): A(f'v_cvt_pk_bf16_f32 v{SV+j}, v{PB+2*j}, v{PB+2*j+1}')
    A(f'buffer_store_dwordx4 {v(SV,4)}, v{vXo}, s[{sOUT}:{sOUT+3}], 0 offen{cfg.get("outf", " sc1")}')
    ST.dump(sWS, 100, 101)

DOC = '''; Design (one workgroup per CU, 8 waves: H = waves 0-3, M = waves 4-7; generated by a script of my own):
'''

if __name__ == '__main__':
    out = sys.argv[1]
    cfg = eval(sys.argv[2]) if len(sys.argv) > 2 else {}
    PRESET = {1: dict(H=['ld','par','kt','B0','B4','B8','u','st','wpre','p2','g2','y'], M=['row','xn','kg','B0','B4','g1','epi','cv0','f2','cv1','f3','p3']),
              2: dict(H=['b0','b1','b2','b3','b4','b5','b6','b7','b8','p1','u','wpre'], M=['kg','B0','B1','B2','B3','B4','B5','B6','B7','B8','g1','epi'])}
    PRESET[3] = dict(H=['wpre','p2','g2'], M=['B0','g1','epi','f2','cv1','p3'])
    PRESET[4] = dict(H=['u','st','W0','W3','W6','wpre','p2','h0','h2','h5','h9','g2'], M=['g1','epi','cv0','f2','cv1','f3','p3'])
    PRESET[5] = dict(H=['kt','B0','B4','B8','k0','k1','u','st','wpre','p2','h2','g2'], M=['kg','g1','epi','f2a','cv0','f2','cv1','f3','p3'])
    PRESET[6] = dict(H=['p2','h0','h2','h4','h6','h8','h10','q0','q1','q2','q3','g2'], M=['cv1','f3','p3'])
    PRESET[7] = dict(H=['B5','B6','B8','p1','dw1','du','dtw','k0','u','wpre','p2','g2'], M=['g1','epi'])
    if cfg.get('stamps') in PRESET:
        cfg['stamps'] = PRESET[cfg['stamps']]
        print('H:', ' '.join('%6s' % a for a in ['t0'] + cfg['stamps']['H'] + ['end']))
        print('M:', ' '.join('%6s' % a for a in ['t0'] + cfg['stamps']['M'] + ['end']))
    MINSLEEP[0] = cfg.get('minsleep', 0)
    A = Asm()
    head = open('cdna_kernels/%s.s.ref' % NAME).read().split('; Override')[0]
    A.raw('.amdgcn_target "amdgcn-amd-amdhsa--gfx950"\n.text')
    k = gen(A, cfg)
    open(out, 'w').write(head + DOC + '; @launch grid=(256,1,1) block=(512,1,1) lds=163840\n' + A.text() + '.section .rodata,"a"\n.p2align 6\n' + k)
```
